```python
import torch

def _softmax(x, axis=-1):
    return torch.softmax(x, dim=axis)

def _gelu(x):
    return torch.nn.functional.gelu(x, approximate='tanh')

def _silu(x):
    return torch.nn.functional.silu(x)

def _sigmoid(x):
    return torch.sigmoid(x)

def _layernorm(x, axis=-1, eps=1e-05):
    m = x.mean(dim=axis, keepdim=True)
    v = x.var(dim=axis, keepdim=True, unbiased=False)
    return (x - m) / torch.sqrt(v + eps)

def _scatter_add(tgt, idx, src, axis=0):
    return tgt.clone().index_add_(axis, idx, src)

def _segment_sum(src, seg, n):
    out = torch.zeros((n,) + src.shape[1:], dtype=src.dtype)
    return out.index_add_(0, seg, src)

def _pad(x, pw):
    flat = tuple((v for pair in reversed(pw) for v in pair))
    return torch.nn.functional.pad(x, flat)
kernel_name = 'parallel_sum__memory_aug_recurrent_mem_tr__dense_activation_relu__prompt'

def setup_inputs():

    _w = lambda a: (lambda t: t.to(torch.bfloat16) if t.is_floating_point() else t)(torch.as_tensor(a))

    def _A_setup():
        B, S, Dm = (1, 2048, 512)
        H, Dh = (32, 128)
        M, seg = (8, 32)
        seg = min(seg, S)
        S = S // seg * seg
        return {'x': _w((lambda *s: torch.randn(*s, dtype=torch.bfloat16) * 0.05)(B, S, Dm)), 'mem0': _w((lambda *s: torch.randn(*s, dtype=torch.bfloat16) * 1.6)(B, M, Dm)), 'Wq': _w((lambda *s: torch.randn(*s, dtype=torch.bfloat16) * 0.8)(Dm, H, Dh) * Dm ** (-0.5)), 'Wk': _w((lambda *s: torch.randn(*s, dtype=torch.bfloat16) * 0.8)(Dm, H, Dh) * Dm ** (-0.5)), 'Wv': _w((lambda *s: torch.randn(*s, dtype=torch.bfloat16) * 1.6)(Dm, H, Dh) * Dm ** (-0.5)), 'Wo': _w((lambda *s: torch.randn(*s, dtype=torch.bfloat16) * 1.6)(H, Dh, Dm) * (H * Dh) ** (-0.5)), 'seg_len': seg}
    _A_in = _A_setup()

    def _B_setup():
        B, S, D, Dff = (1, 2048, 512, 1376)
        return {'x': _w((lambda *s: torch.randn(*s, dtype=torch.bfloat16) * 0.05)(B, S, D)), 'w1': _w((lambda *s: torch.randn(*s, dtype=torch.bfloat16) * 0.05)(D, Dff)), 'w2': _w((lambda *s: torch.randn(*s, dtype=torch.bfloat16) * 0.05)(Dff, D))}
    _B_in = _B_setup()
    return {'A_x': _A_in['x'], 'A_mem0': _A_in['mem0'], 'A_Wq': _A_in['Wq'], 'A_Wk': _A_in['Wk'], 'A_Wv': _A_in['Wv'], 'A_Wo': _A_in['Wo'], 'A_seg_len': _A_in['seg_len'], 'B_x': _B_in['x'], 'B_w1': _B_in['w1'], 'B_w2': _B_in['w2']}

def reference(A_x, A_mem0, A_Wq, A_Wk, A_Wv, A_Wo, A_seg_len, B_x, B_w1, B_w2):

    def _A_ref(x, mem0, Wq, Wk, Wv, Wo, seg_len):
        B, S, Dm = x.shape
        H, Dh = (Wq.shape[1], Wq.shape[2])
        M = mem0.shape[1]
        scale = Dh ** (-0.5)
        n_seg = S // seg_len
        L = M + seg_len
        idx = torch.arange(L)
        mask = (idx[:, None] < M) | (idx[:, None] >= idx[None, :])
        mem = mem0
        outs = []
        for s in range(n_seg):
            xs = x[:, s * seg_len:(s + 1) * seg_len, :].clone()
            h = torch.concatenate([mem, xs], axis=1)
            q = torch.einsum('btd,dhe->bhte', h, Wq)
            k = torch.einsum('btd,dhe->bhte', h, Wk)
            v = torch.einsum('btd,dhe->bhte', h, Wv)
            scores = torch.einsum('bhqe,bhke->bhqk', q, k) * scale
            scores = torch.where(mask[None, None], scores, -1000000000.0)
            p = _softmax(scores, axis=-1)
            o = torch.einsum('bhqk,bhke->bhqe', p, v)
            o = torch.einsum('bhte,hed->btd', o, Wo)
            mem = o[:, :M, :].clone()
            outs.append(o[:, M:, :])
        return torch.concatenate(outs, axis=1)

    def _B_ref(x, w1, w2):
        h = torch.einsum('bsd,df->bsf', x, w1)
        zero = torch.zeros_like(h)
        h = torch.maximum(h, zero)
        return torch.einsum('bsf,fd->bsd', h, w2)
    x = A_x
    xn = _layernorm(x, axis=-1)
    return x + _A_ref(xn, A_mem0, A_Wq, A_Wk, A_Wv, A_Wo, A_seg_len) + _B_ref(xn, B_w1, B_w2)
```

```python
import re

_rx = re.compile(r'\b([vas])(?:(\d+)|\[(\d+):(\d+)\])')

def regs_of(tok):
    out = []
    for m in _rx.finditer(tok):
        k = m.group(1)
        if m.group(2) is not None:
            out.append((k, int(m.group(2))))
        else:
            out += [(k, i) for i in range(int(m.group(3)), int(m.group(4)) + 1)]
    if re.search(r'\bvcc\b', tok): out += [('s', 106), ('s', 107)]
    if re.search(r'\bvcc_lo\b', tok): out += [('s', 106)]
    if re.search(r'\bvcc_hi\b', tok): out += [('s', 107)]
    if re.search(r'\bexec\b', tok): out += [('s', 126), ('s', 127)]
    return out

def split_ops(s):
    ops, depth, cur = [], 0, ''
    for ch in s:
        if ch == '[': depth += 1
        if ch == ']': depth -= 1
        if ch == ',' and depth == 0:
            ops.append(cur.strip()); cur = ''
        else:
            cur += ch
    if cur.strip(): ops.append(cur.strip())
    return ops

TRANS = ('v_exp_', 'v_log_', 'v_rcp_', 'v_rsq_', 'v_sqrt_', 'v_sin_', 'v_cos_')

class Ins:
    __slots__ = ('txt', 'op', 'kind', 'dst', 'src', 'srcC', 'dpp', 'wide', 'passes', 'nop')
    def __init__(self, txt):
        self.txt = txt
        body = txt.split(';')[0].strip()
        p = body.split(None, 1)
        op = p[0]
        self.op = op
        rest = p[1] if len(p) > 1 else ''
        ops = split_ops(rest)
        self.dst, self.src, self.srcC = [], [], []
        self.dpp = ('row_' in rest or 'quad_perm' in rest or 'wave_' in rest)
        self.wide = False
        self.passes = 0
        self.nop = 0
        def R(i):
            if i >= len(ops): return []
            t = ops[i]
            t = re.sub(r'\b(op_sel|op_sel_hi|neg_lo|neg_hi|quad_perm):\[[^\]]*\]', '', t)
            return regs_of(t)
        if op.endswith(':') or op.startswith('.'):
            self.kind = 'label'
        elif op == 's_nop':
            self.kind = 'nop'; self.nop = int(rest, 0) + 1
        elif op.startswith('v_mfma') or op.startswith('v_smfmac'):
            self.kind = 'mfma'
            self.passes = 8 if '32x32' in op else 4
            self.dst = R(0)
            if op.startswith('v_smfmac'):
                self.src = R(1) + R(2) + R(3); self.srcC = R(0)
            else:
                self.src = R(1) + R(2); self.srcC = R(3)
        elif op.startswith('v_'):
            self.kind = 'valu'
            if op.startswith('v_permlane') and 'swap' in op:
                self.dst = R(0) + R(1); self.src = R(0) + R(1)
            elif op.startswith('v_cmpx'):
                self.dst = [('s', 126), ('s', 127)] + R(0); self.src = sum((R(i) for i in range(1, len(ops))), [])
            elif re.match(r'v_(add|sub|subrev)_co_|v_addc_co|v_subb_co|v_div_scale', op):
                self.dst = R(0) + R(1); self.src = sum((R(i) for i in range(2, len(ops))), [])
            else:
                self.dst = R(0); self.src = sum((R(i) for i in range(1, len(ops))), [])
                if 'fmac' in op or self.dpp or op.startswith('v_writelane') or 'fmaak' in op: self.src += R(0)
                if op.startswith('v_cndmask') and len(ops) == 3: self.src += [('s', 106), ('s', 107)]
        elif op.startswith('ds_'):
            self.kind = 'ds'
            if op.startswith('ds_read') or 'permute' in op or 'swizzle' in op or '_rtn' in op:
                self.dst = R(0); self.src = sum((R(i) for i in range(1, len(ops))), [])
            else:
                self.src = sum((R(i) for i in range(len(ops))), [])
        elif op.startswith('buffer_') or op.startswith('global_'):
            self.kind = 'vmem'
            if '_load' in op or ('atomic' in op and op.startswith('global') and ' sc0' in rest):
                self.dst = R(0); self.src = sum((R(i) for i in range(1, len(ops))), [])
            else:
                self.src = sum((R(i) for i in range(len(ops))), [])
                if 'x3' in op or 'x4' in op:
                    self.wide = R(0) if op.startswith('buffer') else R(1)
        elif op.startswith('s_'):
            self.kind = 'salu'
        else:
            raise ValueError('unknown instr: ' + txt)

def need(p, c):
    n = 0
    pd, cs, cd = set(p.dst), set(c.src), set(c.dst)
    if p.kind == 'valu':
        vd = {r for r in pd if r[0] != 's'}
        sd = {r for r in pd if r[0] == 's'}
        if c.kind == 'mfma':
            if vd & (cs | set(c.srcC)): n = max(n, 2)
            if ('s', 126) in sd: n = max(n, 4)
        if c.kind == 'valu':
            if c.dpp and (vd & cs): n = max(n, 2)
            if c.dpp and ('s', 126) in sd: n = max(n, 5)
            if c.op.startswith('v_permlane') and (vd & cs): n = max(n, 2)
            if c.op.startswith('v_permlane') and ('s', 126) in sd: n = max(n, 4)
            if c.op.startswith(('v_readlane', 'v_readfirstlane')):
                if vd & cs: n = max(n, 1)
                if ('s', 126) in sd: n = max(n, 4)
            if c.op.startswith(('v_readlane', 'v_writelane')) and (sd & cs): n = max(n, 4)
            if sd & cs: n = max(n, 2)
            if c.op.startswith('v_div_fmas') and ('s', 106) in sd: n = max(n, 4)
            if p.op.startswith(TRANS) and (vd & cs): n = max(n, 1)
            if ('op_sel' in p.txt and not p.op.startswith('v_pk_') or 'sdwa' in p.op) and (vd & (cs | cd)): n = max(n, 1)
        if c.kind == 'vmem' and (sd & cs): n = max(n, 5)
    elif p.kind == 'mfma':
        big = p.passes + 4
        if c.kind == 'mfma':
            if pd & cs: n = max(n, big)
            cC = set(c.srcC)
            if pd & cC and not (p.dst == c.srcC and p.passes == c.passes): n = max(n, p.passes + 2)
            if (pd & cd) and not (pd & cC): n = max(n, p.passes + 2)
        elif c.kind in ('valu', 'ds', 'vmem'):
            if pd & (cs | cd): n = max(n, big)
            if c.kind == 'valu' and (set(p.srcC) & cd): n = max(n, p.passes - 1)
    elif p.kind == 'vmem' and p.wide:
        if set(p.wide) & cd: n = max(n, 2 if c.kind == 'valu' else 1)
    return n

class Asm:
    def __init__(self):
        self.L = []
        self.lds = []
        self.vm = []
    def __call__(self, s, tag=None):
        for line in s.split("\n"):
            line = line.strip()
            if not line or line.startswith(';'): continue
            self.L.append(line)
            op = line.split(None, 1)[0]
            if op.startswith('ds_'): self.lds.append(tag)
            elif op.startswith(('buffer_', 'global_')): self.vm.append(tag)
    def wait_lds(self, tag=None):
        if tag is None: n = 0
        else:
            idx = [i for i, t in enumerate(self.lds) if t == tag]
            if not idx: return
            n = len(self.lds) - 1 - idx[-1]
        n = min(n, 15)
        self.lds = self.lds[len(self.lds) - n:] if n else []
        self.L.append(f"s_waitcnt lgkmcnt({n})")
    def wait_vm(self, tag=None):
        if tag is None: n = 0
        else:
            idx = [i for i, t in enumerate(self.vm) if t == tag]
            if not idx: return
            n = len(self.vm) - 1 - idx[-1]
        n = min(n, 63)
        self.vm = self.vm[len(self.vm) - n:] if n else []
        self.L.append(f"s_waitcnt vmcnt({n})")
    def text(self, pad=True):
        if not pad: return "\n".join(self.L) + "\n"
        out, hist = [], []
        intext = True
        for line in self.L:
            if line.startswith('.section'): intext = False
            if line.startswith('.text'): intext = True
            if not intext or line.startswith(('.', ';')):
                out.append(line); continue
            c = Ins(line)
            if c.kind == 'label':
                out.append(line); continue
            def scan(first):
                req, dist, nk = 0, 0, first
                for p in reversed(hist):
                    n = need(p, c)
                    if n > dist: req = max(req, n - dist)
                    if p.kind == 'nop': dist += p.nop
                    elif p.kind == 'mfma' and nk in ('valu', 'mfma'): dist += 3 if p.op.startswith('v_smfmac') else 2
                    else: dist += 1
                    nk = p.kind
                    if dist > 14: break
                return req
            req = scan(c.kind)
            if req: req = scan('nop')
            if req:
                t = f"s_nop {req - 1}"
                out.append(t); hist.append(Ins(t))
            out.append(line); hist.append(c)
            hist = hist[-24:]
        return "\n".join(out) + "\n"

def header(A, name):
    A(".text")
    A(f".globl {name}")
    A(".p2align 8")
    A(f".type {name},@function")
    A(f"{name}:")

def kd(A, name, vgpr=256, agpr=0, sgpr=102):
    acc = (vgpr + 3) // 4 * 4
    A('.section .rodata,"a"')
    A(".p2align 6")
    A(f".amdhsa_kernel {name}")
    A(f".amdhsa_next_free_vgpr {acc + agpr}")
    A(f".amdhsa_next_free_sgpr {sgpr}")
    A(f".amdhsa_accum_offset {acc}")
    A(".amdhsa_group_segment_fixed_size 0")
    A(".amdhsa_kernarg_size 104")
    A(".amdhsa_user_sgpr_count 2")
    A(".amdhsa_user_sgpr_kernarg_segment_ptr 1")
    A(".amdhsa_system_sgpr_workgroup_id_x 1")
    A(".end_amdhsa_kernel")

def vr(b, n=1, k='v'):
    return f"{k}{b}" if n == 1 else f"{k}[{b}:{b+n-1}]"
```

```python
from asmlib import *
from layout import *
import struct

def f2u(x): return struct.unpack('<I', struct.pack('<f', x))[0]

vL16, vWL, vXP0, vXP1, vXP2, vXP3, vIdx, vXQw, vXQo, vXQ2, vXK2, vXOw, vInW, vInR, vPub, vFlag = range(16)
P   = 16
QA  = 48
KA  = 56
VA  = 64
KT  = 72
VT  = 80
PM  = 96
KV4 = 100
T   = 104
WV  = 144
X   = QA
sWS, sW = 8, 12
sXCC, sR, sWv, sN, sS = 16, 17, 18, 19, 20
sRingR, sRingW, sRingA = 21, 22, 23
sInW, sInR = 24, 32
sKT, sKM, sSpin, sFB = 34, 35, 36, 37
sMLo, sMHi, sMPub, sMFlag = 38, 40, 42, 44
sT0, sT1, sT2, sT3 = 46, 47, 48, 49
sPLo, sPHi, sScale, sL2E = 50, 51, 52, 53
sRow = 54
sFKT, sRingWb, sRingRb = 58, 60, 61
sKM_ = 64

QK_ORDER = [('q',0,0),('q',0,1),('k',0,0),('k',0,1),('q',1,0),('q',1,1),('k',1,0),('k',1,1)] + \
           [('q',s,t) for s in range(2,8) for t in range(2)] + [('k',s,t) for s in range(2,8) for t in range(2)]
V_ORDER = [('v',s,t) for s in range(8) for t in range(2)]
O_ORDER = [('o',k,2*u+t) for u in range(4) for k in range(2) for t in range(2)]
LDS_QK1 = [(QK_ORDER[i], b) for i, b in zip(range(5), (1,2,3,4,0))]
LDS_QK2 = [(QK_ORDER[i], b) for i, b in zip(range(18,23), (1,2,3,4,0))]
LDS_O1  = [(O_ORDER[i], b) for i, b in zip(range(5), (3,4,0,1,2))]
LDS_O2  = [(O_ORDER[i], b) for i, b in zip(range(13,16), (3,4,0))]
LDSF = LDS_QK1 + LDS_QK2 + LDS_O1 + LDS_O2
place = {}
for i, (f, b) in enumerate(LDSF): place[f] = ('l', i, b)
rest = [f for f in V_ORDER + QK_ORDER + O_ORDER if f not in place]
for i, f in enumerate(rest):
    place[f] = ('a', 8*i) if i < 32 else ('v', WV + 8*(i-32))
assert len(rest) == 46

def breg(f):
    p = place[f]
    if p[0] == 'l': return vr(T + 8*p[2], 8)
    return vr(p[1], 8, p[0])

def lds_fetch(A, f):
    _, i, b = place[f]
    A(f"ds_read_b128 {vr(T+8*b,4)}, v{vWL} offset:{i*2048}", tag=f)
    A(f"ds_read_b128 {vr(T+8*b+4,4)}, v{vWL} offset:{i*2048+1024}", tag=f)

def smf(A, f):
    X_, s, t = f
    if place[f][0] == 'l': A.wait_lds(f)
    if X_ == 'o':
        acc, a = P + 4*t, X + 8 + 4*s
    else:
        acc, a = {'q': QA, 'k': KA, 'v': VA}[X_] + 4*t, P + 4*s
    A(f"v_smfmac_f32_16x16x64_bf16 {vr(acc,4)}, {vr(a,4)}, {breg(f)}, v{vIdx}")

def put_frag(A, f, src):
    p = place[f]
    if p[0] == 'l':
        A(f"ds_write_b128 v{vWL}, {vr(src,4)} offset:{p[1]*2048}")
        A(f"ds_write_b128 v{vWL}, {vr(src+4,4)} offset:{p[1]*2048+1024}")
    elif p[0] == 'a':
        for q in range(8): A(f"v_accvgpr_write_b32 a{p[1]+q}, v{src+q}")

def srd(A, s, karg, nbytes):
    A(f"s_load_dwordx2 s[{s}:{s+1}], s[0:1], {karg}")
    A(f"s_mov_b32 s{s+2}, {nbytes}")
    A(f"s_mov_b32 s{s+3}, 0x00020000")
    A("s_waitcnt lgkmcnt(0)")

def team_setup(A, o):
    t0, t1, t2, l, g, c = 20, 21, 22, 23, 24, 25
    A(f"v_and_b32 v{l}, 63, v0")
    A(f"v_lshrrev_b32 v{g}, 4, v{l}")
    A(f"v_and_b32 v{c}, 15, v{l}")
    A(f"v_lshlrev_b32 v{vL16}, 4, v{l}")
    A(f"s_mul_i32 s{sT0}, s{sWv}, 36864")
    A(f"s_add_u32 s{sT0}, s{sT0}, 16384")
    A(f"v_add_u32 v{vWL}, s{sT0}, v{vL16}")
    A(f"s_lshl_b32 s{sT1}, s{sWv}, 10")
    A(f"v_add_u32 v{vXP0}, s{sT1}, v{vL16}")
    A(f"v_xor_b32 v{vXP1}, 0x400, v{vXP0}")
    A(f"v_xor_b32 v{vXP2}, 0x800, v{vXP0}")
    A(f"v_xor_b32 v{vXP3}, 0xc00, v{vXP0}")
    A(f"v_bfe_u32 v{t0}, v{c}, 1, 1")
    A(f"v_mul_u32_u24 v{t0}, 0xAAAA, v{t0}")
    A(f"v_add_u32 v{vIdx}, 0x4444, v{t0}")
    A(f"s_add_u32 s{sT2}, s{sT1}, 8192")
    A(f"v_lshrrev_b32 v{t0}, 2, v{c}")
    A(f"v_lshlrev_b32 v{t0}, 8, v{t0}")
    A(f"v_lshl_add_u32 v{t0}, v{g}, 5, v{t0}")
    A(f"v_and_b32 v{t1}, 3, v{c}")
    A(f"v_lshl_add_u32 v{t0}, v{t1}, 2, v{t0}")
    A(f"v_add_u32 v{vXQw}, s{sT2}, v{t0}")
    A(f"v_and_b32 v{t1}, 7, v{c}")
    A(f"v_lshlrev_b32 v{t1}, 4, v{t1}")
    A(f"v_lshl_add_u32 v{t0}, v{g}, 8, v{t1}")
    A(f"v_add_u32 v{vXQo}, s{sT2}, v{t0}")
    A(f"v_lshrrev_b32 v{t2}, 3, v{c}")
    A(f"v_lshl_add_u32 v{t0}, v{t2}, 10, v{t0}")
    A(f"v_add_u32 v{vXQ2}, 8192, v{t0}")
    A(f"v_lshl_add_u32 v{t0}, v{g}, 12, v{t1}")
    A(f"v_lshl_add_u32 v{vInW}, v{t2}, 14, v{t0}")
    A(f"v_bfe_u32 v{t0}, v{c}, 1, 1")
    A(f"v_lshlrev_b32 v{t0}, 10, v{t0}")
    A(f"v_lshl_add_u32 v{t0}, v{g}, 8, v{t0}")
    A(f"v_lshrrev_b32 v{t1}, 2, v{c}")
    A(f"v_lshl_add_u32 v{t0}, v{t1}, 5, v{t0}")
    A(f"v_and_b32 v{t1}, 1, v{c}")
    A(f"v_lshl_add_u32 v{t0}, v{t1}, 4, v{t0}")
    A(f"v_add_u32 v{vXK2}, {8192+128}, v{t0}")
    A(f"v_lshlrev_b32 v{t0}, 4, v{t1}")
    A(f"v_lshl_add_u32 v{t0}, v{t2}, 11, v{t0}")
    A(f"v_bfe_u32 v{t1}, v{c}, 1, 2")
    A(f"v_lshl_add_u32 v{t0}, v{t1}, 6, v{t0}")
    A(f"v_and_b32 v{t1}, 1, v{g}")
    A(f"v_lshl_add_u32 v{t0}, v{t1}, 5, v{t0}")
    A(f"v_lshrrev_b32 v{t2}, 1, v{g}")
    A(f"v_lshl_add_u32 v{t0}, v{t2}, 8, v{t0}")
    A(f"s_lshl_b32 s{sT3}, s{sWv}, 9")
    A(f"v_add_u32 v{vXOw}, s{sT3}, v{t0}")
    A(f"v_lshlrev_b32 v{t0}, 6, v{t1}")
    A(f"v_lshl_add_u32 v{t0}, v{t2}, 9, v{t0}")
    A(f"v_lshrrev_b32 v{vInR}, 2, v{c}")
    A(f"v_lshl_add_u32 v{t0}, v{vInR}, 7, v{t0}")
    A(f"v_and_b32 v{vPub}, 3, v{c}")
    A(f"v_lshl_add_u32 v{vInR}, v{vPub}, 4, v{t0}")
    A(f"v_lshlrev_b32 v26, 4, v{vPub}")
    A(f"v_lshl_add_u32 v26, v{t1}, 6, v26")
    A(f"v_lshl_add_u32 v26, v{t2}, 10, v26")
    A(f"v_lshlrev_b32 v{vPub}, 2, v{vPub}")
    A(f"v_lshl_add_u32 v{vPub}, v{t1}, 5, v{vPub}")
    A(f"v_lshl_add_u32 v{vPub}, v{t2}, 4, v{vPub}")
    A(f"v_lshlrev_b32 v27, 20, v{t2}")
    A(f"v_lshl_add_u32 v27, v{t1}, 17, v27")
    A(f"v_lshl_add_u32 v27, v{c}, 2, v27")
    A(f"v_lshlrev_b32 v28, 14, v{t2}")
    A(f"v_lshl_add_u32 v28, v{t1}, 12, v28")
    A(f"v_lshl_add_u32 v28, v{c}, 4, v28")
    A(f"s_mov_b32 s{sMLo}, 0x00ff00ff\ns_mov_b32 s{sMLo+1}, 0x00ff00ff")
    A(f"s_mov_b32 s{sMHi}, 0xff00ff00\ns_mov_b32 s{sMHi+1}, 0xff00ff00")
    A(f"s_mov_b32 s{sMPub}, 0x000f000f\ns_mov_b32 s{sMPub+1}, 0x000f000f")
    A(f"s_cmp_eq_u32 s{sWv}, 0")
    A(f"s_cselect_b32 s{sMFlag}, 1, 0\ns_mov_b32 s{sMFlag+1}, 0")
    A(f"s_mov_b32 s{sScale}, {f2u(128**-0.5)}")
    A(f"s_mov_b32 s{sL2E}, {f2u(1.4426950408889634 * (1.0 if o['mimic'] else 128**-0.5))}")
    A(f"s_lshl_b32 s{sT0}, s{sWv}, 17")
    A(f"s_lshl_b32 s{sT2}, s{sR}, 7")
    A(f"s_add_u32 s{sT0}, s{sT0}, s{sT2}")
    for par in range(2):
        for u in range(4):
            A(f"s_add_u32 s{sInW+4*par+u}, s{sT0}, {INBOX + par*524288 + u*32768}")
    A(f"s_lshl_b32 s{sFKT}, s{sR}, 10")
    A(f"s_lshl_b32 s{sT0}, s{sWv}, 8")
    A(f"s_add_u32 s{sFKT}, s{sFKT}, s{sT0}")
    A(f"s_add_u32 s{sFKT}, s{sFKT}, {F_KT}")
    A(f"v_lshlrev_b32 v{vFlag}, 2, v{l}")
    A(f"s_lshl_b32 s{sT0}, s{sR}, 14")
    A(f"s_lshl_b32 s{sT2}, s{sWv}, 12")
    A(f"s_add_u32 s{sT0}, s{sT0}, s{sT2}")
    A(f"s_add_u32 s{sInR}, s{sT0}, {INBOX}")
    A(f"s_add_u32 s{sInR+1}, s{sT0}, {INBOX+524288}")
    A(f"s_add_u32 s{sKT}, s{sT0}, {KTV}")
    A(f"s_lshl_b32 s{sT0}, s{sR}, 12")
    A(f"s_add_u32 s{sT0}, s{sT0}, s{sT1}")
    A(f"s_add_u32 s{sKM}, s{sT0}, {KMVM - 131072}")
    A(f"s_lshl_b32 s{sRingRb}, s{sWv}, 11")
    A(f"s_and_b32 s{sT0}, s{sR}, 7")
    A(f"s_lshl_b32 s{sT0}, s{sT0}, 10")
    A(f"s_lshr_b32 s{sT2}, s{sR}, 3")
    A(f"s_lshl_b32 s{sT2}, s{sT2}, 8")
    A(f"s_add_u32 s{sT0}, s{sT0}, s{sT2}")
    A(f"s_lshl_b32 s{sT3}, s{sWv}, 6")
    A(f"s_add_u32 s{sRingWb}, s{sT0}, s{sT3}")
    assert RING == 0
    A(f"s_lshl_b32 s{sT0}, s{sR}, 8")
    A(f"s_add_u32 s{sT0}, s{sT0}, s{sT3}")
    for a in range(4):
        A(f"s_xor_b32 s{sT3}, s{sWv}, {a}")
        A(f"s_lshl_b32 s{sT3}, s{sT3}, 14")
        A(f"s_add_u32 s{sRow+a}, s{sT3}, s{sT0}")
    srd(A, sW, 8, 8192)
    A(f"s_and_b32 s{sT0}, s{sR}, 1")
    A(f"s_lshl_b32 s{sT0}, s{sT0}, 7")
    A(f"s_bfe_u32 s{sT3}, s{sR}, 0x20001")
    A(f"s_lshl_b32 s{sT3}, s{sT3}, 2")
    A(f"s_add_u32 s{sT0}, s{sT0}, s{sT3}")
    A(f"s_add_u32 s{sT0}, s{sT0}, s{sT2}")
    A(f"s_add_u32 s{sT0}, s{sT0}, s{sRingRb}")
    A(f"buffer_load_dword v29, v26, s[{sW}:{sW+3}], s{sT0} offen")
    for q in range(4): A(f"v_mov_b32 v{32+q}, -1")
    for par in range(2):
        for n in range(4):
            A(f"buffer_store_dwordx4 v[32:35], v{vL16}, s[{sWS}:{sWS+3}], s{sInR+par} offen offset:{n*1024}")
    for sl in range(1, 4):
        A(f"s_add_u32 s{sT0}, s{sRingWb}, {sl*8192}")
        A(f"buffer_store_dword v32, v{vPub}, s[{sWS}:{sWS+3}], s{sT0} offen")
    A.wait_vm()
    A(f"buffer_store_dword v29, v{vPub}, s[{sWS}:{sWS+3}], s{sRingWb} offen")
    A.wait_vm()
    A("s_barrier")
    A(f"s_mov_b64 exec, s[{sMFlag}:{sMFlag+1}]")
    A(f"v_mov_b32 v30, 1\nv_mov_b32 v31, 64")
    A(f"s_cbranch_execz L_t_noarr")
    A(f"global_atomic_add v31, v30, s[4:5] sc1")
    A("L_t_noarr:")
    A("s_mov_b64 exec, -1")

def team_weights(A, o):
    batches = [(X_, s) for X_ in 'qkv' for s in range(8)]
    NB = 3
    def issue(b):
        X_, s = batches[b]
        if s == 0: srd(A, sW, {'q': 16, 'k': 24, 'v': 32}[X_], 4194304)
        for ib in range(16):
            d = 256*(ib>>3) + 32*((ib>>1)&1) + 8*((ib>>2)&1) + (ib&1) + 64*(s&1)
            A(f"s_add_u32 s{sT0}, s{sRow+(s>>1)}, {d*8192}")
            A(f"buffer_load_dword v{32+16*(b%4)+ib}, v27, s[{sW}:{sW+3}], s{sT0} offen", tag=('w', b))
    for b in range(NB): issue(b)
    for b in range(len(batches)):
        X_, s = batches[b]
        A.wait_vm(('w', b))
        if b + NB < len(batches): issue(b + NB)
        for t in range(2):
            f = (X_, s, t)
            dst = place[f][1] if place[f][0] == 'v' else 128 + 8*t
            for q in range(8):
                A(f"v_perm_b32 v{dst+q}, v{32+16*(b%4)+2*q+1}, v{32+16*(b%4)+2*q}, s{sPHi if t else sPLo}")
            put_frag(A, f, dst)
    srd(A, sW, 40, 4194304)
    A(f"s_lshl_b32 s{sT1}, s{sR}, 17")
    A(f"s_lshl_b32 s{sT2}, s{sWv}, 8")
    A(f"s_add_u32 s{sT1}, s{sT1}, s{sT2}")
    for k in range(2):
        for ib in range(16):
            e = 64*k + 32*(ib>>3) + 8*((ib>>1)&1) + 2*((ib>>2)&1) + (ib&1)
            A(f"s_add_u32 s{sT0}, s{sT1}, {e*1024}")
            A(f"buffer_load_dwordx4 {vr(32+4*ib,4)}, v28, s[{sW}:{sW+3}], s{sT0} offen")
        A.wait_vm()
        for t in range(8):
            f = ('o', k, t)
            dst = place[f][1] if place[f][0] == 'v' else 128 + 8*(t&1)
            for q in range(8):
                A(f"v_perm_b32 v{dst+q}, v{32+4*(2*q+1)+(t>>1)}, v{32+4*(2*q)+(t>>1)}, s{sPHi if t&1 else sPLo}")
            put_frag(A, f, dst)
        A.wait_lds()

def retry(name, back, ok):
    return (f"{name}:\ns_sub_u32 s{sSpin}, s{sSpin}, 1\ns_cbranch_scc0 {back}\ns_mov_b32 s{sSpin}, 0\ns_branch {ok}")

def wait_cnt(A, OOL, name, off, n, va=30):
    A(f"v_mov_b32 v{va+1}, {off}")
    A(f"{name}:")
    A(f"global_load_dword v{va}, v{va+1}, s[4:5] sc1")
    A.wait_vm()
    A(f"v_cmp_gt_u32 vcc, {n}, v{va}")
    A(f"s_cbranch_vccnz {name}_re")
    OOL.append(retry(f"{name}_re", name, f"{name}_ok"))
    A(f"{name}_ok:")

def zero64(A, r, n, val='0'):
    for i in range(0, n, 2): A(f"v_mov_b64 {vr(r+i,2)}, {val}")

def phaseA_prep(A):
    zero64(A, QA, 20 - 4)
    zero64(A, VA, 4, '-1')
    zero64(A, VA+4, 4)

def team_step(A, o, par, OOL):
    ws = f"s[{sWS}:{sWS+3}]"
    def ST(i):
        if o.get('prof') and par == 0: A(f"s_memtime s[{76+2*i}:{77+2*i}]")
    L = f"L_t{par}"
    vt_cur, vt_nxt = VT + 8*par, VT + 8*(par^1)
    tmp = PM
    ST(0)
    A(f"{L}_ring:")
    A.vm = []
    A(f"buffer_load_dwordx4 {vr(P,4)}, v{vL16}, {ws}, s{sRingR} offen sc1")
    A(f"buffer_load_dwordx4 {vr(P+4,4)}, v{vL16}, {ws}, s{sRingR} offen offset:1024 sc1")
    A.wait_vm()
    A(f"ds_write_b128 v{vXP0}, {vr(P,4)}", tag='xpw')
    A(f"ds_write_b128 v{vXP0}, {vr(P+4,4)} offset:4096", tag='xpw')
    A(f"v_max3_u32 v{tmp}, v{P}, v{P+1}, v{P+2}")
    A(f"v_max3_u32 v{tmp}, v{tmp}, v{P+3}, v{P+4}")
    A(f"v_max3_u32 v{tmp}, v{tmp}, v{P+5}, v{P+6}")
    A(f"v_max_u32 v{tmp}, v{tmp}, v{P+7}")
    A(f"v_cmp_eq_u32 vcc, -1, v{tmp}")
    A(f"s_cbranch_vccnz {L}_ring_re")
    OOL.append(retry(f"{L}_ring_re", f"{L}_ring", f"{L}_ring_ok"))
    A(f"{L}_ring_ok:")
    ST(1)
    A.wait_lds()
    A("s_barrier")
    ST(2)
    for s in range(2, 8):
        A(f"ds_read_b128 {vr(P+4*s,4)}, v{vXP0+(s>>1)} offset:{(s&1)*4096}", tag=('xp', s))
    side = {}
    def at(pos, fn): side.setdefault(pos, []).append(fn)
    for i, (f, b) in enumerate(LDS_QK2): at(i, lambda f=f: lds_fetch(A, f))
    def flagchk():
        A(f"{L}_fl:")
        A(f"s_bitcmp1_b64 s[{sKM_}:{sKM_+1}], s{sFB}")
        A(f"s_cbranch_scc0 {L}_fl_re")
        OOL.append(f"{L}_fl_re:\nbuffer_load_dword v{tmp}, v{vFlag}, {ws}, s{sFKT} offen sc1\ns_waitcnt vmcnt(0)\n" +
                   f"v_cmp_ne_u32 s[{sKM_}:{sKM_+1}], 0, v{tmp}\ns_nop 4\n" + retry(f"{L}_fl_re2", f"{L}_fl", f"{L}_fl_ok"))
        A(f"{L}_fl_ok:")
    at(0, flagchk)
    at(1, lambda: A(f"buffer_load_dwordx4 {vr(vt_nxt,4)}, v{vL16}, {ws}, s{sKT} offen offset:2048 sc1"))
    at(2, lambda: A(f"buffer_load_dwordx4 {vr(vt_nxt+4,4)}, v{vL16}, {ws}, s{sKT} offen offset:3072 sc1"))
    def nextflag():
        A(f"s_add_u32 s{sT0}, s{sS}, 2")
        A(f"s_min_u32 s{sFB}, s{sT0}, 63")
    at(3, nextflag)
    at(4, lambda: A(f"buffer_store_dwordx4 {vr(KV4,4)}, v{vL16}, {ws}, s{sKM} offen sc1\ns_add_u32 s{sKM}, s{sKM}, 131072"))
    for n in range(4):
        at(6+n, lambda n=n: A(f"buffer_store_dwordx4 {vr(VA,4)}, v{vL16}, {ws}, s{sInR+(par^1)} offen offset:{n*1024}"))
    at(10, lambda: A(f"buffer_store_dword v{VA}, v{vPub}, {ws}, s{sRingA} offen"))
    at(12, lambda: A(f"v_mov_b64 {vr(VA,2)}, 0"))
    at(13, lambda: A(f"v_mov_b64 {vr(VA+2,2)}, 0"))
    def ringaddr():
        A(f"s_mov_b32 s{sRingA}, s{sRingW}")
    qt = T + 16
    def qx():
        A(f"v_pk_add_f32 {vr(QA,2)}, {vr(QA,2)}, {vr(QA+2,2)}")
        A(f"v_pk_add_f32 {vr(QA+4,2)}, {vr(QA+4,2)}, {vr(QA+6,2)}")
        A(f"v_cvt_pk_bf16_f32 v{qt}, v{QA}, v{QA+4}")
        A(f"v_cvt_pk_bf16_f32 v{qt+1}, v{QA+1}, v{QA+5}")
        A(f"ds_write2_b32 v{vXQw}, v{qt}, v{qt+1} offset0:0 offset1:4")
        A(f"ds_read_b128 {vr(T,4)}, v{vXQo}", tag='qo')
    at(22, qx)
    for i, (f, b) in enumerate(LDS_O1[:2]): at(23+i, lambda f=f: lds_fetch(A, f))
    for pos, f in enumerate(QK_ORDER):
        if f[1] >= 2: A.wait_lds(('xp', f[1]))
        smf(A, f)
        for fn in side.get(pos, []): fn()
    ST(3)
    A.wait_lds('qo')
    A(f"v_mfma_f32_16x16x32_bf16 {vr(QA,4)}, {vr(KT,4)}, {vr(T,4)}, 0")
    A(f"v_mfma_f32_16x16x32_bf16 {vr(QA+4,4)}, {vr(KT+4,4)}, {vr(T,4)}, 0")
    A(f"buffer_load_dwordx4 {vr(KT,4)}, v{vL16}, {ws}, s{sKT} offen sc1")
    A(f"buffer_load_dwordx4 {vr(KT+4,4)}, v{vL16}, {ws}, s{sKT} offen offset:1024 sc1")
    vq = list(V_ORDER)
    def V(n=1):
        for _ in range(n):
            if vq: smf(A, vq.pop(0))
    V(1)
    A(f"v_pk_add_f32 {vr(KA,2)}, {vr(KA,2)}, {vr(KA+2,2)}")
    A(f"v_pk_add_f32 {vr(KA+4,2)}, {vr(KA+4,2)}, {vr(KA+6,2)}")
    A(f"v_cvt_pk_bf16_f32 v{KV4}, v{KA}, v{KA+4}")
    A(f"v_cvt_pk_bf16_f32 v{KV4+1}, v{KA+1}, v{KA+5}")
    A(f"ds_write2_b32 v{vXQw}, v{KV4}, v{KV4+1} offset0:32 offset1:36")
    A(f"s_mov_b64 exec, s[{sMLo}:{sMLo+1}]")
    A(f"ds_write_b128 v{vXP0}, {vr(QA,4)} offset:12288")
    A(f"s_mov_b64 exec, s[{sMHi}:{sMHi+1}]")
    A(f"ds_write_b128 v{vXP0}, {vr(QA+4,4)} offset:12288")
    A("s_mov_b64 exec, -1")
    V(2)
    A(f"s_cmp_lt_u32 s{sS}, 62")
    A(f"s_cselect_b32 s{sT0}, 524288, 0")
    A(f"s_add_u32 s{sKT}, s{sKT}, s{sT0}")
    A.wait_lds()
    ST(4)
    A("s_barrier")
    ST(5)
    q2, k2, SD = T, T+8, T+16
    for n in range(2):
        A(f"ds_read_b128 {vr(k2+4*n,4)}, v{vXK2} offset:{n*2048}", tag=('qk', n))
        A(f"ds_read_b128 {vr(q2+4*n,4)}, v{vXQ2} offset:{n*2048}", tag=('qk', n))
    for n in range(4):
        A(f"ds_read_b128 {vr(X+4*n,4)}, v{vL16} offset:{12288+n*1024}", tag=('xs', n))
    V(6)
    A.wait_lds(('qk', 0))
    A(f"v_mfma_f32_16x16x32_bf16 {vr(SD,4)}, {vr(k2,4)}, {vr(q2,4)}, 0")
    A.wait_lds(('qk', 1))
    A(f"v_mfma_f32_16x16x32_bf16 {vr(SD,4)}, {vr(k2+4,4)}, {vr(q2+4,4)}, {vr(SD,4)}")
    for f, b in LDS_O1[2:4]: lds_fetch(A, f)
    V(2)
    A.wait_lds(('xs', 1))
    A(f"v_pk_add_f32 {vr(X,2)}, {vr(X,2)}, {vr(X+4,2)}")
    A(f"v_pk_add_f32 {vr(X+2,2)}, {vr(X+2,2)}, {vr(X+6,2)}")
    V(1)
    A.wait_lds(('xs', 3))
    A(f"v_pk_add_f32 {vr(X+8,2)}, {vr(X+8,2)}, {vr(X+12,2)}")
    A(f"v_pk_add_f32 {vr(X+10,2)}, {vr(X+10,2)}, {vr(X+14,2)}")
    V(1)
    A(f"v_pk_add_f32 {vr(X,2)}, {vr(X,2)}, {vr(X+8,2)}")
    A(f"v_pk_add_f32 {vr(X+2,2)}, {vr(X+2,2)}, {vr(X+10,2)}")
    sm, mx, t1, t2, PT = X+4, X+5, X+6, X+7, X+8
    A(f"v_add_f32_dpp v{sm}, v{SD+2}, v{SD} row_ror:8 row_mask:0xf bank_mask:0x3")
    A(f"v_add_f32_dpp v{sm}, v{SD+1}, v{SD+3} row_ror:8 row_mask:0xf bank_mask:0xc")
    lds_fetch(A, LDS_O1[4][0])
    V(1)
    if o['mimic']:
        for i in range(5): A(f"v_cvt_pk_bf16_f32 v{X+i}, 0, v{X+i}")
        V(1)
        for i in range(5): A(f"v_mul_f32 v{X+i}, s{sScale}, v{X+i}")
        for i in range(5): A(f"v_cvt_pk_bf16_f32 v{X+i}, 0, v{X+i}")
    V(16)
    A(f"v_max3_f32 v{mx}, v{X}, v{X+1}, v{X+2}")
    A(f"v_max3_f32 v{mx}, v{mx}, v{X+3}, v{sm}")
    A(f"v_max_f32_dpp v{mx}, v{mx}, v{mx} row_ror:8 row_mask:0xf bank_mask:0xf")
    for sw in ('16', '32'):
        A(f"v_mov_b32 v{t1}, v{mx}")
        A(f"v_permlane{sw}_swap_b32 v{t1}, v{mx}")
        A(f"v_max_f32 v{mx}, v{mx}, v{t1}")
    A(f"v_mul_f32 v{mx}, s{sL2E}, v{mx}")
    for i in range(5): A(f"v_fma_f32 v{X+i}, v{X+i}, s{sL2E}, -v{mx}")
    for i in range(5): A(f"v_exp_f32 v{X+i}, v{X+i}")
    A(f"v_pk_add_f32 {vr(VA,2)}, {vr(VA,2)}, {vr(VA+2,2)}")
    A(f"v_pk_add_f32 {vr(VA+4,2)}, {vr(VA+4,2)}, {vr(VA+6,2)}")
    A(f"v_cvt_pk_bf16_f32 v{PT}, v{X}, v{X+1}")
    A(f"v_cvt_pk_bf16_f32 v{PT+1}, v{X+2}, v{X+3}")
    A(f"v_mov_b32_dpp v{t1}, v{sm} row_ror:8 row_mask:0xf bank_mask:0xf")
    A(f"v_cvt_pk_bf16_f32 v{KV4+2}, v{VA}, v{VA+1}")
    A(f"v_mov_b32_dpp v{PT+2}, v{PT} row_ror:8 row_mask:0xf bank_mask:0xf")
    A(f"v_mov_b32_dpp v{PT+3}, v{PT+1} row_ror:8 row_mask:0xf bank_mask:0xf")
    A(f"v_cvt_pk_bf16_f32 v{KV4+3}, v{VA+4}, v{VA+5}")
    if par == 1:
        A(f"s_cmp_eq_u32 s{sS}, 63")
        A(f"s_cbranch_scc1 L_t_tail")
    A(f"v_cvt_pk_bf16_f32 v{PM}, v{sm}, v{t1}")
    A(f"v_mfma_f32_16x16x32_bf16 {vr(VA,4)}, {vr(vt_cur,4)}, {vr(PT,4)}, 0")
    A(f"v_cvt_pk_bf16_f32 v{PM+3}, v{sm}, v{t1}")
    A(f"v_add_f32 v{t2}, v{X}, v{X+1}")
    A(f"v_mfma_f32_16x16x32_bf16 {vr(VA+4,4)}, {vr(vt_cur+4,4)}, {vr(PT,4)}, 0")
    A(f"v_add_f32 v{X+2}, v{X+2}, v{X+3}")
    A(f"v_add_f32 v{t2}, v{t2}, v{sm}")
    A(f"v_mfma_f32_16x16x16_bf16 {vr(VA,4)}, {vr(KV4+2,2)}, {vr(PM,2)}, {vr(VA,4)}")
    A(f"v_add_f32 v{t2}, v{t2}, v{X+2}")
    A(f"v_mfma_f32_16x16x16_bf16 {vr(VA+4,4)}, {vr(KV4+2,2)}, {vr(PM+2,2)}, {vr(VA+4,4)}")
    A(f"v_add_f32_dpp v{t2}, v{t2}, v{t2} row_ror:8 row_mask:0xf bank_mask:0xf")
    for sw in ('16', '32'):
        A(f"v_mov_b32 v{t1}, v{t2}")
        A(f"v_permlane{sw}_swap_b32 v{t1}, v{t2}")
        A(f"v_add_f32 v{t2}, v{t2}, v{t1}")
    A(f"v_rcp_f32 v{t1}, v{t2}")
    for i in range(0, 8, 2):
        A(f"v_pk_mul_f32 {vr(VA+i,2)}, {vr(VA+i,2)}, {vr(t1,2)} op_sel_hi:[1,0]")
    for r in range(4): A(f"v_cvt_pk_bf16_f32 v{X+r}, v{VA+r}, v{VA+4+r}")
    A(f"ds_write_b128 v{vXOw}, {vr(X,4)}")
    zero64(A, P, 16)
    A.wait_lds()
    ST(6)
    A("s_barrier")
    ST(7)
    A(f"ds_read_b128 {vr(X+8,4)}, v{vL16}", tag='o0')
    A(f"ds_read_b128 {vr(X+12,4)}, v{vL16} offset:1024", tag='o1')
    zero64(A, P+16, 16)
    A(f"s_and_b32 s{sT0}, s{sS}, 3")
    A(f"s_lshl_b32 s{sT0}, s{sT0}, 13")
    A(f"s_add_u32 s{sRingA}, s{sT0}, s{sRingWb}")
    A(f"s_add_u32 s{sS}, s{sS}, 1")
    A(f"s_and_b32 s{sT0}, s{sS}, 3")
    A(f"s_lshl_b32 s{sT0}, s{sT0}, 13")
    A(f"s_add_u32 s{sRingW}, s{sT0}, s{sRingWb}")
    A(f"s_add_u32 s{sRingR}, s{sT0}, s{sRingRb}")
    side = {}
    for i, (f, b) in enumerate(LDS_O2): at(i, lambda f=f: lds_fetch(A, f))
    at(3, lambda: lds_fetch(A, LDS_QK1[0][0]))
    at(4, lambda: lds_fetch(A, LDS_QK1[1][0]))
    def fin(u):
        d = P + 8*u
        A(f"v_pk_add_f32 {vr(d,2)}, {vr(d,2)}, {vr(d+2,2)}")
        A(f"v_pk_add_f32 {vr(d+2,2)}, {vr(d+4,2)}, {vr(d+6,2)}")
        A(f"buffer_store_dwordx4 {vr(d,4)}, v{vInW}, {ws}, s{sInW+4*par+u} offen")
    for u in range(3): at(4*u+6, lambda u=u: fin(u))
    for pos, f in enumerate(O_ORDER):
        A.wait_lds('o%d' % f[1])
        smf(A, f)
        for fn in side.get(pos, []): fn()
    for f, b in LDS_QK1[2:]: lds_fetch(A, f)
    fin(3)
    phaseA_prep(A)
    R = P
    ST(8)
    A(f"{L}_in:")
    A.vm = []
    for n in range(4):
        A(f"buffer_load_dwordx4 {vr(R+4*n,4)}, v{vInR}, {ws}, s{sInR+par} offen offset:{n*1024} sc1", tag=n)
    A.wait_vm(1)
    ST(10)
    A(f"v_pk_add_f32 {vr(R,2)}, {vr(R,2)}, {vr(R+4,2)}")
    A(f"v_pk_add_f32 {vr(R+2,2)}, {vr(R+2,2)}, {vr(R+6,2)}")
    A.wait_vm(2)
    A(f"v_pk_add_f32 {vr(R,2)}, {vr(R,2)}, {vr(R+8,2)}")
    A(f"v_pk_add_f32 {vr(R+2,2)}, {vr(R+2,2)}, {vr(R+10,2)}")
    A.wait_vm(3)
    A(f"v_pk_add_f32 {vr(R,2)}, {vr(R,2)}, {vr(R+12,2)}")
    A(f"v_pk_add_f32 {vr(R+2,2)}, {vr(R+2,2)}, {vr(R+14,2)}")
    A(f"v_permlane32_swap_b32 v{R}, v{R+1}")
    A(f"v_permlane32_swap_b32 v{R+2}, v{R+3}")
    A(f"v_add_f32 v{R}, v{R}, v{R+1}")
    A(f"v_add_f32 v{R+2}, v{R+2}, v{R+3}")
    for ro in (8, 4):
        A(f"v_add_f32_dpp v{R}, v{R}, v{R} row_ror:{ro} row_mask:0xf bank_mask:0xf")
        A(f"v_add_f32_dpp v{R+2}, v{R+2}, v{R+2} row_ror:{ro} row_mask:0xf bank_mask:0xf")
    A(f"v_cmp_u_f32 vcc, v{R}, v{R+2}")
    A(f"v_cvt_pk_bf16_f32 v{R+16}, v{R}, v{R+2}")
    A(f"s_cbranch_vccnz {L}_in_re")
    OOL.append(retry(f"{L}_in_re", f"{L}_in", f"{L}_in_ok"))
    A(f"{L}_in_ok:")
    ST(9)
    A(f"s_mov_b64 exec, s[{sMPub}:{sMPub+1}]")
    A(f"buffer_store_dword v{R+16}, v{vPub}, {ws}, s{sRingW} offen")
    A("s_mov_b64 exec, -1")

def emit_team(A, o):
    ws = f"s[{sWS}:{sWS+3}]"
    OOL = []
    team_setup(A, o)
    team_weights(A, o)
    if o.get('time'): A("s_memtime s[70:71]")
    wait_cnt(A, OOL, "L_t_arm", D_ARM, 32)
    wait_cnt(A, OOL, "L_t_cx", D_CX, N_CX)
    A("L_t_f0:")
    A(f"buffer_load_dword v30, v{vFlag}, {ws}, s{sFKT} offen sc1")
    A("s_waitcnt vmcnt(0)")
    A(f"v_cmp_ne_u32 s[{sKM_}:{sKM_+1}], 0, v30")
    A("s_nop 4")
    A(f"s_bitcmp1_b64 s[{sKM_}:{sKM_+1}], 0")
    A("s_cbranch_scc0 L_t_f0_re")
    OOL.append(retry("L_t_f0_re", "L_t_f0", "L_t_f0_ok"))
    A("L_t_f0_ok:")
    for n in range(2):
        A(f"buffer_load_dwordx4 {vr(KT+4*n,4)}, v{vL16}, {ws}, s{sKT} offen offset:{n*1024} sc1")
        A(f"buffer_load_dwordx4 {vr(VT+4*n,4)}, v{vL16}, {ws}, s{sKT} offen offset:{2048+n*1024} sc1")
    A(f"s_add_u32 s{sKT}, s{sKT}, 524288")
    A(f"s_mov_b32 s{sFB}, 1")
    A(f"s_mov_b32 s{sS}, 0")
    A(f"s_mov_b32 s{sRingR}, s{sRingRb}")
    A(f"s_add_u32 s{sRingA}, s{sRingWb}, {3*8192}")
    A(f"v_mov_b32 v{PM+1}, 0\nv_mov_b32 v{PM+2}, 0")
    zero64(A, KV4, 4)
    A.lds = []
    for f, b in LDS_QK1: lds_fetch(A, f)
    phaseA_prep(A)
    if o.get('time'): A("s_memtime s[72:73]")
    team_step(A, o, 0, OOL)
    team_step(A, o, 1, OOL)
    A("s_branch L_t0_ring")
    A("L_t_tail:")
    A(f"buffer_store_dwordx4 {vr(KV4,4)}, v{vL16}, {ws}, s{sKM} offen sc1")
    A("s_waitcnt vmcnt(0) lgkmcnt(0)")
    if o.get('prof'):
        A("s_mov_b64 exec, 1")
        A(f"s_lshl_b32 s{sT0}, s{sR}, 8\ns_lshl_b32 s{sT1}, s{sWv}, 6\ns_add_u32 s{sT0}, s{sT0}, s{sT1}\ns_add_u32 s{sT0}, s{sT0}, {PROF}")
        for i in range(11):
            A(f"v_mov_b32 v32, s{76+2*i}")
            A(f"buffer_store_dword v32, off, {ws}, s{sT0} offset:{4*i}")
            A("s_waitcnt vmcnt(0)")
    if o.get('time'):
        A(f"s_mov_b64 exec, s[{sMFlag}:{sMFlag+1}]")
        A("s_memtime s[74:75]")
        A("s_waitcnt lgkmcnt(0)")
        A(f"s_cmp_lg_u32 s{sR}, 0\ns_cbranch_scc1 L_t_end")
        A("s_sub_u32 s70, s70, s68\ns_sub_u32 s72, s72, s68\ns_sub_u32 s74, s74, s68")
        A(f"v_mov_b32 v32, s70\nv_mov_b32 v33, s72\nv_mov_b32 v34, s74\nv_mov_b32 v35, s{sSpin}\nv_mov_b32 v31, 96")
        A("global_store_dwordx4 v31, v[32:35], s[4:5]")
        A("L_t_end:")
    A("s_endpgm")
    for t in OOL: A(t)

def prologue(A, o):
    if o.get('time'): A("s_memtime s[68:69]")
    A("s_load_dwordx2 s[4:5], s[0:1], 88")
    A(f"s_load_dwordx2 s[{sWS}:{sWS+1}], s[0:1], 96")
    A(f"s_mov_b32 s{sWS+2}, {WS_BYTES}")
    A(f"s_mov_b32 s{sWS+3}, 0x00020000")
    A(f"s_getreg_b32 s{sXCC}, hwreg(HW_REG_XCC_ID, 0, 4)")
    A(f"s_and_b32 s{sXCC}, s{sXCC}, 7")
    A("v_lshrrev_b32 v1, 6, v0")
    A(f"v_readfirstlane_b32 s{sWv}, v1")
    A(f"s_lshl_b32 s{sT0}, s{sXCC}, 2")
    A(f"s_cselect_b32 s{sT1}, {D_RANK}, 0")
    A(f"s_add_u32 s{sT0}, s{sT0}, s{sT1}")
    A(f"s_mov_b32 s{sSpin}, 0x20000")
    A(f"s_mov_b32 s{sPLo}, 0x05040100\ns_mov_b32 s{sPHi}, 0x07060302")
    A(f"v_mov_b32 v1, s{sT0}")
    A("v_mov_b32 v2, 1")
    A("v_mov_b32 v4, 0")
    A("s_waitcnt lgkmcnt(0)")
    A("v_cmp_eq_u32 vcc, 0, v0")
    A("s_and_saveexec_b64 s[6:7], vcc")
    A("s_cbranch_execz L_norank")
    A("global_atomic_add v3, v1, v2, s[4:5] sc0 sc1")
    A("s_waitcnt vmcnt(0)")
    A("ds_write_b32 v4, v3")
    A("s_waitcnt lgkmcnt(0)")
    A("L_norank:")
    A("s_mov_b64 exec, -1")
    A("s_barrier")
    A("ds_read_b32 v3, v4")
    A("s_waitcnt lgkmcnt(0)")
    A(f"v_readfirstlane_b32 s{sR}, v3")
    A("s_barrier")
    A.lds = []; A.vm = []

if __name__ == '__main__':
    import sys
    o = dict(mimic=1, time=1)
    for a in sys.argv[2:]:
        k, v = a.split('='); o[k] = int(v)
    A = Asm()
    A.L.append("; @launch grid=(256,1,1) block=(256,1,1) lds=163840")
    A('.amdgcn_target "amdgcn-amd-amdhsa--gfx950"')
    header(A, "team_kernel")
    prologue(A, o)
    A(f"s_cmp_lg_u32 s{sXCC}, 0\ns_cbranch_scc1 L_exit")
    A(f"s_cmp_gt_u32 s{sR}, 31\ns_cbranch_scc1 L_exit")
    emit_team(A, o)
    A("L_exit:\ns_endpgm")
    kd(A, "team_kernel", 256, 256)
    if o.get('x'):
        x = o['x']; out = []; inl = False; ph = -1
        for ln in A.L:
            if ln.startswith('L_t0_ring:'): inl = True
            if ln.startswith('L_t_tail:'): inl = False
            if inl:
                if ln.startswith('s_barrier'): ph = (ph + 1) % 3
                poll = ('sc1' in ln and 'load' in ln and (f's{sRingR} ' in ln or f'v{vInR},' in ln))
                if (x & 1) and ph == 0 and ln.startswith('buffer_store'): continue
                if (x & 2) and ph == 0 and ln.startswith('buffer_load') and not poll: continue
                if (x & 4) and ln.startswith('ds_read_b128') and f', v{vWL} ' in ln: continue
                if (x & 8) and ph == 2 and ln.startswith('buffer_store_dwordx4'): continue
            out.append(ln)
        A.L = [l.replace('0x20000', '0x2000') if l.startswith(f's_mov_b32 s{sSpin},') else l for l in out]
    open(sys.argv[1], 'w').write(A.text())
```

```python
RING  = 0x0000000
FLAGS = 0x0010000
F_KT  = FLAGS
F_O   = FLAGS + 0x8000
F_DUM = FLAGS + 0x10000
PROF  = 0x0080000
INBOX = 0x0100000
KMVM  = 0x0400000
XF    = 0x0D00000
KTV   = 0x1000000
OF    = 0x3000000
OFU   = 176 * 1024
QF    = 0x5000000
WS_BYTES = 268435456
D_ARM  = 64
D_RANK = 128
D_CX   = 192
D_CH   = 196
N_CX   = 144
N_CH   = 96
```

```python
from asmlib import *
from layout import *
import gen_team as GT
from gen_team import (sWS, sW, sXCC, sR, sWv, sT0, sT1, sT2, sT3, sPLo, sPHi, sScale, sL2E, sSpin, srd, retry, wait_cnt, f2u)
NAME = 'parallel_sum__memory_aug_recurrent_mem_tr__dense_activation_relu__prompt_kernel'
ws = f"s[{sWS}:{sWS+3}]"
MF = "v_mfma_f32_16x16x32_bf16"
vL16, vG, vC, vL, vA0, vA1, vA2, vA3 = 1, 2, 3, 4, 5, 6, 7, 8

def lanes(A):
    A(f"v_and_b32 v{vL}, 63, v0")
    A(f"v_lshrrev_b32 v{vG}, 4, v{vL}")
    A(f"v_and_b32 v{vC}, 15, v{vL}")
    A(f"v_lshlrev_b32 v{vL16}, 4, v{vL}")

def load_w(A, jobs, voff, width, stage, tmp, NB=7):
    nb = NB + 1
    op = {1: 'buffer_load_dword', 2: 'buffer_load_dwordx2'}[width]
    def issue(b):
        pre, rows, dest = jobs[b]
        if pre: pre()
        last = None
        for i, (sr, cst) in enumerate(rows):
            if last is None or not (0 <= cst - last < 4096):
                A(f"s_add_u32 s{sT0}, s{sr}, {cst}"); last = cst
            off = f" offset:{cst-last}" if cst != last else ""
            A(f"{op} {vr(stage+(b%nb)*8*width+i*width, width)}, v{voff}, s[{sW}:{sW+3}], s{sT0} offen{off}", tag=('w', b))
    for b in range(min(NB, len(jobs))): issue(b)
    for b in range(len(jobs)):
        A.wait_vm(('w', b))
        if b + NB < len(jobs): issue(b + NB)
        base = stage + (b % nb)*8*width
        for t in range(2*width):
            kind, idx = jobs[b][2](t)
            d = idx if kind == 'v' else tmp + 4*(t & 1)
            for q in range(4):
                A(f"v_perm_b32 v{d+q}, v{base+(2*q+1)*width+(t>>1)}, v{base+2*q*width+(t>>1)}, s{sPHi if t&1 else sPLo}")
            if kind == 'a':
                for q in range(4): A(f"v_accvgpr_write_b32 a{idx+q}, v{d+q}")

def cnt_add(A, off, name, va=30):
    A(f"v_mov_b32 v{va}, 1\nv_mov_b32 v{va+1}, {off}")
    A("s_mov_b64 exec, 1")
    A(f"global_atomic_add v{va+1}, v{va}, s[4:5] sc1")
    A("s_mov_b64 exec, -1")

def red_g(A, op, v, t):
    for sw in ('16', '32'):
        A(f"v_mov_b32 v{t}, v{v}")
        A(f"v_permlane{sw}_swap_b32 v{t}, v{v}")
        A(f"{op} v{v}, v{v}, v{t}")

def rnd(A, d, s=None): A(f"v_cvt_pk_bf16_f32 v{d}, 0, v{d if s is None else s}")

def two_pass(A, body):
    q = list(A.vm)
    for _ in range(4):
        B = Asm(); B.vm = list(q); body(B); q = list(B.vm)
    A.vm = list(q); body(A)
    assert A.vm == q, (A.vm, q)

def stamp(A, o, i):
    if o.get('time'): A(f"s_memtime s[{70+2*i}:{71+2*i}]")

def dump_stamps(A, o, n):
    if not o.get('time'): return
    A("s_waitcnt lgkmcnt(0)")
    A(f"s_lshl_b32 s{sT0}, s{sXCC}, 5\ns_add_u32 s{sT0}, s{sT0}, s{sR}\ns_lshl_b32 s{sT0}, s{sT0}, 2\ns_add_u32 s{sT0}, s{sT0}, s{sWv}\ns_lshl_b32 s{sT0}, s{sT0}, 6\ns_add_u32 s{sT0}, s{sT0}, {PROF+0x10000}")
    for i in range(n):
        A(f"s_sub_u32 s{70+2*i}, s{70+2*i}, s68")
        A(f"v_mov_b32 v{16+i}, s{70+2*i}")
        A(f"buffer_store_dword v{16+i}, off, {ws}, s{sT0} offset:{4*i}")
    A(f"v_mov_b32 v15, s{sSpin}")
    A(f"buffer_store_dword v15, off, {ws}, s{sT0} offset:60")

def emit_head(A, o):
    OOL = []
    sH, sRep, sXo, sQo, sKo, sMo, sFo, sFp, sI, sWb, sOo, sFOo = 20, 21, 22, 23, 24, 25, 26, 27, 28, 29, 30, 31
    XB, AC, OQ, OK_, OV, NEG, ONE, WV = 16, 80, 104, 108, 112, 120, 124, 128
    lanes(A)
    A(f"s_sub_u32 s{sH}, s{sXCC}, 1\ns_lshl_b32 s{sH}, s{sH}, 3\ns_and_b32 s{sT0}, s{sR}, 7\ns_add_u32 s{sH}, s{sH}, s{sT0}")
    A(f"s_lshr_b32 s{sRep}, s{sR}, 3")
    A(f"s_lshl_b32 s{sWb}, s{sH}, 8\ns_lshl_b32 s{sT0}, s{sWv}, 6\ns_add_u32 s{sWb}, s{sWb}, s{sT0}")
    A(f"v_lshlrev_b32 v{vA0}, 16, v{vG}\nv_lshl_add_u32 v{vA0}, v{vC}, 2, v{vA0}")
    jobs = []
    for xi, X_ in enumerate('qkv'):
        for k in range(16):
            pre = (lambda xi=xi: srd(A, sW, 16+8*xi, 4194304)) if k == 0 else None
            dest = (lambda t, xi=xi, k=k: ('a', 128*xi+8*k+4*t) if xi < 2 else ('v', WV+8*k+4*t))
            jobs.append((pre, [(sWb, (32*k+i)*8192) for i in range(8)], dest))
    load_w(A, jobs, vA0, 1, XB, AC)
    stamp(A, o, 0)
    A(f"s_lshl_b32 s{sXo}, s{sRep}, 15\ns_add_u32 s{sXo}, s{sXo}, {XF}")
    A(f"s_lshl_b32 s{sT0}, s{sRep}, 5\ns_add_u32 s{sT0}, s{sT0}, s{sH}\ns_lshl_b32 s{sT0}, s{sT0}, 2\ns_add_u32 s{sT0}, s{sT0}, s{sWv}")
    A(f"s_lshl_b32 s{sQo}, s{sT0}, 11\ns_add_u32 s{sQo}, s{sQo}, {QF}")
    A(f"s_lshl_b32 s{sKo}, s{sT0}, 12\ns_add_u32 s{sKo}, s{sKo}, {KTV}")
    A(f"s_lshl_b32 s{sMo}, s{sT0}, 10\ns_add_u32 s{sMo}, s{sMo}, {KMVM}")
    A(f"s_lshl_b32 s{sFo}, s{sH}, 10\ns_lshl_b32 s{sT0}, s{sWv}, 8\ns_add_u32 s{sFo}, s{sFo}, s{sT0}\ns_lshl_b32 s{sT0}, s{sRep}, 2\ns_add_u32 s{sFo}, s{sFo}, s{sT0}\ns_add_u32 s{sFo}, s{sFo}, {F_KT}")
    A(f"s_mov_b32 s{sFp}, {F_DUM}")
    for q in range(4): A(f"v_mov_b32 v{NEG+q}, -1")
    A(f"v_mov_b32 v{ONE}, 1")
    wait_cnt(A, OOL, "L_h_cx", D_CX, N_CX, 126)
    stamp(A, o, 1)
    def xload(B, n):
        B(f"buffer_load_dwordx4 {vr(XB+4*(n%16),4)}, v{vL16}, {ws}, s{sXo} offen offset:{(n%4)*1024}", tag=('x', n % 16))
        if n % 4 == 3: B(f"s_add_u32 s{sXo}, s{sXo}, {4096 + (3*32768 if n % 32 == 31 else 0)}")
    for n in range(16): xload(A, n)
    A(f"s_mov_b32 s{sI}, 16")
    A("s_waitcnt vmcnt(0)")
    A("L_h_p1:")
    def body(B):
        for n in range(32):
            tau, k = n >> 4, n & 15
            x = vr(XB+4*k, 4)
            B.wait_vm(('x', k))
            for xi in range(3):
                for t in range(2):
                    ac = vr(AC+8*xi+4*t, 4); c = ac if k else '0'
                    if xi < 2: B(f"{MF} {ac}, {vr(128*xi+8*k+4*t,4,'a')}, {x}, {c}")
                    else: B(f"{MF} {ac}, {x}, {vr(WV+8*k+4*t,4)}, {c}")
            xload(B, n + 16)
            if n == 1: B(f"buffer_store_dwordx4 {vr(NEG,4)}, v{vL16}, {ws}, s{sMo} offen sc1\ns_add_u32 s{sMo}, s{sMo}, {4*131072}", tag='d')
            if n == 17:
                B.wait_vm('dl')
                B("s_mov_b64 exec, 1")
                B(f"buffer_store_dword v{ONE}, off, {ws}, s{sFp} sc1")
                B("s_mov_b64 exec, -1")
                B(f"s_mov_b32 s{sFp}, s{sFo}\ns_add_u32 s{sFo}, s{sFo}, 16")
            if k == 15:
                for i in range(4): B(f"v_cvt_pk_bf16_f32 v{OQ+i}, v{AC+i}, v{AC+4+i}")
                B(f"buffer_store_dwordx4 {vr(OQ,4)}, v{vL16}, {ws}, s{sQo} offen offset:{tau*1024}")
                for i in range(4): B(f"v_cvt_pk_bf16_f32 v{OK_+i}, v{AC+8+i}, v{AC+12+i}")
                B(f"buffer_store_dwordx4 {vr(OK_,4)}, v{vL16}, {ws}, s{sKo} offen offset:{tau*1024} sc1")
                for t in range(2):
                    for j in range(2): B(f"v_cvt_pk_bf16_f32 v{OV+4*t+2*tau+j}, v{AC+16+4*t+2*j}, v{AC+16+4*t+2*j+1}")
                if tau:
                    for t in range(2): B(f"buffer_store_dwordx4 {vr(OV+4*t,4)}, v{vL16}, {ws}, s{sKo} offen offset:{2048+t*1024} sc1", tag='dl')
        B(f"s_add_u32 s{sQo}, s{sQo}, {4*262144}\ns_add_u32 s{sKo}, s{sKo}, {4*524288}")
        B(f"s_sub_u32 s{sI}, s{sI}, 1\ns_cmp_lg_u32 s{sI}, 0\ns_cbranch_scc1 L_h_p1")
    two_pass(A, body)
    A.wait_vm()
    A("s_mov_b64 exec, 1")
    A(f"buffer_store_dword v{ONE}, off, {ws}, s{sFp} sc1")
    A("s_mov_b64 exec, -1")
    A("s_barrier")
    stamp(A, o, 2)
    Q, KT, VT, S, SM, KM, VM, OWN, P, PM, OA, OU, mx, t1, t2, vNeg = 16, 32, 64, 80, 88, 92, 108, 112, 116, 120, 128, 144, 152, 153, 154, 155
    vKw, vKr, vVw, vVr = vA0, vA1, vA2, vA3
    sTq, sHf, sMk = 32, 33, 84
    A(f"s_and_b32 s{sTq}, s{sWv}, 1\ns_lshr_b32 s{sHf}, s{sWv}, 1")
    A(f"s_lshl_b32 s{sT0}, s{sRep}, 5\ns_add_u32 s{sT0}, s{sT0}, s{sH}")
    A(f"s_lshl_b32 s{sQo}, s{sT0}, 13\ns_lshl_b32 s{sT1}, s{sTq}, 10\ns_add_u32 s{sQo}, s{sQo}, s{sT1}\ns_add_u32 s{sQo}, s{sQo}, {QF}")
    A(f"s_lshl_b32 s{sKo}, s{sT0}, 14\ns_add_u32 s{sKo}, s{sKo}, {KTV}")
    A(f"s_lshl_b32 s{sMo}, s{sT0}, 12\ns_lshl_b32 s{sT1}, s{sWv}, 10\ns_add_u32 s{sMo}, s{sMo}, s{sT1}\ns_add_u32 s{sMo}, s{sMo}, {KMVM}")
    A(f"s_lshl_b32 s{sT0}, s{sRep}, 1\ns_add_u32 s{sT0}, s{sT0}, s{sTq}")
    A(f"s_lshl_b32 s{sT1}, s{sH}, 1\ns_add_u32 s{sT1}, s{sT1}, s{sHf}")
    A(f"s_mul_i32 s{sOo}, s{sT0}, {OFU}\ns_lshl_b32 s{sT2}, s{sT1}, 11\ns_add_u32 s{sOo}, s{sOo}, s{sT2}\ns_add_u32 s{sOo}, s{sOo}, {OF}")
    A(f"s_lshl_b32 s{sFOo}, s{sT0}, 8\ns_lshl_b32 s{sT2}, s{sT1}, 2\ns_add_u32 s{sFOo}, s{sFOo}, s{sT2}\ns_add_u32 s{sFOo}, s{sFOo}, {F_O}")
    A(f"s_mov_b32 s{sScale}, {f2u(128**-0.5)}\ns_mov_b32 s{sL2E}, {f2u(1.4426950408889634)}")
    A(f"v_lshrrev_b32 v{t1}, 2, v{vC}\nv_and_b32 v{t2}, 3, v{vC}")
    A(f"v_lshlrev_b32 v{vKw}, 7, v{t1}\nv_lshl_add_u32 v{vKw}, v{vG}, 5, v{vKw}\nv_lshl_add_u32 v{vKw}, v{t2}, 2, v{vKw}")
    A(f"s_lshl_b32 s{sT0}, s{sWv}, 9\nv_add_u32 v{vKw}, s{sT0}, v{vKw}")
    A(f"v_lshl_add_u32 v{vVw}, v{vL}, 3, s{sT0}")
    A(f"s_lshl_b32 s{sT0}, s{sHf}, 10\nv_lshl_add_u32 v{vVr}, v{vL}, 3, s{sT0}")
    A(f"v_and_b32 v{mx}, 1, v{vC}\nv_lshlrev_b32 v{mx}, 4, v{mx}\nv_lshl_add_u32 v{mx}, v{t1}, 5, v{mx}\nv_lshl_add_u32 v{vKr}, v{vG}, 7, v{mx}")
    A(f"v_lshl_add_u32 v{t2}, v{t1}, 3, v{t2}\ns_lshl_b32 s{sT0}, s{sTq}, 2\nv_add_u32 v{t2}, s{sT0}, v{t2}")
    A(f"v_lshlrev_b32 v{t1}, 3, v{vG}\nv_sub_u32 v{t2}, v{t2}, v{t1}")
    for j in range(8): A(f"v_cmp_le_i32 s[{sMk+2*j}:{sMk+2*j+1}], {j}, v{t2}")
    A(f"v_mov_b32 v{vNeg}, {f2u(-1e9)}")
    A(f"v_mov_b32 v{PM+1}, 0\nv_mov_b32 v{PM+2}, 0")
    A(f"s_mov_b32 s{sI}, 16")
    A("L_h_p2:")
    A.vm = []; A.lds = []
    for w_ in range(4):
        if w_ % 2 == 0: A(f"s_add_u32 s{sT0}, s{sQo}, {w_*2048}")
        A(f"buffer_load_dwordx4 {vr(Q+4*w_,4)}, v{vL16}, {ws}, s{sT0} offen offset:{(w_%2)*2048}", tag=('q', w_))
        A(f"s_add_u32 s{sT1}, s{sKo}, {w_*4096}")
        for tk in range(2):
            A(f"buffer_load_dwordx4 {vr(KT+8*w_+4*tk,4)}, v{vL16}, {ws}, s{sT1} offen offset:{tk*1024}", tag=('q', w_))
    A(f"s_lshl_b32 s{sT0}, s{sHf}, 13\ns_add_u32 s{sT0}, s{sT0}, s{sKo}\ns_add_u32 s{sT1}, s{sT0}, 4096")
    for w_ in range(2):
        for t in range(2):
            A(f"buffer_load_dwordx4 {vr(VT+8*w_+4*t,4)}, v{vL16}, {ws}, s{sT0+w_} offen offset:{2048+t*1024}")
    for w_ in range(4):
        A.wait_vm(('q', w_))
        for tk in range(2):
            A(f"{MF} {vr(S+4*tk,4)}, {vr(KT+8*w_+4*tk,4)}, {vr(Q+4*w_,4)}, {vr(S+4*tk,4) if w_ else 0}")
    for j in range(8): rnd(A, S+j)
    for j in range(8): A(f"v_mul_f32 v{S+j}, s{sScale}, v{S+j}")
    for j in range(8): rnd(A, S+j)
    for j in range(8): A(f"v_cndmask_b32 v{S+j}, v{vNeg}, v{S+j}, s[{sMk+2*j}:{sMk+2*j+1}]")
    A(f"v_max3_f32 v{mx}, v{S}, v{S+1}, v{S+2}\nv_max3_f32 v{mx}, v{mx}, v{S+3}, v{S+4}\nv_max3_f32 v{mx}, v{mx}, v{S+5}, v{S+6}\nv_max_f32 v{mx}, v{mx}, v{S+7}")
    A("L_h_km:")
    A(f"buffer_load_dwordx4 {vr(OWN,4)}, v{vL16}, {ws}, s{sMo} offen sc1")
    A.wait_vm()
    A(f"v_max3_u32 v{t1}, v{OWN}, v{OWN+1}, v{OWN+2}\nv_max_u32 v{t1}, v{t1}, v{OWN+3}")
    A(f"v_cmp_eq_u32 vcc, -1, v{t1}\ns_cbranch_vccnz L_h_km_re")
    OOL.append(retry("L_h_km_re", "L_h_km", "L_h_km_ok"))
    A("L_h_km_ok:")
    A(f"ds_write2_b32 v{vKw}, v{OWN}, v{OWN+1} offset0:0 offset1:4")
    A(f"ds_write_b64 v{vVw}, {vr(OWN+2,2)} offset:2048")
    A.wait_lds()
    A("s_barrier")
    for w_ in range(4): A(f"ds_read_b128 {vr(KM+4*w_,4)}, v{vKr} offset:{w_*512}", tag=('k', w_))
    for w_ in range(2): A(f"ds_read_b64 {vr(VM+2*w_,2)}, v{vVr} offset:{2048+w_*512}", tag='v')
    for v_ in (vKw, vKr, vVw, vVr): A(f"v_xor_b32 v{v_}, 4096, v{v_}")
    for w_ in range(4):
        A.wait_lds(('k', w_))
        A(f"{MF} {vr(SM,4)}, {vr(KM+4*w_,4)}, {vr(Q+4*w_,4)}, {vr(SM,4) if w_ else 0}")
    for j in range(2): rnd(A, SM+j)
    for j in range(2): A(f"v_mul_f32 v{SM+j}, s{sScale}, v{SM+j}")
    for j in range(2): rnd(A, SM+j)
    A(f"v_max3_f32 v{mx}, v{mx}, v{SM}, v{SM+1}")
    red_g(A, 'v_max_f32', mx, t1)
    A(f"v_mul_f32 v{mx}, s{sL2E}, v{mx}")
    for j in range(10): A(f"v_fma_f32 v{S+j}, v{S+j}, s{sL2E}, -v{mx}")
    for j in range(10): A(f"v_exp_f32 v{S+j}, v{S+j}")
    A(f"v_add_f32 v{t2}, v{S}, v{S+1}")
    for j in range(2, 10): A(f"v_add_f32 v{t2}, v{t2}, v{S+j}")
    red_g(A, 'v_add_f32', t2, t1)
    A(f"v_rcp_f32 v{t1}, v{t2}")
    for j in range(10): A(f"v_mul_f32 v{S+j}, v{S+j}, v{t1}")
    for j in range(4): A(f"v_cvt_pk_bf16_f32 v{P+j}, v{S+2*j}, v{S+2*j+1}")
    A(f"v_cvt_pk_bf16_f32 v{PM}, v{SM}, v{SM+1}\nv_cvt_pk_bf16_f32 v{PM+3}, v{SM}, v{SM+1}")
    for n in range(4): A(f"{MF} {vr(OA+4*n,4)}, {vr(VT+4*n,4)}, {vr(P,4)}, 0")
    A.wait_lds()
    for n in range(4):
        A(f"v_mfma_f32_16x16x16_bf16 {vr(OA+4*n,4)}, {vr(VM+2*(n>>1),2)}, {vr(PM+2*(n&1),2)}, {vr(OA+4*n,4)}")
    for w_ in range(2):
        for i in range(4): A(f"v_cvt_pk_bf16_f32 v{OU+4*w_+i}, v{OA+8*w_+i}, v{OA+8*w_+4+i}")
        A(f"buffer_store_dwordx4 {vr(OU+4*w_,4)}, v{vL16}, {ws}, s{sOo} offen offset:{w_*1024} sc1")
    A.wait_vm()
    A("s_mov_b64 exec, 1")
    A(f"buffer_store_dword v{ONE}, off, {ws}, s{sFOo} sc1")
    A("s_mov_b64 exec, -1")
    A(f"s_add_u32 s{sQo}, s{sQo}, {4*262144}\ns_add_u32 s{sKo}, s{sKo}, {4*524288}\ns_add_u32 s{sMo}, s{sMo}, {4*131072}")
    A(f"s_add_u32 s{sOo}, s{sOo}, {8*OFU}\ns_add_u32 s{sFOo}, s{sFOo}, {8*256}")
    A(f"s_sub_u32 s{sI}, s{sI}, 1\ns_cmp_lg_u32 s{sI}, 0\ns_cbranch_scc1 L_h_p2")
    stamp(A, o, 3)
    dump_stamps(A, o, 4)
    A("s_endpgm")
    for t in OOL: A(t)

def emit_og(A, o):
    OOL = []
    sIdx, sXo, sOo, sI, sWb, sJ, sU, sFOo, sXa, sCs = 20, 22, 23, 28, 29, 24, 25, 26, 27, 30
    sX, sOut = 84, 88
    vTok = vA1
    lanes(A)
    srd(A, sX, 0, 2097152)
    srd(A, sOut, 80, 2097152)
    srd(A, sW, 64, 512*2752)
    A(f"s_sub_u32 s{sIdx}, s{sXCC}, 5\ns_lshl_b32 s{sIdx}, s{sIdx}, 5\ns_add_u32 s{sIdx}, s{sIdx}, s{sR}")
    A(f"v_lshrrev_b32 v{vA0}, 2, v{vC}\nv_and_b32 v{vA2}, 3, v{vC}\nv_lshl_add_u32 v{vA0}, v{vA0}, 3, v{vA2}")
    A(f"v_lshlrev_b32 v{vA0}, 10, v{vA0}\nv_lshl_add_u32 v{vTok}, v{vG}, 4, v{vA0}")
    A(f"s_cmp_ge_u32 s{sIdx}, 64\ns_cbranch_scc1 L_o_arm")
    A(f"s_cmp_ge_u32 s{sWv}, 2\ns_cbranch_scc1 L_o_ffn")
    RW, F = 32, 96
    A(f"s_lshl_b32 s{sT0}, s{sIdx}, 15\ns_lshl_b32 s{sT1}, s{sWv}, 12\ns_add_u32 s{sT1}, s{sT0}, s{sT1}")
    for k in range(16): A(f"buffer_load_dwordx4 {vr(RW+4*k,4)}, v{vTok}, s[{sX}:{sX+3}], s{sT1} offen offset:{64*k}", tag=k)
    A(f"s_lshl_b32 s{sT1}, s{sWv}, 14\ns_add_u32 s{sXo}, s{sT0}, s{sT1}\ns_add_u32 s{sXo}, s{sXo}, {XF}")
    A(f"s_mov_b32 s{sT2}, 0xffff0000")
    a = [16, 17, 18, 19]; mean, t1, r = 20, 21, 22
    for q in a: A(f"v_mov_b32 v{q}, 0")
    for k in range(64):
        if k % 4 == 0: A.wait_vm(k // 4)
        A(f"v_lshlrev_b32 v{F+2*k}, 16, v{RW+k}\nv_and_b32 v{F+2*k+1}, s{sT2}, v{RW+k}")
        A(f"v_add_f32 v{a[(2*k)%4]}, v{a[(2*k)%4]}, v{F+2*k}\nv_add_f32 v{a[(2*k+1)%4]}, v{a[(2*k+1)%4]}, v{F+2*k+1}")
    def tot(d):
        A(f"v_add_f32 v{a[0]}, v{a[0]}, v{a[1]}\nv_add_f32 v{a[2]}, v{a[2]}, v{a[3]}\nv_add_f32 v{d}, v{a[0]}, v{a[2]}")
        red_g(A, 'v_add_f32', d, t1)
        A(f"v_mul_f32 v{d}, {f2u(1/512)}, v{d}")
    tot(mean)
    for q in a: A(f"v_mov_b32 v{q}, 0")
    for k in range(128):
        A(f"v_sub_f32 v{24+k%4}, v{F+k}, v{mean}\nv_fmac_f32 v{a[k%4]}, v{24+k%4}, v{24+k%4}")
    tot(r)
    rnd(A, mean); rnd(A, r)
    A(f"v_add_f32 v{r}, {f2u(1e-5)}, v{r}"); rnd(A, r)
    A(f"v_sqrt_f32 v{r}, v{r}"); rnd(A, r)
    A(f"v_rcp_f32 v{r}, v{r}")
    for k in range(64):
        for j in range(2):
            f = F+2*k+j
            A(f"v_sub_f32 v{f}, v{f}, v{mean}"); rnd(A, f); A(f"v_mul_f32 v{f}, v{f}, v{r}")
        A(f"v_cvt_pk_bf16_f32 v{RW+k}, v{F+2*k}, v{F+2*k+1}")
        if k % 4 == 3:
            A(f"buffer_store_dwordx4 {vr(RW+k-3,4)}, v{vL16}, {ws}, s{sXo} offen offset:{((k//4)%4)*1024} sc1")
            if k % 16 == 15: A(f"s_add_u32 s{sXo}, s{sXo}, 4096")
    A.wait_vm()
    cnt_add(A, D_CX, None)
    A("s_branch L_o_ffn")
    A("L_o_arm:")
    A(f"s_cmp_ge_u32 s{sIdx}, 80\ns_cbranch_scc1 L_o_ffn")
    A(f"s_cmp_lg_u32 s{sWv}, 0\ns_cbranch_scc1 L_o_ffn")
    for q in range(4): A(f"v_mov_b32 v{32+q}, 0")
    A(f"s_lshl_b32 s{sT0}, s{sIdx}, 12\ns_add_u32 s{sT0}, s{sT0}, {FLAGS - 64*4096 + (1<<32)}")
    for n in range(4): A(f"buffer_store_dwordx4 v[32:35], v{vL16}, {ws}, s{sT0} offen offset:{n*1024} sc1")
    A.wait_vm()
    cnt_add(A, D_CX, None)
    A("L_o_ffn:")
    A.vm = []
    stamp(A, o, 0)
    XB, AC, OU = 16, 80, 96
    A(f"s_lshl_b32 s{sT0}, s{sIdx}, 2\ns_add_u32 s{sT0}, s{sT0}, s{sWv}")
    A(f"s_mul_i32 s{sT1}, s{sT0}, 2979\ns_lshr_b32 s{sT1}, s{sT1}, 16")
    A(f"s_mul_i32 s{sT2}, s{sT1}, 22\ns_sub_u32 s{sCs}, s{sT0}, s{sT2}")
    A(f"s_cmp_ge_u32 s{sT1}, 16\ns_cbranch_scc1 L_o_ffn_done")
    A(f"s_lshl_b32 s{sXo}, s{sT1}, 17\ns_add_u32 s{sXo}, s{sXo}, {XF}")
    A(f"s_mul_i32 s{sOo}, s{sT1}, {8*OFU}\ns_lshl_b32 s{sT2}, s{sCs}, 11\ns_add_u32 s{sOo}, s{sOo}, s{sT2}\ns_add_u32 s{sOo}, s{sOo}, {OF+128*1024}")
    A(f"s_lshl_b32 s{sWb}, s{sCs}, 7")
    A(f"v_mul_u32_u24 v{vA0}, {8*2752}, v{vG}\nv_lshl_add_u32 v{vA0}, v{vC}, 3, v{vA0}")
    jobs = [(None, [(sWb, (32*k+i)*2752) for i in range(8)], (lambda t, k=k: ('a', 16*k+4*t))) for k in range(16)]
    load_w(A, jobs, vA0, 2, 128, AC)
    wait_cnt(A, OOL, "L_o_cx", D_CX, N_CX, 126)
    def xload(B, n):
        B(f"buffer_load_dwordx4 {vr(XB+4*(n%16),4)}, v{vL16}, {ws}, s{sXo} offen offset:{(n%4)*1024}", tag=('x', n % 16))
        if n % 4 == 3: B(f"s_add_u32 s{sXo}, s{sXo}, 4096")
    for n in range(16): xload(A, n)
    A(f"s_mov_b32 s{sI}, 8")
    A("s_waitcnt vmcnt(0)")
    A("L_o_f1:")
    def body(B):
        for k in range(16):
            B.wait_vm(('x', k))
            for t in range(4):
                ac = vr(AC+4*t, 4)
                B(f"{MF} {ac}, {vr(16*k+4*t,4,'a')}, {vr(XB+4*k,4)}, {ac if k else 0}")
            xload(B, k)
        for j in range(16): B(f"v_max_f32 v{AC+j}, 0, v{AC+j}")
        for i in range(4):
            for tp in range(2): B(f"v_cvt_pk_bf16_f32 v{OU+2*i+tp}, v{AC+8*tp+i}, v{AC+8*tp+4+i}")
        for a_ in range(2): B(f"buffer_store_dwordx4 {vr(OU+4*a_,4)}, v{vL16}, {ws}, s{sOo} offen offset:{a_*1024} sc1")
        B(f"s_add_u32 s{sOo}, s{sOo}, {OFU}")
        B(f"s_sub_u32 s{sI}, s{sI}, 1\ns_cmp_lg_u32 s{sI}, 0\ns_cbranch_scc1 L_o_f1")
    two_pass(A, body)
    A("L_o_ffn_done:")
    A.wait_vm()
    A("s_barrier")
    A(f"s_cmp_lg_u32 s{sWv}, 0\ns_cbranch_scc1 L_o_w")
    cnt_add(A, D_CH, None)
    A("L_o_w:")
    A.vm = []
    stamp(A, o, 1)
    AA, AB, BUF, XR, W2 = 16, 24, 32, 160, 168
    vLw, vLr, vFl = vA2, vA3, 9
    A(f"s_and_b32 s{sJ}, s{sR}, 15\ns_lshr_b32 s{sU}, s{sIdx}, 4")
    A(f"s_lshl_b32 s{sWb}, s{sWv}, 20\ns_lshl_b32 s{sJ}, s{sJ}, 6\ns_add_u32 s{sWb}, s{sWb}, s{sJ}")
    A(f"v_lshlrev_b32 v{vA0}, 13, v{vG}\nv_lshl_add_u32 v{vA0}, v{vC}, 2, v{vA0}")
    jobs = [((lambda: srd(A, sW, 40, 4194304)) if k == 0 else None, [(sWb, (32*k+i)*1024) for i in range(8)], (lambda t, k=k: ('a', 8*k+4*t))) for k in range(32)]
    load_w(A, jobs, vA0, 1, BUF, AA)
    A(f"v_lshlrev_b32 v{vA0}, 14, v{vG}\nv_lshl_add_u32 v{vA0}, v{vC}, 2, v{vA0}")
    def pre2(n):
        if n == 0: srd(A, sW, 72, 1376*1024)
        A(f"s_mul_i32 s{sT1}, s{sWv}, 11\ns_add_u32 s{sT1}, s{sT1}, {n}\ns_and_b32 s{sT2}, s{sT1}, 1")
        A(f"s_lshl_b32 s{sT1}, s{sT1}, 15\ns_mul_i32 s{sT2}, s{sT2}, {24*1024}\ns_sub_u32 s{sT1}, s{sT1}, s{sT2}\ns_add_u32 s{sWb}, s{sT1}, s{sJ}")
    jobs = [((lambda n=n: pre2(n)), [(sWb, i*1024) for i in range(8)], (lambda t, n=n: ('v', W2+8*n+4*t))) for n in range(11)]
    load_w(A, jobs, vA0, 1, BUF, AA)
    A(f"s_lshl_b32 s{sT0}, s{sWv}, 12\nv_add_u32 v{vLw}, s{sT0}, v{vL16}\nv_mov_b32 v{vLr}, v{vL16}")
    A(f"v_lshlrev_b32 v{vFl}, 2, v{vC}")
    A(f"s_mul_i32 s{sOo}, s{sU}, {OFU}\ns_add_u32 s{sOo}, s{sOo}, {OF}")
    A(f"s_lshl_b32 s{sFOo}, s{sU}, 8\ns_lshl_b32 s{sT0}, s{sWv}, 6\ns_add_u32 s{sFOo}, s{sFOo}, s{sT0}\ns_add_u32 s{sFOo}, s{sFOo}, {F_O}")
    wait_cnt(A, OOL, "L_o_cx2", D_CX, N_CX, 164)
    wait_cnt(A, OOL, "L_o_ch", D_CH, N_CH, 164)
    stamp(A, o, 2)
    A("L_o_u:")
    A.vm = []; A.lds = []
    A(f"s_lshr_b32 s{sXa}, s{sU}, 1\ns_lshl_b32 s{sXa}, s{sXa}, 15\ns_and_b32 s{sT0}, s{sU}, 1\ns_lshl_b32 s{sT0}, s{sT0}, 12\ns_add_u32 s{sXa}, s{sXa}, s{sT0}\ns_add_u32 s{sXa}, s{sXa}, s{sJ}")
    A(f"s_mul_i32 s{sT0}, s{sWv}, {11*1024}\ns_add_u32 s{sT0}, s{sT0}, s{sOo}\ns_add_u32 s{sT0}, s{sT0}, {128*1024}")
    for n in range(11):
        A(f"buffer_load_dwordx4 {vr(BUF+4*n,4)}, v{vL16}, {ws}, s{sT0} offen offset:{(n%4)*1024}", tag=n)
        if n % 4 == 3: A(f"s_add_u32 s{sT0}, s{sT0}, 4096")
    A(f"buffer_load_dwordx4 {vr(XR,4)}, v{vTok}, s[{sX}:{sX+3}], s{sXa} offen")
    for n in range(11):
        A.wait_vm(n)
        for t in range(2): A(f"{MF} {vr(AB+4*t,4)}, {vr(W2+8*n+4*t,4)}, {vr(BUF+4*n,4)}, {vr(AB+4*t,4) if n else 0}")
    A(f"s_lshl_b32 s{sT0}, s{sWv}, 15\ns_add_u32 s{sT0}, s{sT0}, s{sOo}")
    for t in range(2): A(f"ds_write_b128 v{vLw}, {vr(AB+4*t,4)} offset:{2048+t*1024}")
    A("L_o_fo:")
    A(f"buffer_load_dword v164, v{vFl}, {ws}, s{sFOo} offen sc1")
    A.wait_vm()
    A("v_cmp_eq_u32 vcc, 0, v164\ns_cbranch_vccnz L_o_fo_re")
    OOL.append(retry("L_o_fo_re", "L_o_fo", "L_o_fo_ok"))
    A("L_o_fo_ok:")
    for n in range(32):
        A(f"buffer_load_dwordx4 {vr(BUF+4*n,4)}, v{vL16}, {ws}, s{sT0} offen offset:{(n%4)*1024}", tag=n)
        if n % 4 == 3: A(f"s_add_u32 s{sT0}, s{sT0}, 4096")
    for n in range(32):
        A.wait_vm(n)
        for t in range(2): A(f"{MF} {vr(AA+4*t,4)}, {vr(8*n+4*t,4,'a')}, {vr(BUF+4*n,4)}, {vr(AA+4*t,4) if n else 0}")
    for t in range(2): A(f"ds_write_b128 v{vLw}, {vr(AA+4*t,4)} offset:{t*1024}")
    A.wait_lds()
    A("s_barrier")
    A(f"s_cmp_lg_u32 s{sWv}, 3\ns_cbranch_scc1 L_o_nx")
    for w_ in range(3):
        for n in range(4): A(f"ds_read_b128 {vr(BUF+16*w_+4*n,4)}, v{vLr} offset:{w_*4096+n*1024}", tag=w_)
    A(f"s_mov_b32 s{sT2}, 0xffff0000")
    for i in range(4): A(f"v_lshlrev_b32 v{BUF+48+i}, 16, v{XR+i}\nv_and_b32 v{BUF+52+i}, s{sT2}, v{XR+i}")
    for w_ in range(3):
        A.wait_lds(w_)
        for j in range(16): A(f"v_add_f32 v{AA+j}, v{AA+j}, v{BUF+16*w_+j}")
    for j in range(16): rnd(A, AA+j)
    for j in range(8): A(f"v_add_f32 v{AA+j}, v{AA+j}, v{BUF+48+j}")
    for j in range(8): rnd(A, AA+j)
    for j in range(8): A(f"v_add_f32 v{AA+j}, v{AA+j}, v{AB+j}")
    for i in range(4): A(f"v_cvt_pk_bf16_f32 v{164+i}, v{AA+i}, v{AA+4+i}")
    A(f"buffer_store_dwordx4 v[164:167], v{vTok}, s[{sOut}:{sOut+3}], s{sXa} offen")
    A("s_nop 1")
    A("L_o_nx:")
    A(f"v_xor_b32 v{vLw}, 0x4000, v{vLw}\nv_xor_b32 v{vLr}, 0x4000, v{vLr}")
    A(f"s_add_u32 s{sOo}, s{sOo}, {6*OFU}\ns_add_u32 s{sFOo}, s{sFOo}, {6*256}")
    A(f"s_add_u32 s{sU}, s{sU}, 6\ns_cmp_lt_u32 s{sU}, 128\ns_cbranch_scc1 L_o_u")
    stamp(A, o, 3)
    dump_stamps(A, o, 4)
    A("s_endpgm")
    for t in OOL: A(t)

def gen(o):
    A = Asm()
    A.L.append("; @launch grid=(256,1,1) block=(256,1,1) lds=163840")
    A('.amdgcn_target "amdgcn-amd-amdhsa--gfx950"')
    header(A, NAME)
    GT.prologue(A, o)
    A(f"s_cmp_gt_u32 s{sR}, 31\ns_cbranch_scc1 L_exit")
    A(f"s_cmp_eq_u32 s{sXCC}, 0\ns_cbranch_scc1 L_team")
    A(f"s_cmp_gt_u32 s{sXCC}, 4\ns_cbranch_scc1 L_og")
    A("s_branch L_head")
    A("L_exit:\ns_endpgm")
    A("L_team:"); A.vm = []; A.lds = []
    GT.emit_team(A, o)
    A("L_head:"); A.vm = []; A.lds = []
    emit_head(A, o)
    A("L_og:"); A.vm = []; A.lds = []
    emit_og(A, o)
    kd(A, NAME, 256, 256)
    return A.text()

if __name__ == '__main__':
    import sys
    o = dict(mimic=1, time=0)
    for a in sys.argv[2:]:
        k, v = a.split('='); o[k] = int(v)
    assert all((j*2979 >> 16) == j // 22 for j in range(384))
    open(sys.argv[1], 'w').write(gen(o))
```

```python
from asmlib import *
from layout import *
import gen_team as G1
from gen_team import (f2u, srd, retry, wait_cnt, zero64, prologue,
                      sWS, sW, sXCC, sR, sWv, sT0, sT1, sT2, sT3, sPLo, sPHi, sScale, sL2E, sSpin)

vL16, vWL, vXP0, vXP1, vXP2, vXP3, vIdx, vQw, vKw, vSw, vXOw, vInW, vPub, vKTg, vPf, vDum = range(16)
P, QA, KA, VA, KT, VT, PM, KV4, T, WV = 16, 48, 56, 64, 72, 80, 88, 92, 96, 128
sS, sRingR, sRingW, sRingA = 20, 21, 22, 23
sInW, sInR, sInA = 24, 26, 28
sKT, sKT1, sVT, sPF, sKM, sFB, sFKT = 29, 30, 31, 32, 35, 37, 33
sRow = 54
sKM_ = 64
L_XP, L_Q, L_K, L_ST, L_O, L_SEL, L_W = 0, 8192, 10240, 12288, 13312, 17408, 32768
PARX = 262144

OWN = [(x, s, t) for x in 'qkv' for s in range(2) for t in range(2)]
QO = [('q', s, t) for s in range(2, 8) for t in range(2)]
KO = [('k', s, t) for s in range(2, 8) for t in range(2)]
VO = [('v', s, t) for s in range(2, 8) for t in range(2)]
O_ORDER = [('o', k, 2*u+t) for u in range(4) for k in range(2) for t in range(2)]
G = [OWN[:4], KO[2:6], O_ORDER[:4], O_ORDER[12:]]
place = {}
for gi, grp in enumerate(G):
    for b, f in enumerate(grp): place[f] = ('l', 4*gi+b, b)
rest = [f for f in OWN + QO + KO + VO + O_ORDER if f not in place]
assert len(rest) == 48
for i, f in enumerate(rest):
    place[f] = ('a', 8*i) if i < 32 else ('v', WV + 8*(i-32))

def breg(f):
    p = place[f]
    if p[0] == 'l': return vr(T + 8*p[2], 8)
    return vr(p[1], 8, p[0])

def lds_fetch(A, f):
    _, i, b = place[f]
    A(f"ds_read_b128 {vr(T+8*b,4)}, v{vWL} offset:{i*2048}", tag=f)
    A(f"ds_read_b128 {vr(T+8*b+4,4)}, v{vWL} offset:{i*2048+1024}", tag=f)

def smf(A, f):
    X_, s, t = f
    if place[f][0] == 'l': A.wait_lds(f)
    if X_ == 'o':
        A.wait_lds(('o', s))
        acc, a = P + 4*t, KA + 4*s
    else:
        if s >= 2: A.wait_lds(('xp', s))
        acc, a = {'q': QA, 'k': KA, 'v': VA}[X_] + 4*t, P + 4*s
    A(f"v_smfmac_f32_16x16x64_bf16 {vr(acc,4)}, {vr(a,4)}, {breg(f)}, v{vIdx}")

def put_frag(A, f, src):
    p = place[f]
    if p[0] == 'l':
        A(f"ds_write_b128 v{vWL}, {vr(src,4)} offset:{p[1]*2048}")
        A(f"ds_write_b128 v{vWL}, {vr(src+4,4)} offset:{p[1]*2048+1024}")
    elif p[0] == 'a':
        for q in range(8): A(f"v_accvgpr_write_b32 a{p[1]+q}, v{src+q}")

def bits(A, dst, terms, tmp, base=None):
    first = True
    for (src, lo, n, sh) in terms:
        A(f"v_bfe_u32 v{tmp}, v{src}, {lo}, {n}")
        if first and base is None: A(f"v_lshlrev_b32 v{dst}, {sh}, v{tmp}")
        elif first: A(f"v_lshl_add_u32 v{dst}, v{tmp}, {sh}, {base}")
        else: A(f"v_lshl_add_u32 v{dst}, v{tmp}, {sh}, v{dst}")
        first = False

def team_setup(A, o):
    ws = f"s[{sWS}:{sWS+3}]"
    t0, tid = 20, 21
    A(f"v_mov_b32 v{tid}, v0")
    B = lambda dst, terms, base=None: bits(A, dst, [(tid,) + t for t in terms], t0, base)
    B(vL16, [(0, 6, 4)])
    A(f"s_mov_b32 s{sT0}, {L_W}")
    B(vWL, [(0, 6, 4), (6, 2, 15)], f"s{sT0}")
    B(vXP0, [(0, 6, 4), (6, 2, 11)])
    for a in range(1, 4): A(f"v_xor_b32 v{vXP0+a}, {a*2048}, v{vXP0}")
    A(f"v_bfe_u32 v{t0}, v{tid}, 1, 1")
    A(f"v_mul_u32_u24 v{t0}, 0xAAAA, v{t0}")
    A(f"v_add_u32 v{vIdx}, 0x4444, v{t0}")
    A(f"s_mov_b32 s{sT0}, {L_Q}")
    B(vQw, [(7, 1, 10), (2, 2, 8), (6, 1, 7), (4, 2, 5), (0, 2, 2)], f"s{sT0}")
    A(f"s_mov_b32 s{sT0}, {L_K}")
    B(vKw, [(7, 1, 10), (2, 2, 8), (4, 2, 6), (6, 1, 5), (0, 2, 2)], f"s{sT0}")
    B(vSw, [(6, 2, 8), (5, 1, 7), (0, 3, 4), (4, 1, 3), (3, 1, 2)])
    B(vXOw, [(6, 2, 9), (5, 1, 8), (1, 2, 6), (4, 1, 5), (0, 1, 4), (3, 1, 11)])
    B(vInW, [(1, 3, 13), (4, 2, 5), (0, 1, 4)])
    B(vPub, [(1, 2, 6), (4, 1, 5), (5, 1, 4), (0, 1, 3), (3, 1, 2)])
    B(vKTg, [(1, 1, 12), (3, 1, 10), (4, 2, 8), (6, 2, 6), (2, 1, 5), (0, 1, 4)])
    B(vPf, [(0, 6, 6)])
    A(f"v_mov_b32 v{vDum}, 0")
    B(26, [(1, 2, 11), (5, 1, 10), (0, 1, 4), (3, 1, 3), (4, 1, 2)])
    B(27, [(4, 2, 16), (0, 4, 2)])
    B(28, [(5, 1, 14), (4, 1, 12), (0, 4, 4)])
    B(22, [(2, 1, 1), (0, 1, 0)])
    B(23, [(3, 1, 4)])
    A(f"v_mov_b32 v24, 0x3f80")
    A(f"v_lshlrev_b32 v23, v23, v24")
    for j in range(4):
        A(f"v_cmp_eq_u32 vcc, {j}, v22")
        A(f"v_cndmask_b32 v{32+j}, 0, v23, vcc")
    A(f"ds_write_b128 v{vL16}, v[32:35] offset:{L_SEL}")
    A(f"s_mov_b32 s{sScale}, {f2u(128**-0.5)}")
    A(f"s_mov_b32 s{sL2E}, {f2u(1.4426950408889634)}")
    A(f"s_lshl_b32 s{sT0}, s{sWv}, 16\ns_lshl_b32 s{sT1}, s{sR}, 7\ns_add_u32 s{sT0}, s{sT0}, s{sT1}")
    A(f"s_add_u32 s{sInW}, s{sT0}, {INBOX}\ns_add_u32 s{sInW+1}, s{sT0}, {INBOX+4096}")
    A(f"s_lshl_b32 s{sT0}, s{sR}, 13")
    A(f"s_add_u32 s{sInR}, s{sT0}, {INBOX}\ns_add_u32 s{sInR+1}, s{sT0}, {INBOX+4096}")
    A(f"s_lshl_b32 s{sRingR}, s{sWv}, 11")
    A(f"s_add_u32 s{sInA}, s{sInR}, s{sRingR}")
    A(f"s_lshl_b32 s{sFKT}, s{sR}, 10\ns_add_u32 s{sFKT}, s{sFKT}, {F_KT}")
    A(f"s_lshl_b32 s{sKT}, s{sR}, 14\ns_add_u32 s{sKT}, s{sKT}, {KTV}")
    A(f"s_add_u32 s{sKT1}, s{sKT}, 8192")
    A(f"s_lshl_b32 s{sT0}, s{sWv}, 12\ns_add_u32 s{sVT}, s{sKT}, s{sT0}")
    A(f"s_lshl_b32 s{sT0}, s{sR}, 12\ns_lshl_b32 s{sT1}, s{sWv}, 10\ns_add_u32 s{sT0}, s{sT0}, s{sT1}")
    A(f"s_add_u32 s{sKM}, s{sT0}, {KMVM - 131072}")
    assert RING == 0
    A(f"s_lshl_b32 s{sRingA}, s{sR}, 8")
    A(f"s_add_u32 s{sRingW}, s{sRingA}, 8192")
    A(f"s_lshl_b32 s{sT3}, s{sWv}, 6\ns_add_u32 s{sT0}, s{sRingA}, s{sT3}")
    for a in range(4):
        A(f"s_xor_b32 s{sT3}, s{sWv}, {a}\ns_lshl_b32 s{sT3}, s{sT3}, 20\ns_add_u32 s{sRow+a}, s{sT3}, s{sT0}")
    srd(A, sW, 8, 8192)
    A(f"s_lshl_b32 s{sT0}, s{sR}, 5")
    A(f"buffer_load_dword v29, v26, s[{sW}:{sW+3}], s{sT0} offen")
    for q in range(4): A(f"v_mov_b32 v{36+q}, -1")
    for par in range(2):
        for n in range(2):
            A(f"buffer_store_dwordx4 v[36:39], v{vL16}, {ws}, s{sInA} offen offset:{n*1024}")
        if par == 0: A(f"s_xor_b32 s{sInA}, s{sInA}, {PARX}")
    A(f"buffer_store_dword v36, v{vPub}, {ws}, s{sRingW} offen")
    A.wait_vm()
    A(f"buffer_store_dword v29, v{vPub}, {ws}, s{sRingA} offen")
    A.wait_vm()
    A("s_barrier")
    A(f"s_cmp_lg_u32 s{sWv}, 0\ns_cbranch_scc1 L_t_noarr")
    A("s_mov_b64 exec, 1")
    A(f"v_mov_b32 v30, 1\nv_mov_b32 v31, {D_ARM}")
    A(f"global_atomic_add v31, v30, s[4:5] sc1")
    A("s_mov_b64 exec, -1")
    A("L_t_noarr:")

def team_weights(A, o):
    batches = [(X_, s) for X_ in 'qkv' for s in range(8)]
    NB = 3
    def issue(b):
        X_, s = batches[b]
        if s == 0: srd(A, sW, {'q': 16, 'k': 24, 'v': 32}[X_], 4194304)
        for ib in range(16):
            d = 64*(s&1) + 32*(ib>>3) + (ib&7)
            A(f"s_add_u32 s{sT0}, s{sRow+(s>>1)}, {d*8192}")
            A(f"buffer_load_dword v{32+16*(b%4)+ib}, v27, s[{sW}:{sW+3}], s{sT0} offen", tag=('w', b))
    for b in range(NB): issue(b)
    for b in range(len(batches)):
        X_, s = batches[b]
        A.wait_vm(('w', b))
        if b + NB < len(batches): issue(b + NB)
        for t in range(2):
            f = (X_, s, t)
            dst = place[f][1] if place[f][0] == 'v' else 96 + 8*t
            for q in range(8):
                A(f"v_perm_b32 v{dst+q}, v{32+16*(b%4)+2*q+1}, v{32+16*(b%4)+2*q}, s{sPHi if t else sPLo}")
            put_frag(A, f, dst)
    srd(A, sW, 40, 4194304)
    A(f"s_lshl_b32 s{sT1}, s{sR}, 17")
    A(f"s_lshl_b32 s{sT2}, s{sWv}, 8")
    A(f"s_add_u32 s{sT1}, s{sT1}, s{sT2}")
    for k in range(2):
        for ib in range(16):
            e = 64*k + 32*(ib>>3) + 8*((ib>>1)&1) + 2*((ib>>2)&1) + (ib&1)
            A(f"s_add_u32 s{sT0}, s{sT1}, {e*1024}")
            A(f"buffer_load_dwordx4 {vr(32+4*ib,4)}, v28, s[{sW}:{sW+3}], s{sT0} offen")
        A.wait_vm()
        for t in range(8):
            f = ('o', k, t)
            dst = place[f][1] if place[f][0] == 'v' else 96 + 8*(t&1)
            for q in range(8):
                A(f"v_perm_b32 v{dst+q}, v{32+4*(2*q+1)+(t>>1)}, v{32+4*(2*q)+(t>>1)}, s{sPHi if t&1 else sPLo}")
            put_frag(A, f, dst)
        A.wait_lds()

def nops(A, n):
    while n > 0:
        k = min(n, 8); A(f"s_nop {k-1}"); n -= k

def flagload(tmp):
    ws = f"s[{sWS}:{sWS+3}]"
    return (f"buffer_load_dwordx4 {vr(tmp,4)}, v{vL16}, {ws}, s{sFKT} offen sc1\ns_waitcnt vmcnt(0)\n"
            f"v_and_b32 v{tmp}, v{tmp}, v{tmp+1}\nv_and_b32 v{tmp+2}, v{tmp+2}, v{tmp+3}\nv_and_b32 v{tmp}, v{tmp}, v{tmp+2}\n"
            f"v_cmp_ne_u32 s[{sKM_}:{sKM_+1}], 0, v{tmp}\ns_nop 4\n")

def ktload(A):
    ws = f"s[{sWS}:{sWS+3}]"
    A(f"buffer_load_dwordx4 {vr(KT,4)}, v{vKTg}, {ws}, s{sKT} offen sc1")
    A(f"buffer_load_dwordx4 {vr(KT+4,4)}, v{vKTg}, {ws}, s{sKT1} offen sc1")
def vtload(A):
    ws = f"s[{sWS}:{sWS+3}]"
    A(f"buffer_load_dwordx4 {vr(VT,4)}, v{vL16}, {ws}, s{sVT} offen offset:2048 sc1")
    A(f"buffer_load_dwordx4 {vr(VT+4,4)}, v{vL16}, {ws}, s{sVT} offen offset:3072 sc1")

MF = "v_mfma_f32_16x16x32_bf16"
DPP8 = "row_ror:8 row_mask:0xf bank_mask:"

def team_step(A, o, OOL):
    ws = f"s[{sWS}:{sWS+3}]"
    def ST(i):
        if o.get('prof') and (o.get('pm', 0xfff) >> i) & 1: A(f"s_memtime s[{76+2*i}:{77+2*i}]")
    tmp = P + 8
    A("L_t_ring:")
    A.vm = []; A.lds = []
    A(f"buffer_load_dwordx4 {vr(P,4)}, v{vL16}, {ws}, s{sRingR} offen sc1")
    A(f"buffer_load_dwordx4 {vr(P+4,4)}, v{vL16}, {ws}, s{sRingR} offen offset:1024 sc1")
    A("s_waitcnt vmcnt(1) lgkmcnt(0)")
    A(f"v_max3_u32 v{tmp}, v{P}, v{P+1}, v{P+2}")
    A(f"ds_write_b128 v{vXP0}, {vr(P,4)}")
    A.wait_vm()
    A(f"v_max3_u32 v{tmp}, v{tmp}, v{P+3}, v{P+4}")
    A(f"ds_write_b128 v{vXP0}, {vr(P+4,4)} offset:1024")
    A(f"v_max3_u32 v{tmp}, v{tmp}, v{P+5}, v{P+6}")
    A(f"v_max_u32 v{tmp}, v{tmp}, v{P+7}")
    A(f"v_cmp_eq_u32 vcc, -1, v{tmp}")
    A(f"s_cbranch_vccnz L_t_ring_re")
    OOL.append(retry("L_t_ring_re", "L_t_ring", "L_t_ring_ok"))
    A("L_t_ring_ok:")
    ST(0)
    side = {}
    def at(pos, fn): side.setdefault(pos, []).append(fn if callable(fn) else (lambda: A(fn)))
    def run(order):
        for pos, f in enumerate(order):
            smf(A, f)
            for fn in side.get(pos, []): fn()
        side.clear()
    b1 = o.get('b1', 2)
    def bar1():
        A.wait_lds(); A("s_barrier"); ST(1)
    at(b1, bar1)
    for s in range(2, 8):
        at(b1 + (s-2)//2, lambda s=s: A(f"ds_read_b128 {vr(P+4*s,4)}, v{vXP0+(s>>1)} offset:{(s&1)*1024}", tag=('xp', s)))
    for i, f in enumerate(G[1]): at(b1 + 3 + i, lambda f=f: lds_fetch(A, f))
    p = b1 + 7
    for n in range(2):
        at(p, lambda n=n: A(f"buffer_store_dwordx4 {vr(PM,4)}, v{vL16}, {ws}, s{sInA} offen offset:{n*1024}", tag='arm'))
    if not o.get('nokm'): at(p+1, f"buffer_store_dwordx4 {vr(KV4,4)}, v{vL16}, {ws}, s{sKM} offen sc1\ns_add_u32 s{sKM}, s{sKM}, 131072")
    def flagchk():
        A("L_t_fl:")
        A(f"s_bitcmp1_b64 s[{sKM_}:{sKM_+1}], s{sFB}")
        A("s_cbranch_scc0 L_t_fl_re")
        OOL.append("L_t_fl_re:\n" + flagload(PM) + retry("L_t_fl_re2", "L_t_fl", "L_t_fl_ok"))
        A("L_t_fl_ok:")
    at(p+3, flagchk)
    at(p+4, ("" if o.get('nopf') else f"buffer_load_dword v{vDum}, v{vPf}, {ws}, s{sPF} offen sc1\n") + f"s_cmp_lt_u32 s{sFB}, 63")
    at(p+5, f"s_cselect_b32 s{sT0}, 524288, 0\ns_addc_u32 s{sFB}, s{sFB}, 0")
    at(p+6, f"s_add_u32 s{sPF}, s{sPF}, s{sT0}\ns_xor_b32 s{sInA}, s{sInA}, {PARX}")
    at(p+7, f"s_xor_b32 s{sRingR}, s{sRingR}, 8192")
    qf = 24 + o.get('qf', 1)
    at(qf, f"v_add_f32 v{QA}, v{QA}, v{QA+2}\nv_add_f32 v{QA+1}, v{QA+1}, v{QA+3}")
    at(qf+1, f"v_add_f32 v{QA+4}, v{QA+4}, v{QA+6}\nv_add_f32 v{QA+5}, v{QA+5}, v{QA+7}")
    at(qf+2, f"v_cvt_pk_bf16_f32 v{QA+2}, v{QA}, v{QA+4}\nv_cvt_pk_bf16_f32 v{QA+3}, v{QA+1}, v{QA+5}")
    at(qf+2, lambda: A(f"ds_write2_b32 v{vQw}, v{QA+2}, v{QA+3} offset0:0 offset1:4", tag='qw'))
    def barq():
        A.wait_lds(); A("s_barrier")
        for n in range(2): A(f"ds_read_b128 {vr(QA+4*n,4)}, v{vL16} offset:{L_Q+n*1024}", tag=('q2', n))
    at(qf + 2 + o.get('bq', 4), barq)
    for i, pos in enumerate((o.get('x8', 11), o.get('x9', 17), o.get('x10', 23), o.get('x11', 29))): at(pos, lambda i=i: ST(8+i))
    run(OWN + QO + KO)
    ST(2)
    vq = list(VO)
    def V(n=1):
        for _ in range(n):
            if vq: smf(A, vq.pop(0))
    V(o.get('v0', 0))
    for n in range(2):
        A.wait_lds(('q2', n))
        A(f"{MF} {vr(PM,4)}, {vr(KT+4*n,4)}, {vr(QA+4*n,4)}, {vr(PM,4) if n else 0}")
    A(f"v_add_f32 v{KA}, v{KA}, v{KA+2}\nv_add_f32 v{KA+1}, v{KA+1}, v{KA+3}")
    A(f"v_add_f32 v{KA+4}, v{KA+4}, v{KA+6}\nv_add_f32 v{KA+5}, v{KA+5}, v{KA+7}")
    A(f"v_cvt_pk_bf16_f32 v{KV4}, v{KA}, v{KA+4}\nv_cvt_pk_bf16_f32 v{KV4+1}, v{KA+1}, v{KA+5}")
    A(f"ds_write2_b32 v{vKw}, v{KV4}, v{KV4+1} offset0:0 offset1:4", tag='kw')
    def sfin(D):
        A(f"v_add_f32_dpp v{D}, v{D+2}, v{D} {DPP8}0x3")
        A(f"v_add_f32_dpp v{D}, v{D+1}, v{D+3} {DPP8}0xc")
        A(f"v_cvt_pk_bf16_f32 v{D}, 0, v{D}")
        A(f"v_mul_f32 v{D}, s{sScale}, v{D}")
        A(f"v_cvt_pk_bf16_f32 v{D}, 0, v{D}")
    sfin(PM)
    A(f"ds_write_b32 v{vSw}, v{PM} offset:{L_ST}", tag='sw')
    V(o.get('v1', 2))
    two = o.get('two', 1)
    A.wait_lds('kw' if two else None)
    A("s_barrier")
    ST(3)
    for n in range(2): A(f"ds_read_b128 {vr(KA+4*n,4)}, v{vL16} offset:{L_K+n*1024}", tag=('k2', n))
    if two:
        V(o.get('v2', 1))
        A.wait_lds('sw')
        A("s_barrier")
    X = KT + 4
    A(f"ds_read_b128 {vr(X,4)}, v{vL16} offset:{L_ST}", tag='st')
    A(f"v_mov_b32 v{PM+1}, 0")
    V(1)
    lds_fetch(A, G[2][0])
    A(f"v_mov_b32 v{PM+2}, 0")
    for i in range(1, 4):
        V(1); lds_fetch(A, G[2][i])
    V(o.get('v3', 1))
    for n in range(2):
        A.wait_lds(('k2', n))
        A(f"{MF} {vr(KT,4)}, {vr(KA+4*n,4)}, {vr(QA+4*n,4)}, {vr(KT,4) if n else 0}")
    sm, mx, t1, t2, PT = KT, KA, KT+2, KT+3, QA+4
    A.wait_lds('st')
    A(f"v_max3_f32 v{mx}, v{X}, v{X+1}, v{X+2}")
    V(o.get('v4', 1))
    sfin(KT)
    A(f"v_max3_f32 v{mx}, v{mx}, v{X+3}, v{sm}")
    V(1)
    A(f"v_max_f32_dpp v{mx}, v{mx}, v{mx} {DPP8}0xf")
    for sw in ('16', '32'):
        A(f"v_mov_b32 v{t1}, v{mx}")
        V(1)
        A(f"v_permlane{sw}_swap_b32 v{t1}, v{mx}")
        A(f"v_max_f32 v{mx}, v{mx}, v{t1}")
    V(16)
    ST(4)
    A(f"v_mul_f32 v{mx}, s{sL2E}, v{mx}")
    S5 = [X, X+1, X+2, X+3, sm]
    for r in S5: A(f"v_fma_f32 v{r}, v{r}, s{sL2E}, -v{mx}")
    for r in S5: A(f"v_exp_f32 v{r}, v{r}")
    A(f"v_cvt_pk_bf16_f32 v{PT}, v{X}, v{X+1}")
    A(f"v_cvt_pk_bf16_f32 v{PT+1}, v{X+2}, v{X+3}")
    A(f"v_mov_b32_dpp v{t1}, v{sm} {DPP8}0xf")
    A(f"v_mov_b32_dpp v{PT+2}, v{PT} {DPP8}0xf")
    A(f"v_mov_b32_dpp v{PT+3}, v{PT+1} {DPP8}0xf")
    A(f"v_pk_add_f32 {vr(VA,2)}, {vr(VA,2)}, {vr(VA+2,2)}")
    A(f"v_pk_add_f32 {vr(VA+4,2)}, {vr(VA+4,2)}, {vr(VA+6,2)}")
    OA = KA
    A(f"{MF} {vr(OA,4)}, {vr(VT,4)}, {vr(PT,4)}, 0")
    A(f"v_cvt_pk_bf16_f32 v{KV4+2}, v{VA}, v{VA+1}")
    A(f"v_cvt_pk_bf16_f32 v{KV4+3}, v{VA+4}, v{VA+5}")
    A(f"{MF} {vr(OA+4,4)}, {vr(VT+4,4)}, {vr(PT,4)}, 0")
    A(f"v_cvt_pk_bf16_f32 v{PM}, v{sm}, v{t1}")
    A(f"v_cvt_pk_bf16_f32 v{PM+3}, v{sm}, v{t1}")
    A(f"s_cmp_eq_u32 s{sS}, 63")
    A(f"s_cbranch_scc1 L_t_tail")
    A(f"v_add_f32 v{t2}, v{X}, v{X+1}")
    A(f"v_mfma_f32_16x16x16_bf16 {vr(OA,4)}, {vr(KV4+2,2)}, {vr(PM,2)}, {vr(OA,4)}")
    A(f"v_add_f32 v{X+2}, v{X+2}, v{X+3}")
    A(f"v_add_f32 v{t2}, v{t2}, v{sm}")
    A(f"v_mfma_f32_16x16x16_bf16 {vr(OA+4,4)}, {vr(KV4+2,2)}, {vr(PM+2,2)}, {vr(OA+4,4)}")
    A(f"v_add_f32 v{t2}, v{t2}, v{X+2}")
    if not o.get('nokv'): vtload(A)
    A(f"v_add_f32_dpp v{t2}, v{t2}, v{t2} {DPP8}0xf")
    zq = [P + i for i in range(0, 32, 2)]
    def Z(n=1):
        for _ in range(n):
            if zq: A(f"v_mov_b64 {vr(zq.pop(0),2)}, 0")
    for sw in ('16', '32'):
        A(f"v_mov_b32 v{t1}, v{t2}")
        Z(2)
        A(f"v_permlane{sw}_swap_b32 v{t1}, v{t2}")
        A(f"v_add_f32 v{t2}, v{t2}, v{t1}")
    A(f"v_rcp_f32 v{t1}, v{t2}")
    Z(1)
    for i in range(0, 8, 2):
        A(f"v_pk_mul_f32 {vr(OA+i,2)}, {vr(OA+i,2)}, {vr(t1,2)} op_sel_hi:[1,0]")
    for r in range(4): A(f"v_cvt_pk_bf16_f32 v{QA+r}, v{OA+r}, v{OA+4+r}")
    A(f"ds_write_b128 v{vXOw}, {vr(QA,4)} offset:{L_O}")
    A.wait_vm('arm')
    if not o.get('nokv'): ktload(A)
    Z(6)
    A.wait_lds()
    ST(5)
    A("s_barrier")
    for n in range(2): A(f"ds_read_b128 {vr(KA+4*n,4)}, v{vL16} offset:{L_O+n*1024}", tag=('o', n))
    A(f"ds_read_b128 {vr(VA,4)}, v{vL16} offset:{L_SEL}", tag='sel')
    Z(16)
    zero64(A, PM, 4, '-1')
    for r in (sKT, sKT1, sVT): A(f"s_add_u32 s{r}, s{r}, 524288")
    A(f"s_add_u32 s{sS}, s{sS}, 1")
    for i, f in enumerate(G[3]): at(i, lambda f=f: lds_fetch(A, f))
    def fin(t):
        d = P + 4*t
        return [f"v_add_f32 v{d}, v{d}, v{d+2}", f"v_add_f32 v{d+1}, v{d+1}, v{d+3}", f"v_cvt_pk_bf16_f32 v{QA+t}, v{d}, v{d+1}"]
    def st(u): return f"buffer_store_dwordx4 {vr(QA+4*u,4)}, v{vInW}, {ws}, s{sInW+u} offen"
    ops = []
    for u in range(3):
        l = fin(2*u) + fin(2*u+1)
        for i, pos in enumerate((5, 5, 6, 6, 7, 8) if u < 2 else (5, 5, 6, 6, 7, 7)): at(4*u + pos, l[i])
    at(12, st(0))
    for i, f in enumerate(G[0]): at(12 + i, lambda f=f: lds_fetch(A, f))
    run(O_ORDER)
    for x in fin(6) + fin(7): A(x)
    A(st(1))
    ST(6)
    A(f"s_cmp_lg_u32 s{sWv}, 0\ns_cbranch_scc1 L_t_w123")
    D0, D1, X0 = KA, KA+4, VA+4
    A(f"s_xor_b32 s{sInW}, s{sInW}, {PARX}\ns_xor_b32 s{sInW+1}, s{sInW+1}, {PARX}")
    zero64(A, QA, 8)
    nops(A, o.get('d1', 0))
    A("L_t_in:")
    A.vm = []
    for u in range(2):
        for n in range(4):
            A(f"buffer_load_dwordx4 {vr(P+16*u+4*n,4)}, v{vL16}, {ws}, s{sInR+u} offen offset:{n*1024} sc1", tag=(u, n))
    A.wait_lds('sel')
    for u in range(2):
        for n in range(4):
            A.wait_vm((u, n))
            A(f"{MF} {vr(KA+4*u,4)}, {vr(VA,4)}, {vr(P+16*u+4*n,4)}, {vr(KA+4*u,4) if n else 0}")
            if u == 1 and n == 3:
                for e in range(2): A(f"v_add_f32_dpp v{X0+e}, v{D0+e}, v{D0+e} {DPP8}0x3")
    for e in range(2): A(f"v_add_f32_dpp v{X0+e}, v{D1+e}, v{D1+e} {DPP8}0xc")
    A(f"v_cmp_u_f32 vcc, v{X0}, v{X0+1}")
    A(f"v_cvt_pk_bf16_f32 v{X0+2}, v{X0}, v{X0+1}")
    A("s_cbranch_vccnz L_t_in_re")
    OOL.append(retry("L_t_in_re", "L_t_in", "L_t_in_ok"))
    A("L_t_in_ok:")
    A(f"buffer_store_dword v{X0+2}, v{vPub}, {ws}, s{sRingW} offen")
    A("s_barrier")
    ST(7)
    A(f"buffer_store_dword v{PM}, v{vPub}, {ws}, s{sRingA} offen")
    A(f"s_xor_b32 s{sRingW}, s{sRingW}, 8192\ns_xor_b32 s{sRingA}, s{sRingA}, 8192")
    A(f"s_xor_b32 s{sInR}, s{sInR}, {PARX}\ns_xor_b32 s{sInR+1}, s{sInR+1}, {PARX}")
    zero64(A, KA, 16)
    nops(A, max(0, o.get('d2', 0) - 13))
    def prof_dump(back):
        if not o.get('prof'): return
        A(f"s_cmp_eq_u32 s{sS}, 40\ns_cbranch_scc1 L_t_dump")
    prof_dump(0)
    A("s_branch L_t_ring")
    A("L_t_w123:")
    A(f"s_xor_b32 s{sInW}, s{sInW}, {PARX}\ns_xor_b32 s{sInW+1}, s{sInW+1}, {PARX}")
    A("s_waitcnt lgkmcnt(8)")
    zero64(A, QA, 24)
    A("s_barrier")
    ST(7)
    nops(A, o.get('d2', 0))
    prof_dump(0)
    A("s_branch L_t_ring")
    if o.get('prof'):
        d = "L_t_dump:\ns_waitcnt lgkmcnt(0)\n"
        d += f"s_lshl_b32 s{sT0}, s{sR}, 8\ns_lshl_b32 s{sT1}, s{sWv}, 6\ns_add_u32 s{sT0}, s{sT0}, s{sT1}\ns_add_u32 s{sT0}, s{sT0}, {PROF}\n"
        for i in range(12):
            d += f"v_mov_b32 v{P+8+i}, s{76+2*i}\nbuffer_store_dword v{P+8+i}, off, {ws}, s{sT0} offset:{4*i}\n"
        d += "s_branch L_t_ring"
        OOL.append(d)

def emit_team(A, o):
    ws = f"s[{sWS}:{sWS+3}]"
    OOL = []
    team_setup(A, o)
    team_weights(A, o)
    if o.get('time'): A("s_memtime s[70:71]")
    wait_cnt(A, OOL, "L_t_arm", D_ARM, 32)
    wait_cnt(A, OOL, "L_t_cx", D_CX, N_CX)
    A("L_t_f0:")
    A(flagload(32))
    A(f"s_and_b32 s{sT0}, s{sKM_}, 3\ns_cmp_eq_u32 s{sT0}, 3")
    A("s_cbranch_scc0 L_t_f0_re")
    OOL.append(retry("L_t_f0_re", "L_t_f0", "L_t_f0_ok"))
    A("L_t_f0_ok:")
    ktload(A); vtload(A)
    for r in (sKT, sKT1, sVT): A(f"s_add_u32 s{r}, s{r}, 524288")
    A(f"buffer_load_dword v{vDum}, v{vPf}, {ws}, s{sVT} offen sc1")
    A(f"s_add_u32 s{sPF}, s{sVT}, 524288")
    A(f"s_mov_b32 s{sFB}, 2")
    A(f"s_mov_b32 s{sS}, 0")
    zero64(A, KV4, 4)
    zero64(A, PM, 4, '-1')
    zero64(A, QA, 24)
    A.lds = []
    for f in G[0]: lds_fetch(A, f)
    if o.get('time'): A("s_memtime s[72:73]")
    team_step(A, o, OOL)
    A("L_t_tail:")
    A(f"buffer_store_dwordx4 {vr(KV4,4)}, v{vL16}, {ws}, s{sKM} offen sc1")
    A("s_waitcnt vmcnt(0) lgkmcnt(0)")
    if o.get('time'):
        A("s_memtime s[74:75]")
        A("s_waitcnt lgkmcnt(0)")
        A(f"s_or_b32 s{sT0}, s{sR}, s{sWv}\ns_cbranch_scc1 L_t_end")
        A("s_mov_b64 exec, 1")
        A("s_sub_u32 s70, s70, s68\ns_sub_u32 s72, s72, s68\ns_sub_u32 s74, s74, s68")
        A(f"v_mov_b32 v32, s70\nv_mov_b32 v33, s72\nv_mov_b32 v34, s74\nv_mov_b32 v35, s{sSpin}\nv_mov_b32 v31, 96")
        A("global_store_dwordx4 v31, v[32:35], s[4:5]")
        A("L_t_end:")
    A("s_endpgm")
    for t in OOL: A(t)
```

```python
from asmlib import *
from layout import *
import gen_team as G1
from gen_team import (f2u, srd, retry, wait_cnt, zero64, prologue,
                      sWS, sW, sXCC, sR, sWv, sT0, sT1, sT2, sT3, sPLo, sPHi, sScale, sL2E, sSpin)

vL16, vWL, vXP0, vXP1, vXP2, vXP3, vIdx, vQw, vKw, vSw, vXOw, vInW, vPub, vKTg, vPf, vDum = range(16)
P, QA, KA, VA, KT, VT, PM, KV4, T, WV = 16, 48, 56, 64, 72, 80, 88, 92, 96, 128
sS, sRingR, sRingW, sRingA = 20, 21, 22, 23
sInW, sInR = 24, 26
sKT, sKT1, sVT, sPF, sKM, sFB, sFKT = 29, 30, 31, 32, 35, 37, 33
sRow = 54
sKM_ = 64
L_XP, L_Q, L_K, L_ST, L_O, L_SEL, L_W = 0, 8192, 10240, 12288, 13312, 17408, 32768
PARX = 262144

OWN = [(x, s, t) for x in 'qkv' for s in range(2) for t in range(2)]
QO = [('q', s, t) for s in range(2, 8) for t in range(2)]
KO = [('k', s, t) for s in range(2, 8) for t in range(2)]
VO = [('v', s, t) for s in range(2, 8) for t in range(2)]
O_ORDER = [('o', k, 2*u+t) for u in range(4) for k in range(2) for t in range(2)]
GH = list(zip(OWN[:7], (P+8, P+16, P+24, T, T+8, T+16, T+24)))
GM = list(zip(QO[8:12], (T, T+8, T+16, T+24)))
GO = list(zip(O_ORDER[:4], (T, T+8, T+16, T+24)))
GV = [(O_ORDER[15], VT)]
place = {}
for i, (f, r) in enumerate(GH + GM + GO + GV): place[f] = ('l', i, r)
rest = [f for f in OWN + QO + KO + VO + O_ORDER if f not in place]
assert len(rest) == 48
for i, f in enumerate(rest):
    place[f] = ('a', 8*i) if i < 32 else ('v', WV + 8*(i-32))

def breg(f):
    p = place[f]
    if p[0] == 'l': return vr(p[2], 8)
    return vr(p[1], 8, p[0])

def lds_half(A, f, h):
    _, i, r = place[f]
    A(f"ds_read_b128 {vr(r+4*h,4)}, v{vWL} offset:{i*2048+1024*h}", tag=f)

def halves(grp): return [(f, h) for f, _ in grp for h in range(2)]

def smf(A, f):
    X_, s, t = f
    if place[f][0] == 'l': A.wait_lds(f)
    if X_ == 'o':
        A.wait_lds(('o', s))
        acc, a = P + 4*t, KA + 4*s
    else:
        if s >= 2: A.wait_lds(('xp', s))
        acc, a = {'q': QA, 'k': KA, 'v': VA}[X_] + 4*t, P + 4*s
    A(f"v_smfmac_f32_16x16x64_bf16 {vr(acc,4)}, {vr(a,4)}, {breg(f)}, v{vIdx}")

def put_frag(A, f, src):
    p = place[f]
    if p[0] == 'l':
        A(f"ds_write_b128 v{vWL}, {vr(src,4)} offset:{p[1]*2048}")
        A(f"ds_write_b128 v{vWL}, {vr(src+4,4)} offset:{p[1]*2048+1024}")
    elif p[0] == 'a':
        for q in range(8): A(f"v_accvgpr_write_b32 a{p[1]+q}, v{src+q}")

def bits(A, dst, terms, tmp, base=None):
    first = True
    for (src, lo, n, sh) in terms:
        A(f"v_bfe_u32 v{tmp}, v{src}, {lo}, {n}")
        if first and base is None: A(f"v_lshlrev_b32 v{dst}, {sh}, v{tmp}")
        elif first: A(f"v_lshl_add_u32 v{dst}, v{tmp}, {sh}, {base}")
        else: A(f"v_lshl_add_u32 v{dst}, v{tmp}, {sh}, v{dst}")
        first = False

def team_setup(A, o):
    ws = f"s[{sWS}:{sWS+3}]"
    t0, tid = 20, 21
    A(f"v_mov_b32 v{tid}, v0")
    B = lambda dst, terms, base=None: bits(A, dst, [(tid,) + t for t in terms], t0, base)
    B(vL16, [(0, 6, 4)])
    A(f"s_mov_b32 s{sT0}, {L_W}")
    B(vWL, [(0, 6, 4), (6, 2, 15)], f"s{sT0}")
    B(vXP0, [(0, 6, 4), (6, 2, 11)])
    for a in range(1, 4): A(f"v_xor_b32 v{vXP0+a}, {a*2048}, v{vXP0}")
    A(f"v_bfe_u32 v{t0}, v{tid}, 1, 1")
    A(f"v_mul_u32_u24 v{t0}, 0xAAAA, v{t0}")
    A(f"v_add_u32 v{vIdx}, 0x4444, v{t0}")
    A(f"s_mov_b32 s{sT0}, {L_Q}")
    B(vQw, [(7, 1, 10), (2, 2, 8), (6, 1, 7), (4, 2, 5), (0, 2, 2)], f"s{sT0}")
    A(f"s_mov_b32 s{sT0}, {L_K}")
    B(vKw, [(7, 1, 10), (2, 2, 8), (4, 2, 6), (6, 1, 5), (0, 2, 2)], f"s{sT0}")
    B(vSw, [(6, 2, 8), (5, 1, 7), (0, 3, 4), (4, 1, 3), (3, 1, 2)])
    B(vXOw, [(6, 2, 9), (5, 1, 8), (1, 2, 6), (4, 1, 5), (0, 1, 4), (3, 1, 11)])
    B(vInW, [(2, 2, 14), (4, 1, 13), (5, 1, 11), (0, 2, 4)])
    B(vPub, [(2, 2, 28), (4, 1, 5), (5, 1, 4), (0, 2, 2)])
    B(vKTg, [(1, 1, 12), (3, 1, 10), (4, 2, 8), (6, 2, 6), (2, 1, 5), (0, 1, 4)])
    B(vPf, [(0, 6, 6)])
    A(f"v_mov_b32 v{vDum}, 0")
    B(26, [(5, 1, 10), (0, 2, 4), (4, 1, 2)])
    B(27, [(4, 2, 17), (0, 4, 2)])
    B(28, [(5, 1, 14), (4, 1, 12), (0, 4, 4)])
    B(22, [(2, 1, 1), (0, 1, 0)])
    B(23, [(3, 1, 4)])
    A(f"v_mov_b32 v24, 0x3f80")
    A(f"v_lshlrev_b32 v23, v23, v24")
    for j in range(4):
        A(f"v_cmp_eq_u32 vcc, {j}, v22")
        A(f"v_cndmask_b32 v{32+j}, 0, v23, vcc")
    A(f"ds_write_b128 v{vL16}, v[32:35] offset:{L_SEL}")
    A(f"s_mov_b32 s{sScale}, {f2u(128**-0.5)}")
    A(f"s_mov_b32 s{sL2E}, {f2u(1.4426950408889634)}")
    A(f"s_lshl_b32 s{sT0}, s{sWv}, 16\ns_lshl_b32 s{sT1}, s{sR}, 6\ns_add_u32 s{sT0}, s{sT0}, s{sT1}")
    A(f"s_add_u32 s{sInW}, s{sT0}, {INBOX}\ns_add_u32 s{sInW+1}, s{sT0}, {INBOX+4096}")
    A(f"s_lshl_b32 s{sT0}, s{sR}, 13")
    A(f"s_lshl_b32 s{sRingR}, s{sWv}, 11")
    A(f"s_add_u32 s{sInR}, s{sT0}, {INBOX}\ns_add_u32 s{sInR}, s{sInR}, s{sRingR}")
    A(f"s_lshl_b32 s{sFKT}, s{sR}, 10\ns_add_u32 s{sFKT}, s{sFKT}, {F_KT}")
    A(f"s_lshl_b32 s{sKT}, s{sR}, 14\ns_add_u32 s{sKT}, s{sKT}, {KTV}")
    A(f"s_add_u32 s{sKT1}, s{sKT}, 8192")
    A(f"s_lshl_b32 s{sT0}, s{sWv}, 12\ns_add_u32 s{sVT}, s{sKT}, s{sT0}")
    A(f"s_lshl_b32 s{sT0}, s{sR}, 12\ns_lshl_b32 s{sT1}, s{sWv}, 10\ns_add_u32 s{sT0}, s{sT0}, s{sT1}")
    A(f"s_add_u32 s{sKM}, s{sT0}, {KMVM - 131072}")
    assert RING == 0
    def sbits(dst, terms):
        for i, (src, lo, n, sh) in enumerate(terms):
            A(f"s_bfe_u32 s{sT3}, s{src}, {(n << 16) | lo}")
            A(f"s_lshl_b32 s{sT3 if i else dst}, s{sT3}, {sh}")
            if i: A(f"s_add_u32 s{dst}, s{dst}, s{sT3}")
    sbits(sRingA, [(sR, 3, 2, 11), (sWv, 1, 1, 10), (sR, 1, 2, 8), (sWv, 0, 1, 7), (sR, 0, 1, 6)])
    A(f"s_add_u32 s{sRingW}, s{sRingA}, 8192")
    sbits(sT0, [(sR, 0, 5, 8), (sWv, 0, 2, 6)])
    for a in range(4):
        A(f"s_xor_b32 s{sT3}, s{sWv}, {a}\ns_lshl_b32 s{sT3}, s{sT3}, 20\ns_add_u32 s{sRow+a}, s{sT3}, s{sT0}")
    srd(A, sW, 8, 8192)
    sbits(sT0, [(sWv, 0, 1, 12), (sR, 0, 1, 11), (sR, 3, 2, 8), (sR, 1, 2, 6), (sWv, 1, 1, 3)])
    A(f"buffer_load_dword v29, v26, s[{sW}:{sW+3}], s{sT0} offen")
    for q in range(4): A(f"v_mov_b32 v{36+q}, -1")
    for par in range(2):
        for n in range(2):
            A(f"buffer_store_dwordx4 v[36:39], v{vL16}, {ws}, s{sInR} offen offset:{n*1024}")
        A(f"s_xor_b32 s{sInR}, s{sInR}, {PARX}")
    A(f"buffer_store_dword v36, v{vPub}, {ws}, s{sRingW} offen")
    A.wait_vm()
    A(f"buffer_store_dword v29, v{vPub}, {ws}, s{sRingA} offen")
    A.wait_vm()
    A("s_barrier")
    A(f"s_cmp_lg_u32 s{sWv}, 0\ns_cbranch_scc1 L_t_noarr")
    A("s_mov_b64 exec, 1")
    A(f"v_mov_b32 v30, 1\nv_mov_b32 v31, {D_ARM}")
    A(f"global_atomic_add v31, v30, s[4:5] sc1")
    A("s_mov_b64 exec, -1")
    A("L_t_noarr:")

def team_weights(A, o):
    batches = [(X_, s) for X_ in 'qkv' for s in range(8)]
    NB = 3
    def issue(b):
        X_, s = batches[b]
        if s == 0: srd(A, sW, {'q': 16, 'k': 24, 'v': 32}[X_], 4194304)
        for ib in range(16):
            d = 64*(ib>>3) + 8*((ib>>2)&1) + 4*(s&1) + (ib&3)
            A(f"s_add_u32 s{sT0}, s{sRow+(s>>1)}, {d*8192}")
            A(f"buffer_load_dword v{32+16*(b%4)+ib}, v27, s[{sW}:{sW+3}], s{sT0} offen", tag=('w', b))
    for b in range(NB): issue(b)
    for b in range(len(batches)):
        X_, s = batches[b]
        A.wait_vm(('w', b))
        if b + NB < len(batches): issue(b + NB)
        for t in range(2):
            f = (X_, s, t)
            dst = place[f][1] if place[f][0] == 'v' else 96 + 8*t
            for q in range(8):
                A(f"v_perm_b32 v{dst+q}, v{32+16*(b%4)+2*q+1}, v{32+16*(b%4)+2*q}, s{sPHi if t else sPLo}")
            put_frag(A, f, dst)
    srd(A, sW, 40, 4194304)
    A(f"s_lshl_b32 s{sT1}, s{sR}, 17")
    A(f"s_lshl_b32 s{sT2}, s{sWv}, 8")
    A(f"s_add_u32 s{sT1}, s{sT1}, s{sT2}")
    for k in range(2):
        for ib in range(16):
            e = 64*k + 32*(ib>>3) + 8*((ib>>1)&1) + 2*((ib>>2)&1) + (ib&1)
            A(f"s_add_u32 s{sT0}, s{sT1}, {e*1024}")
            A(f"buffer_load_dwordx4 {vr(32+4*ib,4)}, v28, s[{sW}:{sW+3}], s{sT0} offen")
        A.wait_vm()
        for t in range(8):
            f = ('o', k, t)
            dst = place[f][1] if place[f][0] == 'v' else 96 + 8*(t&1)
            for q in range(8):
                A(f"v_perm_b32 v{dst+q}, v{32+4*(2*q+1)+(t>>1)}, v{32+4*(2*q)+(t>>1)}, s{sPHi if t&1 else sPLo}")
            put_frag(A, f, dst)
        A.wait_lds()

def nops(A, n):
    while n > 0:
        k = min(n, 8); A(f"s_nop {k-1}"); n -= k

def flagload(tmp):
    ws = f"s[{sWS}:{sWS+3}]"
    return (f"buffer_load_dwordx4 {vr(tmp,4)}, v{vL16}, {ws}, s{sFKT} offen sc1\ns_waitcnt vmcnt(0)\n"
            f"v_and_b32 v{tmp}, v{tmp}, v{tmp+1}\nv_and_b32 v{tmp+2}, v{tmp+2}, v{tmp+3}\nv_and_b32 v{tmp}, v{tmp}, v{tmp+2}\n"
            f"v_cmp_ne_u32 s[{sKM_}:{sKM_+1}], 0, v{tmp}\ns_nop 4\n")

MF = "v_mfma_f32_16x16x32_bf16"
DPP8 = "row_ror:8 row_mask:0xf bank_mask:"


DPP4 = "row_ror:4 row_mask:0xf bank_mask:0xf"

def poll(A, OOL, name, dst, soff, tmp, depth, gap, fill, use, redo=""):
    ws = f"s[{sWS}:{sWS+3}]"
    def issue():
        for n in range(2): A(f"buffer_load_dwordx4 {vr(dst+4*n,4)}, v{vL16}, {ws}, s{soff} offen offset:{n*1024} sc1")
    for i in range(depth - 1):
        issue()
        k = gap
        while fill and k > 0: fill.pop(0)(); k -= 1
        nops(A, k)
    issue()
    while fill: fill.pop(0)()
    A(f"{name}:")
    w = 2 * (depth - 1)
    A(f"s_waitcnt vmcnt({w+1})")
    if depth == 1: use(0)
    A(f"v_max3_u32 v{tmp}, v{dst}, v{dst+1}, v{dst+2}")
    A(f"v_max_u32 v{tmp}, v{tmp}, v{dst+3}")
    if depth > 1: use(0)
    A(f"s_waitcnt vmcnt({w})")
    if depth == 1: use(1)
    A(f"v_max3_u32 v{tmp}, v{tmp}, v{dst+4}, v{dst+5}")
    A(f"v_max3_u32 v{tmp}, v{tmp}, v{dst+6}, v{dst+7}")
    if depth > 1: use(1)
    A(f"v_cmp_eq_u32 vcc, -1, v{tmp}")
    A(f"s_cbranch_vccnz {name}_re")
    ld = "\n".join(f"buffer_load_dwordx4 {vr(dst+4*n,4)}, v{vL16}, {ws}, s{soff} offen offset:{n*1024} sc1" for n in range(2))
    OOL.append(f"{name}_re:\n{ld}\n{redo}\n" + retry(f"{name}_re2", name, f"{name}_ok"))
    A(f"{name}_ok:")
    A.vm = ['poll'] * w

def team_step(A, o, OOL):
    ws = f"s[{sWS}:{sWS+3}]"
    def ST(i):
        if o.get('prof') and (o.get('pm', 0xfff) >> i) & 1: A(f"s_memtime s[{76+2*i}:{77+2*i}]")
    nv0 = o.get('nv0', 4)
    spec = o.get('spec', 1)
    order = OWN[:8+nv0] + QO + KO
    A("L_t_pre:")
    A.vm = []; A.lds = []
    def use_ring(n):
        if n == 0: A("s_waitcnt lgkmcnt(0)")
        A(f"ds_write_b128 v{vXP0}, {vr(P+4*n,4)} offset:{n*1024}", tag='xw')
        if spec and n == 0: smf(A, order[0])
        if spec and n == 1: smf(A, order[1])
    redo = "s_nop 7\ns_nop 7\n" + "\n".join(f"v_mov_b64 {vr(QA+i,2)}, 0" for i in range(0, 8, 2)) if spec else ""
    poll(A, OOL, "L_t_ring", P, sRingR, PM, o.get('dp2', 1), o.get('g2', 24), [], use_ring, redo)
    if o.get('prof'): A("s_mov_b64 s[98:99], s[76:77]\ns_mov_b64 s[96:97], s[90:91]")
    ST(0)
    side = {}
    def at(pos, fn): side.setdefault(pos, []).append(fn if callable(fn) else (lambda: A(fn)))
    def run(order, skip=0):
        for pos, f in enumerate(order):
            if pos >= skip: smf(A, f)
            for fn in side.get(pos, []): fn()
        assert max(side) < len(order)
        side.clear()
    b1 = o.get('b1', 3)
    pk = o.get('pk', 1)
    at(pk, lambda: A(f"buffer_load_dwordx4 {vr(KT,4)}, v{vKTg}, {ws}, s{sKT} offen sc1", tag='kt'))
    at(pk, lambda: A(f"buffer_load_dwordx4 {vr(KT+4,4)}, v{vKTg}, {ws}, s{sKT1} offen sc1", tag='kt'))
    at(pk+1, lambda: A(f"buffer_load_dwordx4 {vr(VT,4)}, v{vL16}, {ws}, s{sVT} offen offset:2048 sc1", tag='vt'))
    at(pk+1, lambda: A(f"buffer_load_dwordx4 {vr(VT+4,4)}, v{vL16}, {ws}, s{sVT} offen offset:3072 sc1", tag='vt'))
    def flagchk():
        A("L_t_fl:")
        A(f"s_bitcmp1_b64 s[{sKM_}:{sKM_+1}], s{sFB}")
        A("s_cbranch_scc0 L_t_fl_re")
        OOL.append("L_t_fl_re:\n" + flagload(PM) + retry("L_t_fl_re2", "L_t_fl", "L_t_fl_ok"))
        A("L_t_fl_ok:")
        if not o.get('nopf'): A(f"buffer_load_dword v{vDum}, v{vPf}, {ws}, s{sPF} offen sc1")
    at(pk+2, flagchk)
    def bar1():
        A.wait_lds('xw'); A("s_barrier"); ST(1)
    at(b1, bar1)
    xr = o.get('xr', 2)
    for s in range(2, 8):
        at(b1 + (s-2)//xr, lambda s=s: A(f"ds_read_b128 {vr(P+4*s,4)}, v{vXP0+(s>>1)} offset:{(s&1)*1024}", tag=('xp', s)))
    p = b1 + 6//xr
    if not o.get('nokm'): at(p, f"buffer_store_dwordx4 {vr(KV4,4)}, v{vL16}, {ws}, s{sKM} offen sc1\ns_add_u32 s{sKM}, s{sKM}, 131072")
    p = max(p + 1, 7)
    for i, (f, h) in enumerate(halves(GM)): at(p + i, lambda f=f, h=h: lds_half(A, f, h))
    at(p, f"s_cmp_lt_u32 s{sFB}, 63")
    at(p+1, f"s_cselect_b32 s{sT0}, 524288, 0\ns_addc_u32 s{sFB}, s{sFB}, 0")
    at(p+2, f"s_add_u32 s{sPF}, s{sPF}, s{sT0}\ns_xor_b32 s{sRingR}, s{sRingR}, 8192")
    if not o.get('nopf'):
        at(p+3, f"s_add_u32 s{sKT}, s{sKT}, 524288\ns_add_u32 s{sKT1}, s{sKT1}, 524288")
        at(p+4, f"s_add_u32 s{sVT}, s{sVT}, 524288")
    qe = 8 + nv0 + 12
    qf = qe + o.get('qf', 1)
    at(qf, f"v_add_f32 v{QA}, v{QA}, v{QA+2}\nv_add_f32 v{QA+1}, v{QA+1}, v{QA+3}\nv_add_f32 v{QA+4}, v{QA+4}, v{QA+6}")
    at(qf+1, f"v_add_f32 v{QA+5}, v{QA+5}, v{QA+7}")
    at(qf+1, f"v_cvt_pk_bf16_f32 v{QA+2}, v{QA}, v{QA+4}\nv_cvt_pk_bf16_f32 v{QA+3}, v{QA+1}, v{QA+5}")
    at(qf+1, lambda: A(f"ds_write2_b32 v{vQw}, v{QA+2}, v{QA+3} offset0:0 offset1:4", tag='qw'))
    def barq():
        A.wait_lds('qw'); A("s_barrier")
        for n in range(2): A(f"ds_read_b128 {vr(QA+4*n,4)}, v{vL16} offset:{L_Q+n*1024}", tag=('q2', n))
    bq = qf + 1 + o.get('bq', 4)
    at(bq, barq)
    go = halves(GO)
    for pos in [qe] + list(range(qf + 2, bq - 1)) + list(range(bq + 1, len(order))):
        if go: at(pos, lambda fh=go.pop(0): lds_half(A, *fh))
    for i, pos in enumerate((o.get('x8', 11), o.get('x9', 23))): at(pos, lambda i=i: ST(8+i))
    run(order, 2 if spec else 0)
    ST(2)
    vq = OWN[8+nv0:] + VO
    def V(n=1):
        for _ in range(n):
            if vq: smf(A, vq.pop(0))
    V(o.get('v0', 0))
    A.wait_vm('kt')
    for n in range(2):
        A.wait_lds(('q2', n))
        A(f"{MF} {vr(PM,4)}, {vr(KT+4*n,4)}, {vr(QA+4*n,4)}, {vr(PM,4) if n else 0}")
    A(f"v_add_f32 v{KA}, v{KA}, v{KA+2}\nv_add_f32 v{KA+1}, v{KA+1}, v{KA+3}")
    A(f"v_add_f32 v{KA+4}, v{KA+4}, v{KA+6}\nv_add_f32 v{KA+5}, v{KA+5}, v{KA+7}")
    A(f"v_cvt_pk_bf16_f32 v{KV4}, v{KA}, v{KA+4}\nv_cvt_pk_bf16_f32 v{KV4+1}, v{KA+1}, v{KA+5}")
    A(f"ds_write2_b32 v{vKw}, v{KV4}, v{KV4+1} offset0:0 offset1:4", tag='kw')
    V(o.get('va', 0))
    def sfin(D):
        A(f"v_add_f32_dpp v{D}, v{D+2}, v{D} {DPP8}0x3")
        A(f"v_add_f32_dpp v{D}, v{D+1}, v{D+3} {DPP8}0xc")
        A(f"v_cvt_pk_bf16_f32 v{D}, 0, v{D}")
        A(f"v_mul_f32 v{D}, s{sScale}, v{D}")
        A(f"v_cvt_pk_bf16_f32 v{D}, 0, v{D}")
    sfin(PM)
    A(f"ds_write_b32 v{vSw}, v{PM} offset:{L_ST}", tag='sw')
    V(o.get('v1', 2))
    A.wait_lds('kw')
    A("s_barrier")
    ST(3)
    for n in range(2): A(f"ds_read_b128 {vr(KA+4*n,4)}, v{vL16} offset:{L_K+n*1024}", tag=('k2', n))
    V(o.get('v2', 1))
    A.wait_lds('sw')
    A("s_barrier")
    X = KT + 4
    A(f"ds_read_b128 {vr(X,4)}, v{vL16} offset:{L_ST}", tag='st')
    A(f"v_mov_b32 v{PM+1}, 0")
    A(f"v_mov_b32 v{PM+2}, 0")
    for i in range(o.get('v3', 3)):
        V(1)
        if go: lds_half(A, *go.pop(0))
    while go: lds_half(A, *go.pop(0))
    for n in range(2):
        A.wait_lds(('k2', n))
        A(f"{MF} {vr(KT,4)}, {vr(KA+4*n,4)}, {vr(QA+4*n,4)}, {vr(KT,4) if n else 0}")
    sm, mx, t1, t2, PT = KT, KA, KT+2, KT+3, QA+4
    V(o.get('v4', 1))
    A.wait_lds('st')
    A(f"v_max3_f32 v{mx}, v{X}, v{X+1}, v{X+2}")
    V(o.get('v5', 1))
    sfin(KT)
    A(f"v_max3_f32 v{mx}, v{mx}, v{X+3}, v{sm}")
    V(1)
    A(f"v_max_f32_dpp v{mx}, v{mx}, v{mx} {DPP8}0xf")
    for sw in ('16', '32'):
        A(f"v_mov_b32 v{t1}, v{mx}")
        V(1)
        A(f"v_permlane{sw}_swap_b32 v{t1}, v{mx}")
        A(f"v_max_f32 v{mx}, v{mx}, v{t1}")
    ST(4)
    A(f"v_mul_f32 v{mx}, s{sL2E}, v{mx}")
    S5 = [X, X+1, X+2, X+3, sm]
    V(1)
    for r in S5: A(f"v_fma_f32 v{r}, v{r}, s{sL2E}, -v{mx}")
    for r in S5:
        V(1)
        A(f"v_exp_f32 v{r}, v{r}")
    V(16)
    A(f"v_cvt_pk_bf16_f32 v{PT}, v{X}, v{X+1}")
    A(f"v_cvt_pk_bf16_f32 v{PT+1}, v{X+2}, v{X+3}")
    A(f"v_mov_b32_dpp v{t1}, v{sm} {DPP8}0xf")
    A(f"v_mov_b32_dpp v{PT+2}, v{PT} {DPP8}0xf")
    A(f"v_mov_b32_dpp v{PT+3}, v{PT+1} {DPP8}0xf")
    A(f"v_add_f32 v{VA}, v{VA}, v{VA+2}\nv_add_f32 v{VA+1}, v{VA+1}, v{VA+3}")
    A.wait_vm('vt')
    OA = KA
    A(f"{MF} {vr(OA,4)}, {vr(VT,4)}, {vr(PT,4)}, 0")
    A(f"v_add_f32 v{VA+4}, v{VA+4}, v{VA+6}\nv_add_f32 v{VA+5}, v{VA+5}, v{VA+7}")
    A(f"v_cvt_pk_bf16_f32 v{KV4+2}, v{VA}, v{VA+1}")
    A(f"{MF} {vr(OA+4,4)}, {vr(VT+4,4)}, {vr(PT,4)}, 0")
    A(f"v_cvt_pk_bf16_f32 v{KV4+3}, v{VA+4}, v{VA+5}")
    A(f"v_cvt_pk_bf16_f32 v{PM}, v{sm}, v{t1}")
    A(f"v_cvt_pk_bf16_f32 v{PM+3}, v{sm}, v{t1}")
    A(f"s_cmp_eq_u32 s{sS}, 63")
    A(f"s_cbranch_scc1 L_t_tail")
    A(f"v_add_f32 v{t2}, v{X}, v{X+1}")
    A(f"v_mfma_f32_16x16x16_bf16 {vr(OA,4)}, {vr(KV4+2,2)}, {vr(PM,2)}, {vr(OA,4)}")
    A(f"v_add_f32 v{X+2}, v{X+2}, v{X+3}")
    A(f"v_add_f32 v{t2}, v{t2}, v{sm}")
    A(f"v_mfma_f32_16x16x16_bf16 {vr(OA+4,4)}, {vr(KV4+2,2)}, {vr(PM+2,2)}, {vr(OA+4,4)}")
    A(f"v_add_f32 v{t2}, v{t2}, v{X+2}")
    zq = [P + i for i in range(0, 32, 2)]
    def Z(n=1):
        for _ in range(n):
            if zq: A(f"v_mov_b64 {vr(zq.pop(0),2)}, 0")
    Z(2)
    A(f"v_add_f32_dpp v{t2}, v{t2}, v{t2} {DPP8}0xf")
    for sw in ('16', '32'):
        A(f"v_mov_b32 v{t1}, v{t2}")
        Z(2)
        A(f"v_permlane{sw}_swap_b32 v{t1}, v{t2}")
        A(f"v_add_f32 v{t2}, v{t2}, v{t1}")
    A(f"v_rcp_f32 v{t1}, v{t2}")
    Z(1)
    for i in range(0, 8, 2):
        A(f"v_pk_mul_f32 {vr(OA+i,2)}, {vr(OA+i,2)}, {vr(t1,2)} op_sel_hi:[1,0]")
    for r in range(4): A(f"v_cvt_pk_bf16_f32 v{QA+r}, v{OA+r}, v{OA+4+r}")
    A(f"ds_write_b128 v{vXOw}, {vr(QA,4)} offset:{L_O}", tag='ow')
    Z(6)
    A.wait_lds()
    ST(5)
    A("s_barrier")
    for n in range(2): A(f"ds_read_b128 {vr(KA+4*n,4)}, v{vL16} offset:{L_O+n*1024}", tag=('o', n))
    for fh in halves(GV): lds_half(A, *fh)
    A(f"ds_read_b128 {vr(VA,4)}, v{vL16} offset:{L_SEL}", tag='sel')
    Z(16)
    A(f"s_add_u32 s{sS}, s{sS}, 1")
    def fin(t):
        d = P + 4*t
        return [f"v_add_f32 v{d}, v{d}, v{d+2}", f"v_add_f32 v{d+1}, v{d+1}, v{d+3}", f"v_cvt_pk_bf16_f32 v{QA+t}, v{d}, v{d+1}"]
    def st(u): return f"buffer_store_dwordx4 {vr(QA+4*u,4)}, v{vInW}, {ws}, s{sInW+u} offen"
    for u in range(3):
        l = fin(2*u) + fin(2*u+1)
        for i, pos in enumerate((5, 6, 6, 7, 8, 8) if u < 2 else (5, 5, 6, 6, 7, 7)): at(4*u + pos, l[i])
    at(o.get('s0', 12), st(0))
    gh = halves(GH[3:]) + halves(GH[:3])
    for pos in range(4, 4 + o.get('ghw', 0)): at(pos, lambda fh=gh.pop(0): lds_half(A, *fh))
    run(O_ORDER)
    for x in fin(6) + fin(7): A(x)
    A(st(1))
    ST(6)
    fill = [lambda: A(f"s_xor_b32 s{sInW}, s{sInW}, {PARX}"), lambda: A(f"s_xor_b32 s{sInW+1}, s{sInW+1}, {PARX}")]
    zz = [(lambda r=r: A(f"v_mov_b64 {vr(r,2)}, 0")) for r in range(KA+6, QA-1, -2)] + \
         [(lambda r=r: A(f"v_mov_b64 {vr(r,2)}, -1")) for r in (VT, VT+2)]
    gl = [(lambda fh=fh: lds_half(A, *fh)) for fh in gh]
    g1n = min(o.get('gh1', 14), len(gl))
    while zz or g1n:
        if g1n: fill.append(gl.pop(0)); g1n -= 1
        if zz: fill.append(zz.pop(0))
    k = o.get('d1', 24)
    while fill and k > 0: fill.pop(0)(); k -= 1
    nops(A, k)
    A.wait_lds('sel')
    def use_in(n):
        A(f"{MF} {vr(PM,4)}, {vr(VA,4)}, {vr(KT+4*n,4)}, {vr(PM,4) if n else 0}")
    poll(A, OOL, "L_t_in", KT, sInR, VA+4, o.get('dp1', 1), o.get('g1', 24), fill, use_in)
    for e in range(2): A(f"v_add_f32_dpp v{PM+e}, v{PM+e}, v{PM+e} {DPP8}0xf")
    for e in range(2): A(f"v_add_f32_dpp v{PM+e}, v{PM+e}, v{PM+e} {DPP4}")
    A(f"v_cvt_pk_bf16_f32 v{PM+2}, v{PM}, v{PM+1}")
    A(f"buffer_store_dword v{PM+2}, v{vPub}, {ws}, s{sRingW} offen")
    ST(7)
    A(f"buffer_store_dword v{VT}, v{vPub}, {ws}, s{sRingA} offen")
    for n in range(2): A(f"buffer_store_dwordx4 {vr(VT,4)}, v{vL16}, {ws}, s{sInR} offen offset:{n*1024}")
    A(f"s_xor_b32 s{sRingW}, s{sRingW}, 8192\ns_xor_b32 s{sRingA}, s{sRingA}, 8192")
    A(f"s_xor_b32 s{sInR}, s{sInR}, {PARX}")
    zero64(A, VA, 8)
    for g in gl: g()
    nops(A, o.get('d2', 0))
    if o.get('prof'):
        A(f"s_cmp_eq_u32 s{sS}, {o.get('ps', 40)}\ns_cbranch_scc1 L_t_dump")
        d = "L_t_dump:\ns_waitcnt lgkmcnt(0)\n"
        d += f"s_lshl_b32 s{sT0}, s{sR}, 8\ns_lshl_b32 s{sT1}, s{sWv}, 6\ns_add_u32 s{sT0}, s{sT0}, s{sT1}\ns_add_u32 s{sT0}, s{sT0}, {PROF}\n"
        for i in range(12):
            d += f"v_mov_b32 v{PM}, s{76+2*i}\nbuffer_store_dword v{PM}, off, {ws}, s{sT0} offset:{4*i}\n"
        d += "s_branch L_t_pre"
        OOL.append(d)
    A("s_branch L_t_pre")

def emit_team(A, o):
    ws = f"s[{sWS}:{sWS+3}]"
    OOL = []
    team_setup(A, o)
    team_weights(A, o)
    if o.get('time'): A("s_memtime s[70:71]")
    wait_cnt(A, OOL, "L_t_arm", D_ARM, 32)
    wait_cnt(A, OOL, "L_t_cx", D_CX, N_CX)
    A("L_t_f0:")
    A(flagload(32))
    A(f"s_bitcmp1_b32 s{sKM_}, 0")
    A("s_cbranch_scc0 L_t_f0_re")
    OOL.append(retry("L_t_f0_re", "L_t_f0", "L_t_f0_ok"))
    A("L_t_f0_ok:")
    A(f"s_add_u32 s{sPF}, s{sVT}, 524288")
    A(f"s_mov_b32 s{sFB}, 1")
    A(f"s_mov_b32 s{sS}, 0")
    zero64(A, KV4, 4)
    zero64(A, QA, 24)
    A.lds = []
    for fh in halves(GH): lds_half(A, *fh)
    if o.get('time'): A("s_memtime s[72:73]")
    team_step(A, o, OOL)
    A("L_t_tail:")
    A(f"buffer_store_dwordx4 {vr(KV4,4)}, v{vL16}, {ws}, s{sKM} offen sc1")
    A("s_waitcnt vmcnt(0) lgkmcnt(0)")
    if o.get('time'):
        A("s_memtime s[74:75]")
        A("s_waitcnt lgkmcnt(0)")
        A(f"s_or_b32 s{sT0}, s{sR}, s{sWv}\ns_cbranch_scc1 L_t_end")
        A("s_mov_b64 exec, 1")
        A("s_sub_u32 s70, s70, s68\ns_sub_u32 s72, s72, s68\ns_sub_u32 s74, s74, s68")
        A(f"v_mov_b32 v32, s70\nv_mov_b32 v33, s72\nv_mov_b32 v34, s74\nv_mov_b32 v35, s{sSpin}\nv_mov_b32 v31, 96")
        A("global_store_dwordx4 v31, v[32:35], s[4:5]")
        A("L_t_end:")
    A("s_endpgm")
    for t in OOL: A(t)
```

```python
from asmlib import *
from layout import *
import gen_team as GT
import gen_team2 as GT2
import gen_team3 as GT3
from gen_team import (sWS, sW, sXCC, sR, sWv, sT0, sT1, sT2, sT3, sPLo, sPHi, sScale, sL2E, sSpin, srd, retry, wait_cnt, f2u)
NAME = 'parallel_sum__memory_aug_recurrent_mem_tr__dense_activation_relu__prompt_kernel'
ws = f"s[{sWS}:{sWS+3}]"
MF = "v_mfma_f32_16x16x32_bf16"
vL16, vG, vC, vL, vA0, vA1, vA2, vA3 = 1, 2, 3, 4, 5, 6, 7, 8

def lanes(A):
    A(f"v_and_b32 v{vL}, 63, v0")
    A(f"v_lshrrev_b32 v{vG}, 4, v{vL}")
    A(f"v_and_b32 v{vC}, 15, v{vL}")
    A(f"v_lshlrev_b32 v{vL16}, 4, v{vL}")

def load_w(A, jobs, voff, width, stage, tmp, NB=7):
    nb = NB + 1
    op = {1: 'buffer_load_dword', 2: 'buffer_load_dwordx2'}[width]
    def issue(b):
        pre, rows, dest = jobs[b]
        if pre: pre()
        last = None
        for i, (sr, cst) in enumerate(rows):
            if last is None or not (0 <= cst - last < 4096):
                A(f"s_add_u32 s{sT0}, s{sr}, {cst}"); last = cst
            off = f" offset:{cst-last}" if cst != last else ""
            A(f"{op} {vr(stage+(b%nb)*8*width+i*width, width)}, v{voff}, s[{sW}:{sW+3}], s{sT0} offen{off}", tag=('w', b))
    for b in range(min(NB, len(jobs))): issue(b)
    for b in range(len(jobs)):
        A.wait_vm(('w', b))
        if b + NB < len(jobs): issue(b + NB)
        base = stage + (b % nb)*8*width
        for t in range(2*width):
            kind, idx = jobs[b][2](t)
            d = idx if kind == 'v' else tmp + 4*(t & 1)
            for q in range(4):
                A(f"v_perm_b32 v{d+q}, v{base+(2*q+1)*width+(t>>1)}, v{base+2*q*width+(t>>1)}, s{sPHi if t&1 else sPLo}")
            if kind == 'a':
                for q in range(4): A(f"v_accvgpr_write_b32 a{idx+q}, v{d+q}")

def cnt_add(A, off, name, va=30):
    A(f"v_mov_b32 v{va}, 1\nv_mov_b32 v{va+1}, {off}")
    A("s_mov_b64 exec, 1")
    A(f"global_atomic_add v{va+1}, v{va}, s[4:5] sc1")
    A("s_mov_b64 exec, -1")

def red_g(A, op, v, t):
    for sw in ('16', '32'):
        A(f"v_mov_b32 v{t}, v{v}")
        A(f"v_permlane{sw}_swap_b32 v{t}, v{v}")
        A(f"{op} v{v}, v{v}, v{t}")

def rnd(A, d, s=None): A(f"v_cvt_pk_bf16_f32 v{d}, 0, v{d if s is None else s}")

def two_pass(A, body):
    q = list(A.vm)
    for _ in range(4):
        B = Asm(); B.vm = list(q); body(B); q = list(B.vm)
    A.vm = list(q); body(A)
    assert A.vm == q, (A.vm, q)

def stamp(A, o, i):
    if o.get('time'): A(f"s_memtime s[{70+2*i}:{71+2*i}]")

def dump_stamps(A, o, n):
    if not o.get('time'): return
    A("s_waitcnt lgkmcnt(0)")
    A(f"s_lshl_b32 s{sT0}, s{sXCC}, 5\ns_add_u32 s{sT0}, s{sT0}, s{sR}\ns_lshl_b32 s{sT0}, s{sT0}, 2\ns_add_u32 s{sT0}, s{sT0}, s{sWv}\ns_lshl_b32 s{sT0}, s{sT0}, 6\ns_add_u32 s{sT0}, s{sT0}, {PROF+0x10000}")
    for i in range(n):
        A(f"s_sub_u32 s{70+2*i}, s{70+2*i}, s68")
        A(f"v_mov_b32 v{16+i}, s{70+2*i}")
        A(f"buffer_store_dword v{16+i}, off, {ws}, s{sT0} offset:{4*i}")
    A(f"v_mov_b32 v15, s{sSpin}")
    A(f"buffer_store_dword v15, off, {ws}, s{sT0} offset:60")

def emit_head(A, o):
    OOL = []
    sH, sRep, sXo, sQo, sKo, sMo, sFo, sFp, sI, sWb, sOo, sFOo = 20, 21, 22, 23, 24, 25, 26, 27, 28, 29, 30, 31
    XB, AC, OQ, OK_, OV, NEG, ONE, WV = 16, 80, 104, 108, 112, 120, 124, 128
    lanes(A)
    A(f"s_sub_u32 s{sH}, s{sXCC}, 1\ns_lshl_b32 s{sH}, s{sH}, 3\ns_and_b32 s{sT0}, s{sR}, 7\ns_add_u32 s{sH}, s{sH}, s{sT0}")
    A(f"s_lshr_b32 s{sRep}, s{sR}, 3")
    A(f"s_lshl_b32 s{sWb}, s{sH}, 8\ns_lshl_b32 s{sT0}, s{sWv}, 6\ns_add_u32 s{sWb}, s{sWb}, s{sT0}")
    A(f"v_lshlrev_b32 v{vA0}, 16, v{vG}\nv_lshl_add_u32 v{vA0}, v{vC}, 2, v{vA0}")
    jobs = []
    for xi, X_ in enumerate('qkv'):
        for k in range(16):
            pre = (lambda xi=xi: srd(A, sW, 16+8*xi, 4194304)) if k == 0 else None
            dest = (lambda t, xi=xi, k=k: ('a', 128*xi+8*k+4*t) if xi < 2 else ('v', WV+8*k+4*t))
            jobs.append((pre, [(sWb, (32*k+i)*8192) for i in range(8)], dest))
    load_w(A, jobs, vA0, 1, XB, AC)
    stamp(A, o, 0)
    A(f"s_lshl_b32 s{sXo}, s{sRep}, 15\ns_add_u32 s{sXo}, s{sXo}, {XF}")
    A(f"s_lshl_b32 s{sT0}, s{sRep}, 5\ns_add_u32 s{sT0}, s{sT0}, s{sH}\ns_lshl_b32 s{sT0}, s{sT0}, 2\ns_add_u32 s{sT0}, s{sT0}, s{sWv}")
    A(f"s_lshl_b32 s{sQo}, s{sT0}, 11\ns_add_u32 s{sQo}, s{sQo}, {QF}")
    A(f"s_lshl_b32 s{sKo}, s{sT0}, 12\ns_add_u32 s{sKo}, s{sKo}, {KTV}")
    A(f"s_lshl_b32 s{sMo}, s{sT0}, 10\ns_add_u32 s{sMo}, s{sMo}, {KMVM}")
    A(f"s_lshl_b32 s{sFo}, s{sH}, 10\ns_lshl_b32 s{sT0}, s{sWv}, 2\ns_add_u32 s{sFo}, s{sFo}, s{sT0}\ns_lshl_b32 s{sT0}, s{sRep}, 4\ns_add_u32 s{sFo}, s{sFo}, s{sT0}\ns_add_u32 s{sFo}, s{sFo}, {F_KT}")
    A(f"s_mov_b32 s{sFp}, {F_DUM}")
    for q in range(4): A(f"v_mov_b32 v{NEG+q}, -1")
    A(f"v_mov_b32 v{ONE}, 1")
    wait_cnt(A, OOL, "L_h_cx", D_CX, N_CX, 126)
    stamp(A, o, 1)
    def xload(B, n):
        B(f"buffer_load_dwordx4 {vr(XB+4*(n%16),4)}, v{vL16}, {ws}, s{sXo} offen offset:{(n%4)*1024}", tag=('x', n % 16))
        if n % 4 == 3: B(f"s_add_u32 s{sXo}, s{sXo}, {4096 + (3*32768 if n % 32 == 31 else 0)}")
    for n in range(16): xload(A, n)
    A(f"s_mov_b32 s{sI}, 16")
    A("s_waitcnt vmcnt(0)")
    A("L_h_p1:")
    def body(B):
        for n in range(32):
            tau, k = n >> 4, n & 15
            x = vr(XB+4*k, 4)
            B.wait_vm(('x', k))
            for xi in range(3):
                for t in range(2):
                    ac = vr(AC+8*xi+4*t, 4); c = ac if k else '0'
                    if xi < 2: B(f"{MF} {ac}, {vr(128*xi+8*k+4*t,4,'a')}, {x}, {c}")
                    else: B(f"{MF} {ac}, {x}, {vr(WV+8*k+4*t,4)}, {c}")
            xload(B, n + 16)
            if n == 1: B(f"buffer_store_dwordx4 {vr(NEG,4)}, v{vL16}, {ws}, s{sMo} offen sc1\ns_add_u32 s{sMo}, s{sMo}, {4*131072}", tag='d')
            if n == 17:
                B.wait_vm('dl')
                B("s_mov_b64 exec, 1")
                B(f"buffer_store_dword v{ONE}, off, {ws}, s{sFp} sc1")
                B("s_mov_b64 exec, -1")
                B(f"s_mov_b32 s{sFp}, s{sFo}\ns_add_u32 s{sFo}, s{sFo}, 64")
            if k == 15:
                for i in range(4): B(f"v_cvt_pk_bf16_f32 v{OQ+i}, v{AC+i}, v{AC+4+i}")
                B(f"buffer_store_dwordx4 {vr(OQ,4)}, v{vL16}, {ws}, s{sQo} offen offset:{tau*1024}")
                for i in range(4): B(f"v_cvt_pk_bf16_f32 v{OK_+i}, v{AC+8+i}, v{AC+12+i}")
                B(f"buffer_store_dwordx4 {vr(OK_,4)}, v{vL16}, {ws}, s{sKo} offen offset:{tau*1024} sc1")
                for t in range(2):
                    for j in range(2): B(f"v_cvt_pk_bf16_f32 v{OV+4*t+2*tau+j}, v{AC+16+4*t+2*j}, v{AC+16+4*t+2*j+1}")
                if tau:
                    for t in range(2): B(f"buffer_store_dwordx4 {vr(OV+4*t,4)}, v{vL16}, {ws}, s{sKo} offen offset:{2048+t*1024} sc1", tag='dl')
        B(f"s_add_u32 s{sQo}, s{sQo}, {4*262144}\ns_add_u32 s{sKo}, s{sKo}, {4*524288}")
        B(f"s_sub_u32 s{sI}, s{sI}, 1\ns_cmp_lg_u32 s{sI}, 0\ns_cbranch_scc1 L_h_p1")
    two_pass(A, body)
    A.wait_vm()
    A("s_mov_b64 exec, 1")
    A(f"buffer_store_dword v{ONE}, off, {ws}, s{sFp} sc1")
    A("s_mov_b64 exec, -1")
    A("s_barrier")
    stamp(A, o, 2)
    Q, KT, VT, S, SM, KM, VM, OWN, P, PM, OA, OU, mx, t1, t2, vNeg = 16, 32, 64, 80, 88, 92, 108, 112, 116, 120, 128, 144, 152, 153, 154, 155
    vKw, vKr, vVw, vVr = vA0, vA1, vA2, vA3
    sTq, sHf, sMk = 32, 33, 84
    A(f"s_and_b32 s{sTq}, s{sWv}, 1\ns_lshr_b32 s{sHf}, s{sWv}, 1")
    A(f"s_lshl_b32 s{sT0}, s{sRep}, 5\ns_add_u32 s{sT0}, s{sT0}, s{sH}")
    A(f"s_lshl_b32 s{sQo}, s{sT0}, 13\ns_lshl_b32 s{sT1}, s{sTq}, 10\ns_add_u32 s{sQo}, s{sQo}, s{sT1}\ns_add_u32 s{sQo}, s{sQo}, {QF}")
    A(f"s_lshl_b32 s{sKo}, s{sT0}, 14\ns_add_u32 s{sKo}, s{sKo}, {KTV}")
    A(f"s_lshl_b32 s{sMo}, s{sT0}, 12\ns_lshl_b32 s{sT1}, s{sWv}, 10\ns_add_u32 s{sMo}, s{sMo}, s{sT1}\ns_add_u32 s{sMo}, s{sMo}, {KMVM}")
    A(f"s_lshl_b32 s{sT0}, s{sRep}, 1\ns_add_u32 s{sT0}, s{sT0}, s{sTq}")
    A(f"s_lshl_b32 s{sT1}, s{sH}, 1\ns_add_u32 s{sT1}, s{sT1}, s{sHf}")
    A(f"s_mul_i32 s{sOo}, s{sT0}, {OFU}\ns_lshl_b32 s{sT2}, s{sT1}, 11\ns_add_u32 s{sOo}, s{sOo}, s{sT2}\ns_add_u32 s{sOo}, s{sOo}, {OF}")
    A(f"s_lshl_b32 s{sFOo}, s{sT0}, 8\ns_lshl_b32 s{sT2}, s{sT1}, 2\ns_add_u32 s{sFOo}, s{sFOo}, s{sT2}\ns_add_u32 s{sFOo}, s{sFOo}, {F_O}")
    A(f"s_mov_b32 s{sScale}, {f2u(128**-0.5)}\ns_mov_b32 s{sL2E}, {f2u(1.4426950408889634)}")
    A(f"v_lshrrev_b32 v{t1}, 2, v{vC}\nv_and_b32 v{t2}, 3, v{vC}")
    A(f"v_lshlrev_b32 v{vKw}, 7, v{t1}\nv_lshl_add_u32 v{vKw}, v{vG}, 5, v{vKw}\nv_lshl_add_u32 v{vKw}, v{t2}, 2, v{vKw}")
    A(f"s_lshl_b32 s{sT0}, s{sWv}, 9\nv_add_u32 v{vKw}, s{sT0}, v{vKw}")
    A(f"v_lshl_add_u32 v{vVw}, v{vL}, 3, s{sT0}")
    A(f"s_lshl_b32 s{sT0}, s{sHf}, 10\nv_lshl_add_u32 v{vVr}, v{vL}, 3, s{sT0}")
    A(f"v_and_b32 v{mx}, 1, v{vC}\nv_lshlrev_b32 v{mx}, 4, v{mx}\nv_lshl_add_u32 v{mx}, v{t1}, 5, v{mx}\nv_lshl_add_u32 v{vKr}, v{vG}, 7, v{mx}")
    A(f"v_lshl_add_u32 v{t2}, v{t1}, 3, v{t2}\ns_lshl_b32 s{sT0}, s{sTq}, 2\nv_add_u32 v{t2}, s{sT0}, v{t2}")
    A(f"v_lshlrev_b32 v{t1}, 3, v{vG}\nv_sub_u32 v{t2}, v{t2}, v{t1}")
    for j in range(8): A(f"v_cmp_le_i32 s[{sMk+2*j}:{sMk+2*j+1}], {j}, v{t2}")
    A(f"v_mov_b32 v{vNeg}, {f2u(-1e9)}")
    A(f"v_mov_b32 v{PM+1}, 0\nv_mov_b32 v{PM+2}, 0")
    A(f"s_mov_b32 s{sI}, 16")
    A("L_h_p2:")
    A.vm = []; A.lds = []
    for w_ in range(4):
        if w_ % 2 == 0: A(f"s_add_u32 s{sT0}, s{sQo}, {w_*2048}")
        A(f"buffer_load_dwordx4 {vr(Q+4*w_,4)}, v{vL16}, {ws}, s{sT0} offen offset:{(w_%2)*2048}", tag=('q', w_))
        A(f"s_add_u32 s{sT1}, s{sKo}, {w_*4096}")
        for tk in range(2):
            A(f"buffer_load_dwordx4 {vr(KT+8*w_+4*tk,4)}, v{vL16}, {ws}, s{sT1} offen offset:{tk*1024}", tag=('q', w_))
    A(f"s_lshl_b32 s{sT0}, s{sHf}, 13\ns_add_u32 s{sT0}, s{sT0}, s{sKo}\ns_add_u32 s{sT1}, s{sT0}, 4096")
    for w_ in range(2):
        for t in range(2):
            A(f"buffer_load_dwordx4 {vr(VT+8*w_+4*t,4)}, v{vL16}, {ws}, s{sT0+w_} offen offset:{2048+t*1024}")
    for w_ in range(4):
        A.wait_vm(('q', w_))
        for tk in range(2):
            A(f"{MF} {vr(S+4*tk,4)}, {vr(KT+8*w_+4*tk,4)}, {vr(Q+4*w_,4)}, {vr(S+4*tk,4) if w_ else 0}")
    for j in range(8): rnd(A, S+j)
    for j in range(8): A(f"v_mul_f32 v{S+j}, s{sScale}, v{S+j}")
    for j in range(8): rnd(A, S+j)
    for j in range(8): A(f"v_cndmask_b32 v{S+j}, v{vNeg}, v{S+j}, s[{sMk+2*j}:{sMk+2*j+1}]")
    A(f"v_max3_f32 v{mx}, v{S}, v{S+1}, v{S+2}\nv_max3_f32 v{mx}, v{mx}, v{S+3}, v{S+4}\nv_max3_f32 v{mx}, v{mx}, v{S+5}, v{S+6}\nv_max_f32 v{mx}, v{mx}, v{S+7}")
    A("L_h_km:")
    A(f"buffer_load_dwordx4 {vr(OWN,4)}, v{vL16}, {ws}, s{sMo} offen sc1")
    A.wait_vm()
    A(f"v_max3_u32 v{t1}, v{OWN}, v{OWN+1}, v{OWN+2}\nv_max_u32 v{t1}, v{t1}, v{OWN+3}")
    A(f"v_cmp_eq_u32 vcc, -1, v{t1}\ns_cbranch_vccnz L_h_km_re")
    OOL.append(retry("L_h_km_re", "L_h_km", "L_h_km_ok"))
    A("L_h_km_ok:")
    A(f"ds_write2_b32 v{vKw}, v{OWN}, v{OWN+1} offset0:0 offset1:4")
    A(f"ds_write_b64 v{vVw}, {vr(OWN+2,2)} offset:2048")
    A.wait_lds()
    A("s_barrier")
    for w_ in range(4): A(f"ds_read_b128 {vr(KM+4*w_,4)}, v{vKr} offset:{w_*512}", tag=('k', w_))
    for w_ in range(2): A(f"ds_read_b64 {vr(VM+2*w_,2)}, v{vVr} offset:{2048+w_*512}", tag='v')
    for v_ in (vKw, vKr, vVw, vVr): A(f"v_xor_b32 v{v_}, 4096, v{v_}")
    for w_ in range(4):
        A.wait_lds(('k', w_))
        A(f"{MF} {vr(SM,4)}, {vr(KM+4*w_,4)}, {vr(Q+4*w_,4)}, {vr(SM,4) if w_ else 0}")
    for j in range(2): rnd(A, SM+j)
    for j in range(2): A(f"v_mul_f32 v{SM+j}, s{sScale}, v{SM+j}")
    for j in range(2): rnd(A, SM+j)
    A(f"v_max3_f32 v{mx}, v{mx}, v{SM}, v{SM+1}")
    red_g(A, 'v_max_f32', mx, t1)
    A(f"v_mul_f32 v{mx}, s{sL2E}, v{mx}")
    for j in range(10): A(f"v_fma_f32 v{S+j}, v{S+j}, s{sL2E}, -v{mx}")
    for j in range(10): A(f"v_exp_f32 v{S+j}, v{S+j}")
    A(f"v_add_f32 v{t2}, v{S}, v{S+1}")
    for j in range(2, 10): A(f"v_add_f32 v{t2}, v{t2}, v{S+j}")
    red_g(A, 'v_add_f32', t2, t1)
    A(f"v_rcp_f32 v{t1}, v{t2}")
    for j in range(10): A(f"v_mul_f32 v{S+j}, v{S+j}, v{t1}")
    for j in range(4): A(f"v_cvt_pk_bf16_f32 v{P+j}, v{S+2*j}, v{S+2*j+1}")
    A(f"v_cvt_pk_bf16_f32 v{PM}, v{SM}, v{SM+1}\nv_cvt_pk_bf16_f32 v{PM+3}, v{SM}, v{SM+1}")
    for n in range(4): A(f"{MF} {vr(OA+4*n,4)}, {vr(VT+4*n,4)}, {vr(P,4)}, 0")
    A.wait_lds()
    for n in range(4):
        A(f"v_mfma_f32_16x16x16_bf16 {vr(OA+4*n,4)}, {vr(VM+2*(n>>1),2)}, {vr(PM+2*(n&1),2)}, {vr(OA+4*n,4)}")
    for w_ in range(2):
        for i in range(4): A(f"v_cvt_pk_bf16_f32 v{OU+4*w_+i}, v{OA+8*w_+i}, v{OA+8*w_+4+i}")
        A(f"buffer_store_dwordx4 {vr(OU+4*w_,4)}, v{vL16}, {ws}, s{sOo} offen offset:{w_*1024} sc1")
    A.wait_vm()
    A("s_mov_b64 exec, 1")
    A(f"buffer_store_dword v{ONE}, off, {ws}, s{sFOo} sc1")
    A("s_mov_b64 exec, -1")
    A(f"s_add_u32 s{sQo}, s{sQo}, {4*262144}\ns_add_u32 s{sKo}, s{sKo}, {4*524288}\ns_add_u32 s{sMo}, s{sMo}, {4*131072}")
    A(f"s_add_u32 s{sOo}, s{sOo}, {8*OFU}\ns_add_u32 s{sFOo}, s{sFOo}, {8*256}")
    A(f"s_sub_u32 s{sI}, s{sI}, 1\ns_cmp_lg_u32 s{sI}, 0\ns_cbranch_scc1 L_h_p2")
    stamp(A, o, 3)
    dump_stamps(A, o, 4)
    A("s_endpgm")
    for t in OOL: A(t)

def emit_og(A, o):
    OOL = []
    sIdx, sXo, sOo, sI, sWb, sJ, sU, sFOo, sXa, sCs = 20, 22, 23, 28, 29, 24, 25, 26, 27, 30
    sX, sOut = 84, 88
    vTok = vA1
    lanes(A)
    srd(A, sX, 0, 2097152)
    srd(A, sOut, 80, 2097152)
    srd(A, sW, 64, 512*2752)
    A(f"s_sub_u32 s{sIdx}, s{sXCC}, 5\ns_lshl_b32 s{sIdx}, s{sIdx}, 5\ns_add_u32 s{sIdx}, s{sIdx}, s{sR}")
    A(f"v_lshrrev_b32 v{vA0}, 2, v{vC}\nv_and_b32 v{vA2}, 3, v{vC}\nv_lshl_add_u32 v{vA0}, v{vA0}, 3, v{vA2}")
    A(f"v_lshlrev_b32 v{vA0}, 10, v{vA0}\nv_lshl_add_u32 v{vTok}, v{vG}, 4, v{vA0}")
    A(f"s_cmp_ge_u32 s{sIdx}, 64\ns_cbranch_scc1 L_o_arm")
    A(f"s_cmp_ge_u32 s{sWv}, 2\ns_cbranch_scc1 L_o_ffn")
    RW, F = 32, 96
    A(f"s_lshl_b32 s{sT0}, s{sIdx}, 15\ns_lshl_b32 s{sT1}, s{sWv}, 12\ns_add_u32 s{sT1}, s{sT0}, s{sT1}")
    for k in range(16): A(f"buffer_load_dwordx4 {vr(RW+4*k,4)}, v{vTok}, s[{sX}:{sX+3}], s{sT1} offen offset:{64*k}", tag=k)
    A(f"s_lshl_b32 s{sT1}, s{sWv}, 14\ns_add_u32 s{sXo}, s{sT0}, s{sT1}\ns_add_u32 s{sXo}, s{sXo}, {XF}")
    A(f"s_mov_b32 s{sT2}, 0xffff0000")
    a = [16, 17, 18, 19]; mean, t1, r = 20, 21, 22
    for q in a: A(f"v_mov_b32 v{q}, 0")
    for k in range(64):
        if k % 4 == 0: A.wait_vm(k // 4)
        A(f"v_lshlrev_b32 v{F+2*k}, 16, v{RW+k}\nv_and_b32 v{F+2*k+1}, s{sT2}, v{RW+k}")
        A(f"v_add_f32 v{a[(2*k)%4]}, v{a[(2*k)%4]}, v{F+2*k}\nv_add_f32 v{a[(2*k+1)%4]}, v{a[(2*k+1)%4]}, v{F+2*k+1}")
    def tot(d):
        A(f"v_add_f32 v{a[0]}, v{a[0]}, v{a[1]}\nv_add_f32 v{a[2]}, v{a[2]}, v{a[3]}\nv_add_f32 v{d}, v{a[0]}, v{a[2]}")
        red_g(A, 'v_add_f32', d, t1)
        A(f"v_mul_f32 v{d}, {f2u(1/512)}, v{d}")
    tot(mean)
    for q in a: A(f"v_mov_b32 v{q}, 0")
    for k in range(128):
        A(f"v_sub_f32 v{24+k%4}, v{F+k}, v{mean}\nv_fmac_f32 v{a[k%4]}, v{24+k%4}, v{24+k%4}")
    tot(r)
    rnd(A, mean); rnd(A, r)
    A(f"v_add_f32 v{r}, {f2u(1e-5)}, v{r}"); rnd(A, r)
    A(f"v_sqrt_f32 v{r}, v{r}"); rnd(A, r)
    A(f"v_rcp_f32 v{r}, v{r}")
    for k in range(64):
        for j in range(2):
            f = F+2*k+j
            A(f"v_sub_f32 v{f}, v{f}, v{mean}"); rnd(A, f); A(f"v_mul_f32 v{f}, v{f}, v{r}")
        A(f"v_cvt_pk_bf16_f32 v{RW+k}, v{F+2*k}, v{F+2*k+1}")
        if k % 4 == 3:
            A(f"buffer_store_dwordx4 {vr(RW+k-3,4)}, v{vL16}, {ws}, s{sXo} offen offset:{((k//4)%4)*1024} sc1")
            if k % 16 == 15: A(f"s_add_u32 s{sXo}, s{sXo}, 4096")
    A.wait_vm()
    cnt_add(A, D_CX, None)
    A("s_branch L_o_ffn")
    A("L_o_arm:")
    A(f"s_cmp_ge_u32 s{sIdx}, 80\ns_cbranch_scc1 L_o_ffn")
    A(f"s_cmp_lg_u32 s{sWv}, 0\ns_cbranch_scc1 L_o_ffn")
    for q in range(4): A(f"v_mov_b32 v{32+q}, 0")
    A(f"s_lshl_b32 s{sT0}, s{sIdx}, 12\ns_add_u32 s{sT0}, s{sT0}, {FLAGS - 64*4096 + (1<<32)}")
    for n in range(4): A(f"buffer_store_dwordx4 v[32:35], v{vL16}, {ws}, s{sT0} offen offset:{n*1024} sc1")
    A.wait_vm()
    cnt_add(A, D_CX, None)
    A("L_o_ffn:")
    A.vm = []
    stamp(A, o, 0)
    XB, AC, OU = 16, 80, 96
    A(f"s_lshl_b32 s{sT0}, s{sIdx}, 2\ns_add_u32 s{sT0}, s{sT0}, s{sWv}")
    A(f"s_mul_i32 s{sT1}, s{sT0}, 2979\ns_lshr_b32 s{sT1}, s{sT1}, 16")
    A(f"s_mul_i32 s{sT2}, s{sT1}, 22\ns_sub_u32 s{sCs}, s{sT0}, s{sT2}")
    A(f"s_cmp_ge_u32 s{sT1}, 16\ns_cbranch_scc1 L_o_ffn_done")
    A(f"s_lshl_b32 s{sXo}, s{sT1}, 17\ns_add_u32 s{sXo}, s{sXo}, {XF}")
    A(f"s_mul_i32 s{sOo}, s{sT1}, {8*OFU}\ns_lshl_b32 s{sT2}, s{sCs}, 11\ns_add_u32 s{sOo}, s{sOo}, s{sT2}\ns_add_u32 s{sOo}, s{sOo}, {OF+128*1024}")
    A(f"s_lshl_b32 s{sWb}, s{sCs}, 7")
    A(f"v_mul_u32_u24 v{vA0}, {8*2752}, v{vG}\nv_lshl_add_u32 v{vA0}, v{vC}, 3, v{vA0}")
    jobs = [(None, [(sWb, (32*k+i)*2752) for i in range(8)], (lambda t, k=k: ('a', 16*k+4*t))) for k in range(16)]
    load_w(A, jobs, vA0, 2, 128, AC)
    wait_cnt(A, OOL, "L_o_cx", D_CX, N_CX, 126)
    def xload(B, n):
        B(f"buffer_load_dwordx4 {vr(XB+4*(n%16),4)}, v{vL16}, {ws}, s{sXo} offen offset:{(n%4)*1024}", tag=('x', n % 16))
        if n % 4 == 3: B(f"s_add_u32 s{sXo}, s{sXo}, 4096")
    for n in range(16): xload(A, n)
    A(f"s_mov_b32 s{sI}, 8")
    A("s_waitcnt vmcnt(0)")
    A("L_o_f1:")
    def body(B):
        for k in range(16):
            B.wait_vm(('x', k))
            for t in range(4):
                ac = vr(AC+4*t, 4)
                B(f"{MF} {ac}, {vr(16*k+4*t,4,'a')}, {vr(XB+4*k,4)}, {ac if k else 0}")
            xload(B, k)
        for j in range(16): B(f"v_max_f32 v{AC+j}, 0, v{AC+j}")
        for i in range(4):
            for tp in range(2): B(f"v_cvt_pk_bf16_f32 v{OU+2*i+tp}, v{AC+8*tp+i}, v{AC+8*tp+4+i}")
        for a_ in range(2): B(f"buffer_store_dwordx4 {vr(OU+4*a_,4)}, v{vL16}, {ws}, s{sOo} offen offset:{a_*1024} sc1")
        B(f"s_add_u32 s{sOo}, s{sOo}, {OFU}")
        B(f"s_sub_u32 s{sI}, s{sI}, 1\ns_cmp_lg_u32 s{sI}, 0\ns_cbranch_scc1 L_o_f1")
    two_pass(A, body)
    A("L_o_ffn_done:")
    A.wait_vm()
    A("s_barrier")
    A(f"s_cmp_lg_u32 s{sWv}, 0\ns_cbranch_scc1 L_o_w")
    cnt_add(A, D_CH, None)
    A("L_o_w:")
    A.vm = []
    stamp(A, o, 1)
    AA, AB, BUF, XR, W2 = 16, 24, 32, 160, 168
    vLw, vLr, vFl = vA2, vA3, 9
    A(f"s_and_b32 s{sJ}, s{sR}, 15\ns_lshr_b32 s{sU}, s{sIdx}, 4")
    A(f"s_lshl_b32 s{sWb}, s{sWv}, 20\ns_lshl_b32 s{sJ}, s{sJ}, 6\ns_add_u32 s{sWb}, s{sWb}, s{sJ}")
    A(f"v_lshlrev_b32 v{vA0}, 13, v{vG}\nv_lshl_add_u32 v{vA0}, v{vC}, 2, v{vA0}")
    jobs = [((lambda: srd(A, sW, 40, 4194304)) if k == 0 else None, [(sWb, (32*k+i)*1024) for i in range(8)], (lambda t, k=k: ('a', 8*k+4*t))) for k in range(32)]
    load_w(A, jobs, vA0, 1, BUF, AA)
    A(f"v_lshlrev_b32 v{vA0}, 14, v{vG}\nv_lshl_add_u32 v{vA0}, v{vC}, 2, v{vA0}")
    def pre2(n):
        if n == 0: srd(A, sW, 72, 1376*1024)
        A(f"s_mul_i32 s{sT1}, s{sWv}, 11\ns_add_u32 s{sT1}, s{sT1}, {n}\ns_and_b32 s{sT2}, s{sT1}, 1")
        A(f"s_lshl_b32 s{sT1}, s{sT1}, 15\ns_mul_i32 s{sT2}, s{sT2}, {24*1024}\ns_sub_u32 s{sT1}, s{sT1}, s{sT2}\ns_add_u32 s{sWb}, s{sT1}, s{sJ}")
    jobs = [((lambda n=n: pre2(n)), [(sWb, i*1024) for i in range(8)], (lambda t, n=n: ('v', W2+8*n+4*t))) for n in range(11)]
    load_w(A, jobs, vA0, 1, BUF, AA)
    A(f"s_lshl_b32 s{sT0}, s{sWv}, 12\nv_add_u32 v{vLw}, s{sT0}, v{vL16}\nv_mov_b32 v{vLr}, v{vL16}")
    A(f"v_lshlrev_b32 v{vFl}, 2, v{vC}")
    A(f"s_mul_i32 s{sOo}, s{sU}, {OFU}\ns_add_u32 s{sOo}, s{sOo}, {OF}")
    A(f"s_lshl_b32 s{sFOo}, s{sU}, 8\ns_lshl_b32 s{sT0}, s{sWv}, 6\ns_add_u32 s{sFOo}, s{sFOo}, s{sT0}\ns_add_u32 s{sFOo}, s{sFOo}, {F_O}")
    wait_cnt(A, OOL, "L_o_cx2", D_CX, N_CX, 164)
    wait_cnt(A, OOL, "L_o_ch", D_CH, N_CH, 164)
    stamp(A, o, 2)
    A("L_o_u:")
    A.vm = []; A.lds = []
    A(f"s_lshr_b32 s{sXa}, s{sU}, 1\ns_lshl_b32 s{sXa}, s{sXa}, 15\ns_and_b32 s{sT0}, s{sU}, 1\ns_lshl_b32 s{sT0}, s{sT0}, 12\ns_add_u32 s{sXa}, s{sXa}, s{sT0}\ns_add_u32 s{sXa}, s{sXa}, s{sJ}")
    A(f"s_mul_i32 s{sT0}, s{sWv}, {11*1024}\ns_add_u32 s{sT0}, s{sT0}, s{sOo}\ns_add_u32 s{sT0}, s{sT0}, {128*1024}")
    for n in range(11):
        A(f"buffer_load_dwordx4 {vr(BUF+4*n,4)}, v{vL16}, {ws}, s{sT0} offen offset:{(n%4)*1024}", tag=n)
        if n % 4 == 3: A(f"s_add_u32 s{sT0}, s{sT0}, 4096")
    A(f"buffer_load_dwordx4 {vr(XR,4)}, v{vTok}, s[{sX}:{sX+3}], s{sXa} offen")
    for n in range(11):
        A.wait_vm(n)
        for t in range(2): A(f"{MF} {vr(AB+4*t,4)}, {vr(W2+8*n+4*t,4)}, {vr(BUF+4*n,4)}, {vr(AB+4*t,4) if n else 0}")
    A(f"s_lshl_b32 s{sT0}, s{sWv}, 15\ns_add_u32 s{sT0}, s{sT0}, s{sOo}")
    for t in range(2): A(f"ds_write_b128 v{vLw}, {vr(AB+4*t,4)} offset:{2048+t*1024}")
    A("L_o_fo:")
    A(f"buffer_load_dword v164, v{vFl}, {ws}, s{sFOo} offen sc1")
    A.wait_vm()
    A("v_cmp_eq_u32 vcc, 0, v164\ns_cbranch_vccnz L_o_fo_re")
    OOL.append(retry("L_o_fo_re", "L_o_fo", "L_o_fo_ok"))
    A("L_o_fo_ok:")
    for n in range(32):
        A(f"buffer_load_dwordx4 {vr(BUF+4*n,4)}, v{vL16}, {ws}, s{sT0} offen offset:{(n%4)*1024}", tag=n)
        if n % 4 == 3: A(f"s_add_u32 s{sT0}, s{sT0}, 4096")
    for n in range(32):
        A.wait_vm(n)
        for t in range(2): A(f"{MF} {vr(AA+4*t,4)}, {vr(8*n+4*t,4,'a')}, {vr(BUF+4*n,4)}, {vr(AA+4*t,4) if n else 0}")
    for t in range(2): A(f"ds_write_b128 v{vLw}, {vr(AA+4*t,4)} offset:{t*1024}")
    A.wait_lds()
    A("s_barrier")
    A(f"s_cmp_lg_u32 s{sWv}, 3\ns_cbranch_scc1 L_o_nx")
    for w_ in range(3):
        for n in range(4): A(f"ds_read_b128 {vr(BUF+16*w_+4*n,4)}, v{vLr} offset:{w_*4096+n*1024}", tag=w_)
    A(f"s_mov_b32 s{sT2}, 0xffff0000")
    for i in range(4): A(f"v_lshlrev_b32 v{BUF+48+i}, 16, v{XR+i}\nv_and_b32 v{BUF+52+i}, s{sT2}, v{XR+i}")
    for w_ in range(3):
        A.wait_lds(w_)
        for j in range(16): A(f"v_add_f32 v{AA+j}, v{AA+j}, v{BUF+16*w_+j}")
    for j in range(16): rnd(A, AA+j)
    for j in range(8): A(f"v_add_f32 v{AA+j}, v{AA+j}, v{BUF+48+j}")
    for j in range(8): rnd(A, AA+j)
    for j in range(8): A(f"v_add_f32 v{AA+j}, v{AA+j}, v{AB+j}")
    for i in range(4): A(f"v_cvt_pk_bf16_f32 v{164+i}, v{AA+i}, v{AA+4+i}")
    A(f"buffer_store_dwordx4 v[164:167], v{vTok}, s[{sOut}:{sOut+3}], s{sXa} offen")
    A("s_nop 1")
    A("L_o_nx:")
    A(f"v_xor_b32 v{vLw}, 0x4000, v{vLw}\nv_xor_b32 v{vLr}, 0x4000, v{vLr}")
    A(f"s_add_u32 s{sOo}, s{sOo}, {6*OFU}\ns_add_u32 s{sFOo}, s{sFOo}, {6*256}")
    A(f"s_add_u32 s{sU}, s{sU}, 6\ns_cmp_lt_u32 s{sU}, 128\ns_cbranch_scc1 L_o_u")
    stamp(A, o, 3)
    dump_stamps(A, o, 4)
    A("s_endpgm")
    for t in OOL: A(t)

def gen(o):
    A = Asm()
    A.L.append("; @launch grid=(256,1,1) block=(256,1,1) lds=163840")
    A('.amdgcn_target "amdgcn-amd-amdhsa--gfx950"')
    header(A, NAME)
    GT.prologue(A, o)
    A(f"s_cmp_gt_u32 s{sR}, 31\ns_cbranch_scc1 L_exit")
    A(f"s_cmp_eq_u32 s{sXCC}, 0\ns_cbranch_scc1 L_team")
    A(f"s_cmp_gt_u32 s{sXCC}, 4\ns_cbranch_scc1 L_og")
    A("s_branch L_head")
    A("L_exit:\ns_endpgm")
    A("L_team:"); A.vm = []; A.lds = []
    (GT2 if o.get('t2') else GT3).emit_team(A, o)
    A("L_head:"); A.vm = []; A.lds = []
    emit_head(A, o)
    A("L_og:"); A.vm = []; A.lds = []
    emit_og(A, o)
    kd(A, NAME, 256, 256)
    return A.text()

if __name__ == '__main__':
    import sys
    o = dict(mimic=1, time=0)
    for a in sys.argv[2:]:
        k, v = a.split('='); o[k] = int(v)
    assert all((j*2979 >> 16) == j // 22 for j in range(384))
    open(sys.argv[1], 'w').write(gen(o))
```

```python
from asmlib import *
from layout import *
import gen_team as G1
from gen_team import (f2u, srd, retry, wait_cnt, zero64, prologue,
                      sWS, sW, sXCC, sR, sWv, sT0, sT1, sT2, sT3, sPLo, sPHi, sScale, sL2E, sSpin)

vL16, vWL, vXP0, vXP1, vXP2, vXP3, vIdx, vQw, vKw, vSw, vXOw, vInW, vPub, vKTg, vPf, vDum = range(16)
P, QA, KA, VA, KT, VT, PM, KV4, T, WV = 16, 48, 56, 64, 72, 80, 88, 92, 96, 128
sS, sRingR, sRingW, sRingA = 20, 21, 22, 23
sInW, sInR = 24, 26
sKT, sKT1, sVT, sPF, sKM, sFB, sFKT = 29, 30, 31, 32, 35, 37, 33
sRow = 54
sKM_ = 64
L_XP, L_Q, L_K, L_ST, L_O, L_SEL, L_W = 0, 8192, 10240, 12288, 13312, 17408, 32768
PARX = 262144

OWN = [(x, s, t) for x in 'qkv' for s in range(2) for t in range(2)]
QO = [('q', s, t) for s in range(2, 8) for t in range(2)]
KO = [('k', s, t) for s in range(2, 8) for t in range(2)]
VO = [('v', s, t) for s in range(2, 8) for t in range(2)]
O_ORDER = [('o', k, 2*u+t) for u in range(4) for k in range(2) for t in range(2)]
GH = list(zip(OWN[:7], (P+8, P+16, P+24, T, T+8, T+16, T+24)))
GM = list(zip(QO[8:12], (T, T+8, T+16, T+24)))
GO = list(zip(O_ORDER[:4], (T, T+8, T+16, T+24)))
GV = [(O_ORDER[15], VT)]
place = {}
for i, (f, r) in enumerate(GH + GM + GO + GV): place[f] = ('l', i, r)
rest = [f for f in OWN + QO + KO + VO + O_ORDER if f not in place]
assert len(rest) == 48
for i, f in enumerate(rest):
    place[f] = ('a', 8*i) if i < 32 else ('v', WV + 8*(i-32))

def breg(f):
    p = place[f]
    if p[0] == 'l': return vr(p[2], 8)
    return vr(p[1], 8, p[0])

def lds_half(A, f, h):
    _, i, r = place[f]
    A(f"ds_read_b128 {vr(r+4*h,4)}, v{vWL} offset:{i*2048+1024*h}", tag=f)

def halves(grp): return [(f, h) for f, _ in grp for h in range(2)]

def smf(A, f):
    X_, s, t = f
    if place[f][0] == 'l': A.wait_lds(f)
    if X_ == 'o':
        A.wait_lds(('o', s))
        acc, a = P + 4*t, KA + 4*s
    else:
        if s >= 2: A.wait_lds(('xp', s))
        acc, a = {'q': QA, 'k': KA, 'v': VA}[X_] + 4*t, P + 4*s
    A(f"v_smfmac_f32_16x16x64_bf16 {vr(acc,4)}, {vr(a,4)}, {breg(f)}, v{vIdx}")

def put_frag(A, f, src):
    p = place[f]
    if p[0] == 'l':
        A(f"ds_write_b128 v{vWL}, {vr(src,4)} offset:{p[1]*2048}")
        A(f"ds_write_b128 v{vWL}, {vr(src+4,4)} offset:{p[1]*2048+1024}")
    elif p[0] == 'a':
        for q in range(8): A(f"v_accvgpr_write_b32 a{p[1]+q}, v{src+q}")

def bits(A, dst, terms, tmp, base=None):
    first = True
    for (src, lo, n, sh) in terms:
        A(f"v_bfe_u32 v{tmp}, v{src}, {lo}, {n}")
        if first and base is None: A(f"v_lshlrev_b32 v{dst}, {sh}, v{tmp}")
        elif first: A(f"v_lshl_add_u32 v{dst}, v{tmp}, {sh}, {base}")
        else: A(f"v_lshl_add_u32 v{dst}, v{tmp}, {sh}, v{dst}")
        first = False

def team_setup(A, o):
    ws = f"s[{sWS}:{sWS+3}]"
    t0, tid = 20, 21
    A(f"v_mov_b32 v{tid}, v0")
    B = lambda dst, terms, base=None: bits(A, dst, [(tid,) + t for t in terms], t0, base)
    B(vL16, [(0, 6, 4)])
    A(f"s_mov_b32 s{sT0}, {L_W}")
    B(vWL, [(0, 6, 4), (6, 2, 15)], f"s{sT0}")
    B(vXP0, [(0, 6, 4), (6, 2, 11)])
    for a in range(1, 4): A(f"v_xor_b32 v{vXP0+a}, {a*2048}, v{vXP0}")
    A(f"v_bfe_u32 v{t0}, v{tid}, 1, 1")
    A(f"v_mul_u32_u24 v{t0}, 0xAAAA, v{t0}")
    A(f"v_add_u32 v{vIdx}, 0x4444, v{t0}")
    A(f"s_mov_b32 s{sT0}, {L_Q}")
    B(vQw, [(7, 1, 10), (2, 2, 8), (6, 1, 7), (4, 2, 5), (0, 2, 2)], f"s{sT0}")
    A(f"s_mov_b32 s{sT0}, {L_K}")
    B(vKw, [(7, 1, 10), (2, 2, 8), (4, 2, 6), (6, 1, 5), (0, 2, 2)], f"s{sT0}")
    B(vSw, [(6, 2, 8), (5, 1, 7), (0, 3, 4), (4, 1, 3), (3, 1, 2)])
    B(vXOw, [(6, 2, 9), (5, 1, 8), (1, 2, 6), (4, 1, 5), (0, 1, 4), (3, 1, 11)])
    B(vInW, [(2, 2, 14), (4, 1, 13), (5, 1, 11), (0, 2, 4)])
    B(vPub, [(2, 2, 28), (4, 1, 5), (5, 1, 4), (0, 2, 2)])
    B(vKTg, [(1, 1, 12), (3, 1, 10), (4, 2, 8), (6, 2, 6), (2, 1, 5), (0, 1, 4)])
    B(vPf, [(0, 6, 6)])
    A(f"v_mov_b32 v{vDum}, 0")
    B(26, [(5, 1, 10), (0, 2, 4), (4, 1, 2)])
    B(27, [(4, 2, 17), (0, 4, 2)])
    B(28, [(5, 1, 14), (4, 1, 12), (0, 4, 4)])
    B(22, [(2, 1, 1), (0, 1, 0)])
    B(23, [(3, 1, 4)])
    A(f"v_mov_b32 v24, 0x3f80")
    A(f"v_lshlrev_b32 v23, v23, v24")
    for j in range(4):
        A(f"v_cmp_eq_u32 vcc, {j}, v22")
        A(f"v_cndmask_b32 v{32+j}, 0, v23, vcc")
    A(f"ds_write_b128 v{vL16}, v[32:35] offset:{L_SEL}")
    A(f"s_mov_b32 s{sScale}, {f2u(128**-0.5)}")
    A(f"s_mov_b32 s{sL2E}, {f2u(1.4426950408889634)}")
    A(f"s_lshl_b32 s{sT0}, s{sWv}, 16\ns_lshl_b32 s{sT1}, s{sR}, 6\ns_add_u32 s{sT0}, s{sT0}, s{sT1}")
    A(f"s_add_u32 s{sInW}, s{sT0}, {INBOX}\ns_add_u32 s{sInW+1}, s{sT0}, {INBOX+4096}")
    A(f"s_lshl_b32 s{sT0}, s{sR}, 13")
    A(f"s_lshl_b32 s{sRingR}, s{sWv}, 11")
    A(f"s_add_u32 s{sInR}, s{sT0}, {INBOX}\ns_add_u32 s{sInR}, s{sInR}, s{sRingR}")
    A(f"s_lshl_b32 s{sFKT}, s{sR}, 10\ns_add_u32 s{sFKT}, s{sFKT}, {F_KT}")
    A(f"s_lshl_b32 s{sKT}, s{sR}, 14\ns_add_u32 s{sKT}, s{sKT}, {KTV}")
    A(f"s_add_u32 s{sKT1}, s{sKT}, 8192")
    A(f"s_lshl_b32 s{sT0}, s{sWv}, 12\ns_add_u32 s{sVT}, s{sKT}, s{sT0}")
    A(f"s_lshl_b32 s{sT0}, s{sR}, 12\ns_lshl_b32 s{sT1}, s{sWv}, 10\ns_add_u32 s{sT0}, s{sT0}, s{sT1}")
    A(f"s_add_u32 s{sKM}, s{sT0}, {KMVM - 131072}")
    assert RING == 0
    def sbits(dst, terms):
        for i, (src, lo, n, sh) in enumerate(terms):
            A(f"s_bfe_u32 s{sT3}, s{src}, {(n << 16) | lo}")
            A(f"s_lshl_b32 s{sT3 if i else dst}, s{sT3}, {sh}")
            if i: A(f"s_add_u32 s{dst}, s{dst}, s{sT3}")
    sbits(sRingA, [(sR, 3, 2, 11), (sWv, 1, 1, 10), (sR, 1, 2, 8), (sWv, 0, 1, 7), (sR, 0, 1, 6)])
    A(f"s_add_u32 s{sRingW}, s{sRingA}, 8192")
    sbits(sT0, [(sR, 0, 5, 8), (sWv, 0, 2, 6)])
    for a in range(4):
        A(f"s_xor_b32 s{sT3}, s{sWv}, {a}\ns_lshl_b32 s{sT3}, s{sT3}, 20\ns_add_u32 s{sRow+a}, s{sT3}, s{sT0}")
    srd(A, sW, 8, 8192)
    sbits(sT0, [(sWv, 0, 1, 12), (sR, 0, 1, 11), (sR, 3, 2, 8), (sR, 1, 2, 6), (sWv, 1, 1, 3)])
    A(f"buffer_load_dword v29, v26, s[{sW}:{sW+3}], s{sT0} offen")
    for q in range(4): A(f"v_mov_b32 v{36+q}, -1")
    for par in range(2):
        for n in range(2):
            A(f"buffer_store_dwordx4 v[36:39], v{vL16}, {ws}, s{sInR} offen offset:{n*1024}")
        A(f"s_xor_b32 s{sInR}, s{sInR}, {PARX}")
    A(f"buffer_store_dword v36, v{vPub}, {ws}, s{sRingW} offen")
    A.wait_vm()
    A(f"buffer_store_dword v29, v{vPub}, {ws}, s{sRingA} offen")
    A.wait_vm()
    A("s_barrier")
    A(f"s_cmp_lg_u32 s{sWv}, 0\ns_cbranch_scc1 L_t_noarr")
    A("s_mov_b64 exec, 1")
    A(f"v_mov_b32 v30, 1\nv_mov_b32 v31, {D_ARM}")
    A(f"global_atomic_add v31, v30, s[4:5] sc1")
    A("s_mov_b64 exec, -1")
    A("L_t_noarr:")

def team_weights(A, o):
    batches = [(X_, s) for X_ in 'qkv' for s in range(8)]
    NB = 3
    def issue(b):
        X_, s = batches[b]
        if s == 0: srd(A, sW, {'q': 16, 'k': 24, 'v': 32}[X_], 4194304)
        for ib in range(16):
            d = 64*(ib>>3) + 8*((ib>>2)&1) + 4*(s&1) + (ib&3)
            A(f"s_add_u32 s{sT0}, s{sRow+(s>>1)}, {d*8192}")
            A(f"buffer_load_dword v{32+16*(b%4)+ib}, v27, s[{sW}:{sW+3}], s{sT0} offen", tag=('w', b))
    for b in range(NB): issue(b)
    for b in range(len(batches)):
        X_, s = batches[b]
        A.wait_vm(('w', b))
        if b + NB < len(batches): issue(b + NB)
        for t in range(2):
            f = (X_, s, t)
            dst = place[f][1] if place[f][0] == 'v' else 96 + 8*t
            for q in range(8):
                A(f"v_perm_b32 v{dst+q}, v{32+16*(b%4)+2*q+1}, v{32+16*(b%4)+2*q}, s{sPHi if t else sPLo}")
            put_frag(A, f, dst)
    srd(A, sW, 40, 4194304)
    A(f"s_lshl_b32 s{sT1}, s{sR}, 17")
    A(f"s_lshl_b32 s{sT2}, s{sWv}, 8")
    A(f"s_add_u32 s{sT1}, s{sT1}, s{sT2}")
    for k in range(2):
        for ib in range(16):
            e = 64*k + 32*(ib>>3) + 8*((ib>>1)&1) + 2*((ib>>2)&1) + (ib&1)
            A(f"s_add_u32 s{sT0}, s{sT1}, {e*1024}")
            A(f"buffer_load_dwordx4 {vr(32+4*ib,4)}, v28, s[{sW}:{sW+3}], s{sT0} offen")
        A.wait_vm()
        for t in range(8):
            f = ('o', k, t)
            dst = place[f][1] if place[f][0] == 'v' else 96 + 8*(t&1)
            for q in range(8):
                A(f"v_perm_b32 v{dst+q}, v{32+4*(2*q+1)+(t>>1)}, v{32+4*(2*q)+(t>>1)}, s{sPHi if t&1 else sPLo}")
            put_frag(A, f, dst)
        A.wait_lds()

def nops(A, n):
    while n > 0:
        k = min(n, 8); A(f"s_nop {k-1}"); n -= k

def flagload(tmp):
    ws = f"s[{sWS}:{sWS+3}]"
    return (f"buffer_load_dwordx4 {vr(tmp,4)}, v{vL16}, {ws}, s{sFKT} offen sc1\ns_waitcnt vmcnt(0)\n"
            f"v_and_b32 v{tmp}, v{tmp}, v{tmp+1}\nv_and_b32 v{tmp+2}, v{tmp+2}, v{tmp+3}\nv_and_b32 v{tmp}, v{tmp}, v{tmp+2}\n"
            f"v_cmp_ne_u32 s[{sKM_}:{sKM_+1}], 0, v{tmp}\ns_nop 4\n")

MF = "v_mfma_f32_16x16x32_bf16"
DPP8 = "row_ror:8 row_mask:0xf bank_mask:"


DPP4 = "row_ror:4 row_mask:0xf bank_mask:0xf"

def poll(A, OOL, name, dst, soff, tmp, depth, gap, fill, use, redo=""):
    ws = f"s[{sWS}:{sWS+3}]"
    def issue():
        for n in range(2): A(f"buffer_load_dwordx4 {vr(dst+4*n,4)}, v{vL16}, {ws}, s{soff} offen offset:{n*1024} sc1")
    for i in range(depth - 1):
        issue()
        k = gap
        while fill and k > 0: fill.pop(0)(); k -= 1
        nops(A, k)
    issue()
    while fill: fill.pop(0)()
    A(f"{name}:")
    w = 2 * (depth - 1)
    A(f"s_waitcnt vmcnt({w+1})")
    if depth == 1: use(0)
    A(f"v_max3_u32 v{tmp}, v{dst}, v{dst+1}, v{dst+2}")
    A(f"v_max_u32 v{tmp}, v{tmp}, v{dst+3}")
    if depth > 1: use(0)
    A(f"s_waitcnt vmcnt({w})")
    if depth == 1: use(1)
    A(f"v_max3_u32 v{tmp}, v{tmp}, v{dst+4}, v{dst+5}")
    A(f"v_max3_u32 v{tmp}, v{tmp}, v{dst+6}, v{dst+7}")
    if depth > 1: use(1)
    A(f"v_cmp_eq_u32 vcc, -1, v{tmp}")
    A(f"s_cbranch_vccnz {name}_re")
    ld = "\n".join(f"buffer_load_dwordx4 {vr(dst+4*n,4)}, v{vL16}, {ws}, s{soff} offen offset:{n*1024} sc1" for n in range(2))
    OOL.append(f"{name}_re:\n{ld}\n{redo}\n" + retry(f"{name}_re2", name, f"{name}_ok"))
    A(f"{name}_ok:")
    A.vm = ['poll'] * w

def team_step(A, o, OOL):
    ws = f"s[{sWS}:{sWS+3}]"
    def ST(i):
        if o.get('prof') and (o.get('pm', 0xfff) >> i) & 1: A(f"s_memtime s[{76+2*i}:{77+2*i}]")
    nv0 = o.get('nv0', 4)
    spec = o.get('spec', 1)
    order = OWN[:8+nv0] + QO + KO
    A("L_t_pre:")
    A.vm = []; A.lds = []
    def use_ring(n):
        if n == 0: A("s_waitcnt lgkmcnt(0)")
        A(f"ds_write_b128 v{vXP0}, {vr(P+4*n,4)} offset:{n*1024}", tag='xw')
        if spec and n == 0: smf(A, order[0])
        if spec and n == 1: smf(A, order[1])
    redo = "s_nop 7\ns_nop 7\n" + "\n".join(f"v_mov_b64 {vr(QA+i,2)}, 0" for i in range(0, 8, 2)) if spec else ""
    poll(A, OOL, "L_t_ring", P, sRingR, PM, o.get('dp2', 1), o.get('g2', 24), [], use_ring, redo)
    if o.get('prof'): A("s_mov_b64 s[98:99], s[76:77]\ns_mov_b64 s[96:97], s[90:91]")
    ST(0)
    side = {}
    def at(pos, fn): side.setdefault(pos, []).append(fn if callable(fn) else (lambda: A(fn)))
    def run(order, skip=0):
        for pos, f in enumerate(order):
            if pos >= skip: smf(A, f)
            for fn in side.get(pos, []): fn()
        assert max(side) < len(order)
        side.clear()
    b1 = o.get('b1', 3)
    pk = o.get('pk', 1)
    if o.get('arm', 0) > 1: at(pk, f"buffer_store_dword v{VT}, v{vPub}, {ws}, s{sRingW} offen")
    at(pk, lambda: A(f"buffer_load_dwordx4 {vr(KT,4)}, v{vKTg}, {ws}, s{sKT} offen sc1", tag='kt'))
    at(pk, lambda: A(f"buffer_load_dwordx4 {vr(KT+4,4)}, v{vKTg}, {ws}, s{sKT1} offen sc1", tag='kt'))
    at(pk+1, lambda: A(f"buffer_load_dwordx4 {vr(VT,4)}, v{vL16}, {ws}, s{sVT} offen offset:2048 sc1", tag='vt'))
    at(pk+1, lambda: A(f"buffer_load_dwordx4 {vr(VT+4,4)}, v{vL16}, {ws}, s{sVT} offen offset:3072 sc1", tag='vt'))
    def flagchk():
        A("L_t_fl:")
        A(f"s_bitcmp1_b64 s[{sKM_}:{sKM_+1}], s{sFB}")
        A("s_cbranch_scc0 L_t_fl_re")
        OOL.append("L_t_fl_re:\n" + flagload(PM) + retry("L_t_fl_re2", "L_t_fl", "L_t_fl_ok"))
        A("L_t_fl_ok:")
        if not o.get('nopf'): A(f"buffer_load_dword v{vDum}, v{vPf}, {ws}, s{sPF} offen sc1")
    if 'pf' not in o: at(pk+2, flagchk)
    def bar1():
        A.wait_lds('xw'); A("s_barrier"); ST(1)
    at(b1, bar1)
    xr = o.get('xr', 2)
    for s in range(2, 8):
        at(b1 + (s-2)//xr, lambda s=s: A(f"ds_read_b128 {vr(P+4*s,4)}, v{vXP0+(s>>1)} offset:{(s&1)*1024}", tag=('xp', s)))
    if 'pf' in o: at(b1 + o['pf'], flagchk)
    p = b1 + 6//xr
    if not o.get('nokm'): at(p, f"buffer_store_dwordx4 {vr(KV4,4)}, v{vL16}, {ws}, s{sKM} offen sc1\ns_add_u32 s{sKM}, s{sKM}, 131072")
    p = max(p + 1, 7)
    for i, (f, h) in enumerate(halves(GM)): at(p + i, lambda f=f, h=h: lds_half(A, f, h))
    at(p, f"s_cmp_lt_u32 s{sFB}, 63")
    at(p+1, f"s_cselect_b32 s{sT0}, 524288, 0\ns_addc_u32 s{sFB}, s{sFB}, 0")
    at(p+2, f"s_add_u32 s{sPF}, s{sPF}, s{sT0}\ns_xor_b32 s{sRingR}, s{sRingR}, 8192")
    if not o.get('nopf'):
        at(p+3, f"s_add_u32 s{sKT}, s{sKT}, 524288\ns_add_u32 s{sKT1}, s{sKT1}, 524288")
        at(p+4, f"s_add_u32 s{sVT}, s{sVT}, 524288")
    qe = 8 + nv0 + 12
    qf = qe + o.get('qf', 1)
    at(qf, f"v_add_f32 v{QA}, v{QA}, v{QA+2}\nv_add_f32 v{QA+1}, v{QA+1}, v{QA+3}\nv_add_f32 v{QA+4}, v{QA+4}, v{QA+6}")
    at(qf+1, f"v_add_f32 v{QA+5}, v{QA+5}, v{QA+7}")
    at(qf+1, f"v_cvt_pk_bf16_f32 v{QA+2}, v{QA}, v{QA+4}\nv_cvt_pk_bf16_f32 v{QA+3}, v{QA+1}, v{QA+5}")
    at(qf+1, lambda: A(f"ds_write2_b32 v{vQw}, v{QA+2}, v{QA+3} offset0:0 offset1:4", tag='qw'))
    def barq():
        A.wait_lds('qw'); A("s_barrier")
        for n in range(2): A(f"ds_read_b128 {vr(QA+4*n,4)}, v{vL16} offset:{L_Q+n*1024}", tag=('q2', n))
    bq = qf + 1 + o.get('bq', 4)
    at(bq, barq)
    go = halves(GO)
    for pos in [qe] + list(range(qf + 2, bq - 1)) + list(range(bq + 1, len(order))):
        if go: at(pos, lambda fh=go.pop(0): lds_half(A, *fh))
    for i, pos in enumerate((o.get('x8', 11), o.get('x9', 23))): at(pos, lambda i=i: ST(8+i))
    run(order, 2 if spec else 0)
    ST(2)
    vq = OWN[8+nv0:] + VO
    def V(n=1):
        for _ in range(n):
            if vq: smf(A, vq.pop(0))
    V(o.get('v0', 0))
    A.wait_vm('kt')
    for n in range(2):
        A.wait_lds(('q2', n))
        A(f"{MF} {vr(PM,4)}, {vr(KT+4*n,4)}, {vr(QA+4*n,4)}, {vr(PM,4) if n else 0}")
    A(f"v_add_f32 v{KA}, v{KA}, v{KA+2}\nv_add_f32 v{KA+1}, v{KA+1}, v{KA+3}")
    A(f"v_add_f32 v{KA+4}, v{KA+4}, v{KA+6}\nv_add_f32 v{KA+5}, v{KA+5}, v{KA+7}")
    A(f"v_cvt_pk_bf16_f32 v{KV4}, v{KA}, v{KA+4}\nv_cvt_pk_bf16_f32 v{KV4+1}, v{KA+1}, v{KA+5}")
    A(f"ds_write2_b32 v{vKw}, v{KV4}, v{KV4+1} offset0:0 offset1:4", tag='kw')
    V(o.get('va', 0))
    def sfin(D):
        A(f"v_add_f32_dpp v{D}, v{D+2}, v{D} {DPP8}0x3")
        A(f"v_add_f32_dpp v{D}, v{D+1}, v{D+3} {DPP8}0xc")
        A(f"v_cvt_pk_bf16_f32 v{D}, 0, v{D}")
        A(f"v_mul_f32 v{D}, s{sScale}, v{D}")
        A(f"v_cvt_pk_bf16_f32 v{D}, 0, v{D}")
    sfin(PM)
    A(f"ds_write_b32 v{vSw}, v{PM} offset:{L_ST}", tag='sw')
    V(o.get('v1', 2))
    A.wait_lds('kw')
    A("s_barrier")
    ST(3)
    for n in range(2): A(f"ds_read_b128 {vr(KA+4*n,4)}, v{vL16} offset:{L_K+n*1024}", tag=('k2', n))
    V(o.get('v2', 1))
    A.wait_lds('sw')
    A("s_barrier")
    X = KT + 4
    A(f"ds_read_b128 {vr(X,4)}, v{vL16} offset:{L_ST}", tag='st')
    A(f"v_mov_b32 v{PM+1}, 0")
    A(f"v_mov_b32 v{PM+2}, 0")
    for i in range(o.get('v3', 3)):
        V(1)
        if go: lds_half(A, *go.pop(0))
    while go: lds_half(A, *go.pop(0))
    for n in range(2):
        A.wait_lds(('k2', n))
        A(f"{MF} {vr(KT,4)}, {vr(KA+4*n,4)}, {vr(QA+4*n,4)}, {vr(KT,4) if n else 0}")
    sm, mx, t1, t2, PT = KT, KA, KT+2, KT+3, QA+4
    V(o.get('v4', 1))
    A.wait_lds('st')
    A(f"v_max3_f32 v{mx}, v{X}, v{X+1}, v{X+2}")
    V(o.get('v5', 1))
    sfin(KT)
    A(f"v_max3_f32 v{mx}, v{mx}, v{X+3}, v{sm}")
    V(1)
    A(f"v_max_f32_dpp v{mx}, v{mx}, v{mx} {DPP8}0xf")
    for sw in ('16', '32'):
        A(f"v_mov_b32 v{t1}, v{mx}")
        V(1)
        A(f"v_permlane{sw}_swap_b32 v{t1}, v{mx}")
        A(f"v_max_f32 v{mx}, v{mx}, v{t1}")
    ST(4)
    A(f"v_mul_f32 v{mx}, s{sL2E}, v{mx}")
    S5 = [X, X+1, X+2, X+3, sm]
    V(1)
    for r in S5: A(f"v_fma_f32 v{r}, v{r}, s{sL2E}, -v{mx}")
    for r in S5:
        V(1)
        A(f"v_exp_f32 v{r}, v{r}")
    V(16)
    A(f"v_cvt_pk_bf16_f32 v{PT}, v{X}, v{X+1}")
    A(f"v_cvt_pk_bf16_f32 v{PT+1}, v{X+2}, v{X+3}")
    A(f"v_mov_b32_dpp v{t1}, v{sm} {DPP8}0xf")
    A(f"v_mov_b32_dpp v{PT+2}, v{PT} {DPP8}0xf")
    A(f"v_mov_b32_dpp v{PT+3}, v{PT+1} {DPP8}0xf")
    A(f"v_add_f32 v{VA}, v{VA}, v{VA+2}\nv_add_f32 v{VA+1}, v{VA+1}, v{VA+3}")
    A.wait_vm('vt')
    OA = KA
    A(f"{MF} {vr(OA,4)}, {vr(VT,4)}, {vr(PT,4)}, 0")
    A(f"v_add_f32 v{VA+4}, v{VA+4}, v{VA+6}\nv_add_f32 v{VA+5}, v{VA+5}, v{VA+7}")
    A(f"v_cvt_pk_bf16_f32 v{KV4+2}, v{VA}, v{VA+1}")
    A(f"{MF} {vr(OA+4,4)}, {vr(VT+4,4)}, {vr(PT,4)}, 0")
    A(f"v_cvt_pk_bf16_f32 v{KV4+3}, v{VA+4}, v{VA+5}")
    A(f"v_cvt_pk_bf16_f32 v{PM}, v{sm}, v{t1}")
    A(f"v_cvt_pk_bf16_f32 v{PM+3}, v{sm}, v{t1}")
    A(f"s_cmp_eq_u32 s{sS}, 63")
    A(f"s_cbranch_scc1 L_t_tail")
    A(f"v_add_f32 v{t2}, v{X}, v{X+1}")
    A(f"v_mfma_f32_16x16x16_bf16 {vr(OA,4)}, {vr(KV4+2,2)}, {vr(PM,2)}, {vr(OA,4)}")
    A(f"v_add_f32 v{X+2}, v{X+2}, v{X+3}")
    A(f"v_add_f32 v{t2}, v{t2}, v{sm}")
    A(f"v_mfma_f32_16x16x16_bf16 {vr(OA+4,4)}, {vr(KV4+2,2)}, {vr(PM+2,2)}, {vr(OA+4,4)}")
    A(f"v_add_f32 v{t2}, v{t2}, v{X+2}")
    zq = [P + i for i in range(0, 32, 2)]
    def Z(n=1):
        for _ in range(n):
            if zq: A(f"v_mov_b64 {vr(zq.pop(0),2)}, 0")
    Z(2)
    A(f"v_add_f32_dpp v{t2}, v{t2}, v{t2} {DPP8}0xf")
    for sw in ('16', '32'):
        A(f"v_mov_b32 v{t1}, v{t2}")
        Z(2)
        A(f"v_permlane{sw}_swap_b32 v{t1}, v{t2}")
        A(f"v_add_f32 v{t2}, v{t2}, v{t1}")
    A(f"v_rcp_f32 v{t1}, v{t2}")
    Z(1)
    for i in range(0, 8, 2):
        A(f"v_pk_mul_f32 {vr(OA+i,2)}, {vr(OA+i,2)}, {vr(t1,2)} op_sel_hi:[1,0]")
    for r in range(4): A(f"v_cvt_pk_bf16_f32 v{QA+r}, v{OA+r}, v{OA+4+r}")
    A(f"ds_write_b128 v{vXOw}, {vr(QA,4)} offset:{L_O}", tag='ow')
    arm = o.get('arm', 0)
    if arm: zero64(A, KT, 4, '-1')
    Z(6 - 2*bool(arm))
    A.wait_lds()
    ST(5)
    A("s_barrier")
    for n in range(2): A(f"ds_read_b128 {vr(KA+4*n,4)}, v{vL16} offset:{L_O+n*1024}", tag=('o', n))
    for fh in halves(GV): lds_half(A, *fh)
    A(f"ds_read_b128 {vr(VA,4)}, v{vL16} offset:{L_SEL}", tag='sel')
    Z(16)
    if arm:
        A(f"s_xor_b32 s{sT0}, s{sInR}, {PARX}")
        for n in range(2): A(f"buffer_store_dwordx4 {vr(KT,4)}, v{vL16}, {ws}, s{sT0} offen offset:{n*1024}")
    A(f"s_add_u32 s{sS}, s{sS}, 1")
    def fin(t):
        d = P + 4*t
        return [f"v_add_f32 v{d}, v{d}, v{d+2}", f"v_add_f32 v{d+1}, v{d+1}, v{d+3}", f"v_cvt_pk_bf16_f32 v{QA+t}, v{d}, v{d+1}"]
    def st(u): return f"buffer_store_dwordx4 {vr(QA+4*u,4)}, v{vInW}, {ws}, s{sInW+u} offen"
    for u in range(3):
        l = fin(2*u) + fin(2*u+1)
        for i, pos in enumerate((5, 6, 6, 7, 8, 8) if u < 2 else (5, 5, 6, 6, 7, 7)): at(4*u + pos, l[i])
    at(o.get('s0', 12), st(0))
    gh = halves(GH[3:]) + halves(GH[:3])
    for pos in range(4, 4 + o.get('ghw', 0)): at(pos, lambda fh=gh.pop(0): lds_half(A, *fh))
    run(O_ORDER)
    for x in fin(6) + fin(7): A(x)
    A(st(1))
    ST(6)
    fill = [lambda: A(f"s_xor_b32 s{sInW}, s{sInW}, {PARX}"), lambda: A(f"s_xor_b32 s{sInW+1}, s{sInW+1}, {PARX}")]
    zz = [(lambda r=r: A(f"v_mov_b64 {vr(r,2)}, 0")) for r in range(KA+6, QA-1, -2)] + \
         [(lambda r=r: A(f"v_mov_b64 {vr(r,2)}, -1")) for r in (VT, VT+2)[:1 if arm else 2]]
    gl = [(lambda fh=fh: lds_half(A, *fh)) for fh in gh]
    g1n = min(o.get('gh1', 14), len(gl))
    while zz or g1n:
        if g1n: fill.append(gl.pop(0)); g1n -= 1
        if zz: fill.append(zz.pop(0))
    k = o.get('d1', 24)
    while fill and k > 0: fill.pop(0)(); k -= 1
    nops(A, k)
    A.wait_lds('sel')
    def use_in(n):
        A(f"{MF} {vr(PM,4)}, {vr(VA,4)}, {vr(KT+4*n,4)}, {vr(PM,4) if n else 0}")
    poll(A, OOL, "L_t_in", KT, sInR, VA+4, o.get('dp1', 1), o.get('g1', 24), fill, use_in)
    for e in range(2): A(f"v_add_f32_dpp v{PM+e}, v{PM+e}, v{PM+e} {DPP8}0xf")
    for e in range(2): A(f"v_add_f32_dpp v{PM+e}, v{PM+e}, v{PM+e} {DPP4}")
    A(f"v_cvt_pk_bf16_f32 v{PM+2}, v{PM}, v{PM+1}")
    A(f"buffer_store_dword v{PM+2}, v{vPub}, {ws}, s{sRingW} offen")
    ST(7)
    if arm < 2: A(f"buffer_store_dword v{VT}, v{vPub}, {ws}, s{sRingA} offen")
    for n in range(0 if arm else 2): A(f"buffer_store_dwordx4 {vr(VT,4)}, v{vL16}, {ws}, s{sInR} offen offset:{n*1024}")
    A(f"s_xor_b32 s{sRingW}, s{sRingW}, 8192\ns_xor_b32 s{sRingA}, s{sRingA}, 8192")
    A(f"s_xor_b32 s{sInR}, s{sInR}, {PARX}")
    zero64(A, VA, 8)
    for g in gl: g()
    nops(A, o.get('d2', 0))
    if o.get('prof'):
        A(f"s_cmp_eq_u32 s{sS}, {o.get('ps', 40)}\ns_cbranch_scc1 L_t_dump")
        d = "L_t_dump:\ns_waitcnt lgkmcnt(0)\n"
        d += f"s_lshl_b32 s{sT0}, s{sR}, 8\ns_lshl_b32 s{sT1}, s{sWv}, 6\ns_add_u32 s{sT0}, s{sT0}, s{sT1}\ns_add_u32 s{sT0}, s{sT0}, {PROF}\n"
        for i in range(12):
            d += f"v_mov_b32 v{PM}, s{76+2*i}\nbuffer_store_dword v{PM}, off, {ws}, s{sT0} offset:{4*i}\n"
        d += "s_branch L_t_pre"
        OOL.append(d)
    A("s_branch L_t_pre")

def emit_team(A, o):
    ws = f"s[{sWS}:{sWS+3}]"
    OOL = []
    team_setup(A, o)
    team_weights(A, o)
    if o.get('time') and o.get('tw', 0) == 0: A("s_memtime s[70:71]")
    wait_cnt(A, OOL, "L_t_arm", D_ARM, 32)
    if o.get('time') and o.get('tw', 0) == 1: A("s_memtime s[70:71]")
    wait_cnt(A, OOL, "L_t_cx", D_CX, N_CX)
    if o.get('time') and o.get('tw', 0) == 2: A("s_memtime s[70:71]")
    A("L_t_f0:")
    A(flagload(32))
    A(f"s_bitcmp1_b32 s{sKM_}, 0")
    A("s_cbranch_scc0 L_t_f0_re")
    OOL.append(retry("L_t_f0_re", "L_t_f0", "L_t_f0_ok"))
    A("L_t_f0_ok:")
    A(f"s_add_u32 s{sPF}, s{sVT}, 524288")
    A(f"s_mov_b32 s{sFB}, 1")
    A(f"s_mov_b32 s{sS}, 0")
    zero64(A, KV4, 4)
    zero64(A, QA, 24)
    zero64(A, VT, 2, '-1')
    A.lds = []
    for fh in halves(GH): lds_half(A, *fh)
    if o.get('time'): A("s_memtime s[72:73]")
    team_step(A, o, OOL)
    A("L_t_tail:")
    A(f"buffer_store_dwordx4 {vr(KV4,4)}, v{vL16}, {ws}, s{sKM} offen sc1")
    A("s_waitcnt vmcnt(0) lgkmcnt(0)")
    if o.get('time'):
        A("s_memtime s[74:75]")
        A("s_waitcnt lgkmcnt(0)")
        A(f"s_or_b32 s{sT0}, s{sR}, s{sWv}\ns_cbranch_scc1 L_t_end")
        A("s_mov_b64 exec, 1")
        A("s_sub_u32 s70, s70, s68\ns_sub_u32 s72, s72, s68\ns_sub_u32 s74, s74, s68")
        A(f"v_mov_b32 v32, s70\nv_mov_b32 v33, s72\nv_mov_b32 v34, s74\nv_mov_b32 v35, s{sSpin}\nv_mov_b32 v31, 96")
        A("global_store_dwordx4 v31, v[32:35], s[4:5]")
        A("v_mov_b32 v32, s68\nglobal_store_dword v31, v32, s[4:5] offset:16")
        A("L_t_end:")
    A("s_endpgm")
    for t in OOL: A(t)
```

```python
from asmlib import *
from layout import *
import gen_team as GT
import gen_team2 as GT2
import gen_team3 as GT3
from gen_team import (sWS, sW, sXCC, sR, sWv, sT0, sT1, sT2, sT3, sPLo, sPHi, sScale, sL2E, sSpin, srd, retry, wait_cnt, f2u)
NAME = 'parallel_sum__memory_aug_recurrent_mem_tr__dense_activation_relu__prompt_kernel'
ws = f"s[{sWS}:{sWS+3}]"
MF = "v_mfma_f32_16x16x32_bf16"
vL16, vG, vC, vL, vA0, vA1, vA2, vA3 = 1, 2, 3, 4, 5, 6, 7, 8

def lanes(A):
    A(f"v_and_b32 v{vL}, 63, v0")
    A(f"v_lshrrev_b32 v{vG}, 4, v{vL}")
    A(f"v_and_b32 v{vC}, 15, v{vL}")
    A(f"v_lshlrev_b32 v{vL16}, 4, v{vL}")

def load_w(A, jobs, voff, width, stage, tmp, NB=7):
    nb = NB + 1
    op = {1: 'buffer_load_dword', 2: 'buffer_load_dwordx2'}[width]
    def issue(b):
        pre, rows, dest = jobs[b]
        if pre: pre()
        last = None
        for i, (sr, cst) in enumerate(rows):
            if last is None or not (0 <= cst - last < 4096):
                A(f"s_add_u32 s{sT0}, s{sr}, {cst}"); last = cst
            off = f" offset:{cst-last}" if cst != last else ""
            A(f"{op} {vr(stage+(b%nb)*8*width+i*width, width)}, v{voff}, s[{sW}:{sW+3}], s{sT0} offen{off}", tag=('w', b))
    for b in range(min(NB, len(jobs))): issue(b)
    for b in range(len(jobs)):
        A.wait_vm(('w', b))
        if b + NB < len(jobs): issue(b + NB)
        base = stage + (b % nb)*8*width
        for t in range(2*width):
            kind, idx = jobs[b][2](t)
            d = idx if kind == 'v' else tmp + 4*(t & 1)
            for q in range(4):
                A(f"v_perm_b32 v{d+q}, v{base+(2*q+1)*width+(t>>1)}, v{base+2*q*width+(t>>1)}, s{sPHi if t&1 else sPLo}")
            if kind == 'a':
                for q in range(4): A(f"v_accvgpr_write_b32 a{idx+q}, v{d+q}")

def cnt_add(A, off, name, va=30):
    A(f"v_mov_b32 v{va}, 1\nv_mov_b32 v{va+1}, {off}")
    A("s_mov_b64 exec, 1")
    A(f"global_atomic_add v{va+1}, v{va}, s[4:5] sc1")
    A("s_mov_b64 exec, -1")

def red_g(A, op, v, t):
    for sw in ('16', '32'):
        A(f"v_mov_b32 v{t}, v{v}")
        A(f"v_permlane{sw}_swap_b32 v{t}, v{v}")
        A(f"{op} v{v}, v{v}, v{t}")

def rnd(A, d, s=None): A(f"v_cvt_pk_bf16_f32 v{d}, 0, v{d if s is None else s}")

def two_pass(A, body):
    q = list(A.vm)
    for _ in range(4):
        B = Asm(); B.vm = list(q); body(B); q = list(B.vm)
    A.vm = list(q); body(A)
    assert A.vm == q, (A.vm, q)

def stamp(A, o, i):
    if o.get('time'): A(f"s_memtime s[{70+2*i}:{71+2*i}]")

def dump_stamps(A, o, n, extra=()):
    if not o.get('time'): return
    A("s_waitcnt lgkmcnt(0)")
    A(f"s_lshl_b32 s{sT0}, s{sXCC}, 5\ns_add_u32 s{sT0}, s{sT0}, s{sR}\ns_lshl_b32 s{sT0}, s{sT0}, 2\ns_add_u32 s{sT0}, s{sT0}, s{sWv}\ns_lshl_b32 s{sT0}, s{sT0}, 6\ns_add_u32 s{sT0}, s{sT0}, {PROF+0x10000}")
    for i, r in enumerate([70+2*i for i in range(n)] + list(extra)):
        A(f"s_sub_u32 s{r}, s{r}, s68")
        A(f"v_mov_b32 v{16+i}, s{r}")
        A(f"buffer_store_dword v{16+i}, off, {ws}, s{sT0} offset:{4*i}")
    A(f"v_mov_b32 v15, s{sSpin}\nv_mov_b32 v14, s68")
    A(f"buffer_store_dwordx2 v[14:15], off, {ws}, s{sT0} offset:56")

HS = [8, 16, 17, 18, 24, 31]
def emit_head(A, o):
    OOL = []
    sH, sRep, sXo, sQo, sKo, sMo, sFo, sFp, sI, sWb, sOo, sFOo = 20, 21, 22, 23, 24, 25, 26, 27, 28, 29, 30, 31
    XB, AC, OQ, OK_, OV, NEG, ONE, WV = 16, 80, 104, 108, 112, 120, 124, 128
    lanes(A)
    A(f"s_sub_u32 s{sH}, s{sXCC}, 1\ns_lshl_b32 s{sH}, s{sH}, 3\ns_and_b32 s{sT0}, s{sR}, 7\ns_add_u32 s{sH}, s{sH}, s{sT0}")
    A(f"s_lshr_b32 s{sRep}, s{sR}, 3")
    A(f"s_lshl_b32 s{sWb}, s{sH}, 8\ns_lshl_b32 s{sT0}, s{sWv}, 6\ns_add_u32 s{sWb}, s{sWb}, s{sT0}")
    A(f"v_lshlrev_b32 v{vA0}, 16, v{vG}\nv_lshl_add_u32 v{vA0}, v{vC}, 2, v{vA0}")
    jobs = []
    for xi, X_ in enumerate('qkv'):
        for k in range(16):
            pre = (lambda xi=xi: srd(A, sW, 16+8*xi, 4194304)) if k == 0 else None
            dest = (lambda t, xi=xi, k=k: ('a', 128*xi+8*k+4*t) if xi < 2 else ('v', WV+8*k+4*t))
            jobs.append((pre, [(sWb, (32*k+i)*8192) for i in range(8)], dest))
    A(f"s_lshl_b32 s{sXo}, s{sRep}, 15\ns_add_u32 s{sXo}, s{sXo}, {XF}")
    A(f"s_lshl_b32 s{sT0}, s{sRep}, 5\ns_add_u32 s{sT0}, s{sT0}, s{sH}\ns_lshl_b32 s{sT0}, s{sT0}, 2\ns_add_u32 s{sT0}, s{sT0}, s{sWv}")
    A(f"s_lshl_b32 s{sQo}, s{sT0}, 11\ns_add_u32 s{sQo}, s{sQo}, {QF}")
    A(f"s_lshl_b32 s{sKo}, s{sT0}, 12\ns_add_u32 s{sKo}, s{sKo}, {KTV}")
    A(f"s_lshl_b32 s{sMo}, s{sT0}, 10\ns_add_u32 s{sMo}, s{sMo}, {KMVM}")
    A(f"s_lshl_b32 s{sFo}, s{sH}, 10\ns_lshl_b32 s{sT0}, s{sWv}, 2\ns_add_u32 s{sFo}, s{sFo}, s{sT0}\ns_lshl_b32 s{sT0}, s{sRep}, 4\ns_add_u32 s{sFo}, s{sFo}, s{sT0}\ns_add_u32 s{sFo}, s{sFo}, {F_KT}")
    if o.get('pt'):
        for r_ in (sQo, sKo): A(f"buffer_load_dword v126, v{vL16}, {ws}, s{r_} offen")
    load_w(A, jobs, vA0, 1, XB, AC)
    stamp(A, o, 0)
    A(f"s_sub_u32 s{sFp}, s{sMo}, {KMVM}\ns_lshr_b32 s{sFp}, s{sFp}, 4\ns_add_u32 s{sFp}, s{sFp}, {F_DUM}")
    for q in range(4): A(f"v_mov_b32 v{NEG+q}, -1")
    A(f"v_mov_b32 v{ONE}, 1")
    wait_cnt(A, OOL, "L_h_cx", D_CX, N_CX, 126)
    stamp(A, o, 1)
    def xload(B, n):
        B(f"buffer_load_dwordx4 {vr(XB+4*(n%16),4)}, v{vL16}, {ws}, s{sXo} offen offset:{(n%4)*1024}", tag=('x', n % 16))
        if n % 4 == 3: B(f"s_add_u32 s{sXo}, s{sXo}, {4096 + (3*32768 if n % 32 == 31 else 0)}")
    for n in range(16): xload(A, n)
    A(f"s_mov_b32 s{sI}, 16")
    A("s_waitcnt vmcnt(0)")
    stamp(A, o, 6)
    A("L_h_p1:")
    def body(B):
        for n in range(32):
            tau, k = n >> 4, n & 15
            x = vr(XB+4*k, 4)
            B.wait_vm(('x', k))
            if o.get('time') and n in HS: B(f"s_cmp_lg_u32 s{sI}, 16\ns_cbranch_scc1 L_h_tx{n}\ns_memtime s[{54+2*HS.index(n)}:{55+2*HS.index(n)}]\nL_h_tx{n}:")
            for xi in range(3):
                for t in range(2):
                    ac = vr(AC+8*xi+4*t, 4); c = ac if k else '0'
                    if xi < 2: B(f"{MF} {ac}, {vr(128*xi+8*k+4*t,4,'a')}, {x}, {c}")
                    else: B(f"{MF} {ac}, {x}, {vr(WV+8*k+4*t,4)}, {c}")
            xload(B, n + 16)
            if n == 1: B(f"buffer_store_dwordx4 {vr(NEG,4)}, v{vL16}, {ws}, s{sMo} offen sc1\ns_add_u32 s{sMo}, s{sMo}, {4*131072}", tag='d')
            if n == 0 and o.get('time'): B(f"s_cmp_lg_u32 s{sI}, 15\ns_cbranch_scc1 L_h_ts0\ns_memtime s[78:79]\nL_h_ts0:")
            if n == 17:
                B.wait_vm('dl')
                if o.get('time'): B(f"s_cmp_lg_u32 s{sI}, 15\ns_cbranch_scc1 L_h_ts1\ns_memtime s[80:81]\nL_h_ts1:")
                B("s_mov_b64 exec, 1")
                B(f"buffer_store_dword v{ONE}, off, {ws}, s{sFp} sc1")
                B("s_mov_b64 exec, -1")
                B(f"s_mov_b32 s{sFp}, s{sFo}\ns_add_u32 s{sFo}, s{sFo}, 64")
            if k == 15:
                for i in range(4): B(f"v_cvt_pk_bf16_f32 v{OQ+i}, v{AC+i}, v{AC+4+i}")
                if not o.get('noq'): B(f"buffer_store_dwordx4 {vr(OQ,4)}, v{vL16}, {ws}, s{sQo} offen offset:{tau*1024}")
                for i in range(4): B(f"v_cvt_pk_bf16_f32 v{OK_+i}, v{AC+8+i}, v{AC+12+i}")
                if not o.get('nok'): B(f"buffer_store_dwordx4 {vr(OK_,4)}, v{vL16}, {ws}, s{sKo} offen offset:{tau*1024} sc1")
                for t in range(2):
                    for j in range(2): B(f"v_cvt_pk_bf16_f32 v{OV+4*t+2*tau+j}, v{AC+16+4*t+2*j}, v{AC+16+4*t+2*j+1}")
                if tau:
                    for t in range(2): B(f"buffer_store_dwordx4 {vr(OV+4*t,4)}, v{vL16}, {ws}, s{sKo} offen offset:{2048+t*1024} sc1", tag='dl')
        B(f"s_add_u32 s{sQo}, s{sQo}, {4*262144}\ns_add_u32 s{sKo}, s{sKo}, {4*524288}")
        B(f"s_sub_u32 s{sI}, s{sI}, 1\ns_cmp_lg_u32 s{sI}, 0\ns_cbranch_scc1 L_h_p1")
    two_pass(A, body)
    A.wait_vm()
    A("s_mov_b64 exec, 1")
    A(f"buffer_store_dword v{ONE}, off, {ws}, s{sFp} sc1")
    A("s_mov_b64 exec, -1")
    A("s_barrier")
    stamp(A, o, 2)
    Q, KT, VT, S, SM, KM, VM, OWN, P, PM, OA, OU, mx, t1, t2, vNeg = 16, 32, 64, 80, 88, 92, 108, 112, 116, 120, 128, 144, 152, 153, 154, 155
    vKw, vKr, vVw, vVr = vA0, vA1, vA2, vA3
    sTq, sHf, sMk = 32, 33, 84
    A(f"s_and_b32 s{sTq}, s{sWv}, 1\ns_lshr_b32 s{sHf}, s{sWv}, 1")
    A(f"s_lshl_b32 s{sT0}, s{sRep}, 5\ns_add_u32 s{sT0}, s{sT0}, s{sH}")
    A(f"s_lshl_b32 s{sQo}, s{sT0}, 13\ns_lshl_b32 s{sT1}, s{sTq}, 10\ns_add_u32 s{sQo}, s{sQo}, s{sT1}\ns_add_u32 s{sQo}, s{sQo}, {QF}")
    A(f"s_lshl_b32 s{sKo}, s{sT0}, 14\ns_add_u32 s{sKo}, s{sKo}, {KTV}")
    A(f"s_lshl_b32 s{sMo}, s{sT0}, 12\ns_lshl_b32 s{sT1}, s{sWv}, 10\ns_add_u32 s{sMo}, s{sMo}, s{sT1}\ns_add_u32 s{sMo}, s{sMo}, {KMVM}")
    A(f"s_lshl_b32 s{sT0}, s{sRep}, 1\ns_add_u32 s{sT0}, s{sT0}, s{sTq}")
    A(f"s_lshl_b32 s{sT1}, s{sH}, 1\ns_add_u32 s{sT1}, s{sT1}, s{sHf}")
    A(f"s_mul_i32 s{sOo}, s{sT0}, {OFU}\ns_lshl_b32 s{sT2}, s{sT1}, 11\ns_add_u32 s{sOo}, s{sOo}, s{sT2}\ns_add_u32 s{sOo}, s{sOo}, {OF}")
    A(f"s_lshl_b32 s{sFOo}, s{sT0}, 8\ns_lshl_b32 s{sT2}, s{sT1}, 2\ns_add_u32 s{sFOo}, s{sFOo}, s{sT2}\ns_add_u32 s{sFOo}, s{sFOo}, {F_O}")
    A(f"s_mov_b32 s{sScale}, {f2u(128**-0.5)}\ns_mov_b32 s{sL2E}, {f2u(1.4426950408889634)}")
    A(f"v_lshrrev_b32 v{t1}, 2, v{vC}\nv_and_b32 v{t2}, 3, v{vC}")
    A(f"v_lshlrev_b32 v{vKw}, 7, v{t1}\nv_lshl_add_u32 v{vKw}, v{vG}, 5, v{vKw}\nv_lshl_add_u32 v{vKw}, v{t2}, 2, v{vKw}")
    A(f"s_lshl_b32 s{sT0}, s{sWv}, 9\nv_add_u32 v{vKw}, s{sT0}, v{vKw}")
    A(f"v_lshl_add_u32 v{vVw}, v{vL}, 3, s{sT0}")
    A(f"s_lshl_b32 s{sT0}, s{sHf}, 10\nv_lshl_add_u32 v{vVr}, v{vL}, 3, s{sT0}")
    A(f"v_and_b32 v{mx}, 1, v{vC}\nv_lshlrev_b32 v{mx}, 4, v{mx}\nv_lshl_add_u32 v{mx}, v{t1}, 5, v{mx}\nv_lshl_add_u32 v{vKr}, v{vG}, 7, v{mx}")
    A(f"v_lshl_add_u32 v{t2}, v{t1}, 3, v{t2}\ns_lshl_b32 s{sT0}, s{sTq}, 2\nv_add_u32 v{t2}, s{sT0}, v{t2}")
    A(f"v_lshlrev_b32 v{t1}, 3, v{vG}\nv_sub_u32 v{t2}, v{t2}, v{t1}")
    for j in range(8): A(f"v_cmp_le_i32 s[{sMk+2*j}:{sMk+2*j+1}], {j}, v{t2}")
    A(f"v_mov_b32 v{vNeg}, {f2u(-1e9)}")
    A(f"v_mov_b32 v{PM+1}, 0\nv_mov_b32 v{PM+2}, 0")
    A(f"s_mov_b32 s{sI}, 16")
    A("L_h_p2:")
    A.vm = []; A.lds = []
    for w_ in range(4):
        if w_ % 2 == 0: A(f"s_add_u32 s{sT0}, s{sQo}, {w_*2048}")
        A(f"buffer_load_dwordx4 {vr(Q+4*w_,4)}, v{vL16}, {ws}, s{sT0} offen offset:{(w_%2)*2048}", tag=('q', w_))
        A(f"s_add_u32 s{sT1}, s{sKo}, {w_*4096}")
        for tk in range(2):
            A(f"buffer_load_dwordx4 {vr(KT+8*w_+4*tk,4)}, v{vL16}, {ws}, s{sT1} offen offset:{tk*1024}", tag=('q', w_))
    A(f"s_lshl_b32 s{sT0}, s{sHf}, 13\ns_add_u32 s{sT0}, s{sT0}, s{sKo}\ns_add_u32 s{sT1}, s{sT0}, 4096")
    for w_ in range(2):
        for t in range(2):
            A(f"buffer_load_dwordx4 {vr(VT+8*w_+4*t,4)}, v{vL16}, {ws}, s{sT0+w_} offen offset:{2048+t*1024}")
    for w_ in range(4):
        A.wait_vm(('q', w_))
        for tk in range(2):
            A(f"{MF} {vr(S+4*tk,4)}, {vr(KT+8*w_+4*tk,4)}, {vr(Q+4*w_,4)}, {vr(S+4*tk,4) if w_ else 0}")
    for j in range(8): rnd(A, S+j)
    for j in range(8): A(f"v_mul_f32 v{S+j}, s{sScale}, v{S+j}")
    for j in range(8): rnd(A, S+j)
    for j in range(8): A(f"v_cndmask_b32 v{S+j}, v{vNeg}, v{S+j}, s[{sMk+2*j}:{sMk+2*j+1}]")
    A(f"v_max3_f32 v{mx}, v{S}, v{S+1}, v{S+2}\nv_max3_f32 v{mx}, v{mx}, v{S+3}, v{S+4}\nv_max3_f32 v{mx}, v{mx}, v{S+5}, v{S+6}\nv_max_f32 v{mx}, v{mx}, v{S+7}")
    A("L_h_km:")
    A(f"buffer_load_dwordx4 {vr(OWN,4)}, v{vL16}, {ws}, s{sMo} offen sc1")
    A.wait_vm()
    A(f"v_max3_u32 v{t1}, v{OWN}, v{OWN+1}, v{OWN+2}\nv_max_u32 v{t1}, v{t1}, v{OWN+3}")
    A(f"v_cmp_eq_u32 vcc, -1, v{t1}\ns_cbranch_vccnz L_h_km_re")
    OOL.append(retry("L_h_km_re", "L_h_km", "L_h_km_ok").replace(":\n", f":\ns_sleep {o['bk']}\n", 1) if o.get('bk') else retry("L_h_km_re", "L_h_km", "L_h_km_ok"))
    A("L_h_km_ok:")
    A(f"ds_write2_b32 v{vKw}, v{OWN}, v{OWN+1} offset0:0 offset1:4")
    A(f"ds_write_b64 v{vVw}, {vr(OWN+2,2)} offset:2048")
    A.wait_lds()
    A("s_barrier")
    for w_ in range(4): A(f"ds_read_b128 {vr(KM+4*w_,4)}, v{vKr} offset:{w_*512}", tag=('k', w_))
    for w_ in range(2): A(f"ds_read_b64 {vr(VM+2*w_,2)}, v{vVr} offset:{2048+w_*512}", tag='v')
    for v_ in (vKw, vKr, vVw, vVr): A(f"v_xor_b32 v{v_}, 4096, v{v_}")
    for w_ in range(4):
        A.wait_lds(('k', w_))
        A(f"{MF} {vr(SM,4)}, {vr(KM+4*w_,4)}, {vr(Q+4*w_,4)}, {vr(SM,4) if w_ else 0}")
    for j in range(2): rnd(A, SM+j)
    for j in range(2): A(f"v_mul_f32 v{SM+j}, s{sScale}, v{SM+j}")
    for j in range(2): rnd(A, SM+j)
    A(f"v_max3_f32 v{mx}, v{mx}, v{SM}, v{SM+1}")
    red_g(A, 'v_max_f32', mx, t1)
    A(f"v_mul_f32 v{mx}, s{sL2E}, v{mx}")
    for j in range(10): A(f"v_fma_f32 v{S+j}, v{S+j}, s{sL2E}, -v{mx}")
    for j in range(10): A(f"v_exp_f32 v{S+j}, v{S+j}")
    A(f"v_add_f32 v{t2}, v{S}, v{S+1}")
    for j in range(2, 10): A(f"v_add_f32 v{t2}, v{t2}, v{S+j}")
    red_g(A, 'v_add_f32', t2, t1)
    A(f"v_rcp_f32 v{t1}, v{t2}")
    for j in range(10): A(f"v_mul_f32 v{S+j}, v{S+j}, v{t1}")
    for j in range(4): A(f"v_cvt_pk_bf16_f32 v{P+j}, v{S+2*j}, v{S+2*j+1}")
    A(f"v_cvt_pk_bf16_f32 v{PM}, v{SM}, v{SM+1}\nv_cvt_pk_bf16_f32 v{PM+3}, v{SM}, v{SM+1}")
    for n in range(4): A(f"{MF} {vr(OA+4*n,4)}, {vr(VT+4*n,4)}, {vr(P,4)}, 0")
    A.wait_lds()
    for n in range(4):
        A(f"v_mfma_f32_16x16x16_bf16 {vr(OA+4*n,4)}, {vr(VM+2*(n>>1),2)}, {vr(PM+2*(n&1),2)}, {vr(OA+4*n,4)}")
    for w_ in range(2):
        for i in range(4): A(f"v_cvt_pk_bf16_f32 v{OU+4*w_+i}, v{OA+8*w_+i}, v{OA+8*w_+4+i}")
        A(f"buffer_store_dwordx4 {vr(OU+4*w_,4)}, v{vL16}, {ws}, s{sOo} offen offset:{w_*1024} sc1")
    A.wait_vm()
    A("s_mov_b64 exec, 1")
    A(f"buffer_store_dword v{ONE}, off, {ws}, s{sFOo} sc1")
    A("s_mov_b64 exec, -1")
    A(f"s_add_u32 s{sQo}, s{sQo}, {4*262144}\ns_add_u32 s{sKo}, s{sKo}, {4*524288}\ns_add_u32 s{sMo}, s{sMo}, {4*131072}")
    A(f"s_add_u32 s{sOo}, s{sOo}, {8*OFU}\ns_add_u32 s{sFOo}, s{sFOo}, {8*256}")
    A(f"s_sub_u32 s{sI}, s{sI}, 1\ns_cmp_lg_u32 s{sI}, 0\ns_cbranch_scc1 L_h_p2")
    stamp(A, o, 3)
    dump_stamps(A, o, 7, range(54, 66, 2))
    A("s_endpgm")
    for t in OOL: A(t)

def emit_og(A, o):
    OOL = []
    sIdx, sXo, sOo, sI, sWb, sJ, sU, sFOo, sXa, sCs = 20, 22, 23, 28, 29, 24, 25, 26, 27, 30
    sX, sOut = 84, 88
    vTok = vA1
    def xs(i):
        if o.get('time'): A(f"s_memtime s[{54+2*i}:{55+2*i}]")
    for i in range(6): xs(i)
    lanes(A)
    srd(A, sX, 0, 2097152)
    srd(A, sOut, 80, 2097152)
    srd(A, sW, 64, 512*2752)
    A(f"s_sub_u32 s{sIdx}, s{sXCC}, 5\ns_lshl_b32 s{sIdx}, s{sIdx}, 5\ns_add_u32 s{sIdx}, s{sIdx}, s{sR}")
    A(f"v_lshrrev_b32 v{vA0}, 2, v{vC}\nv_and_b32 v{vA2}, 3, v{vC}\nv_lshl_add_u32 v{vA0}, v{vA0}, 3, v{vA2}")
    A(f"v_lshlrev_b32 v{vA0}, 10, v{vA0}\nv_lshl_add_u32 v{vTok}, v{vG}, 4, v{vA0}")
    A(f"s_cmp_ge_u32 s{sIdx}, 64\ns_cbranch_scc1 L_o_arm")
    A(f"s_cmp_ge_u32 s{sWv}, 2\ns_cbranch_scc1 L_o_ffn")
    RW, F = 32, 96
    A(f"s_lshl_b32 s{sT0}, s{sIdx}, 15\ns_lshl_b32 s{sT1}, s{sWv}, 12\ns_add_u32 s{sT1}, s{sT0}, s{sT1}")
    for k in range(16): A(f"buffer_load_dwordx4 {vr(RW+4*k,4)}, v{vTok}, s[{sX}:{sX+3}], s{sT1} offen offset:{64*k}", tag=k)
    A(f"s_lshl_b32 s{sT1}, s{sWv}, 14\ns_add_u32 s{sXo}, s{sT0}, s{sT1}\ns_add_u32 s{sXo}, s{sXo}, {XF}")
    A(f"s_mov_b32 s{sT2}, 0xffff0000")
    a = [16, 17, 18, 19]; mean, t1, r = 20, 21, 22
    for q in a: A(f"v_mov_b32 v{q}, 0")
    for k in range(64):
        if k % 4 == 0: A.wait_vm(k // 4)
        if k == 0: xs(1)
        A(f"v_lshlrev_b32 v{F+2*k}, 16, v{RW+k}\nv_and_b32 v{F+2*k+1}, s{sT2}, v{RW+k}")
        A(f"v_add_f32 v{a[(2*k)%4]}, v{a[(2*k)%4]}, v{F+2*k}\nv_add_f32 v{a[(2*k+1)%4]}, v{a[(2*k+1)%4]}, v{F+2*k+1}")
    def tot(d):
        A(f"v_add_f32 v{a[0]}, v{a[0]}, v{a[1]}\nv_add_f32 v{a[2]}, v{a[2]}, v{a[3]}\nv_add_f32 v{d}, v{a[0]}, v{a[2]}")
        red_g(A, 'v_add_f32', d, t1)
        A(f"v_mul_f32 v{d}, {f2u(1/512)}, v{d}")
    tot(mean)
    xs(2)
    for q in a: A(f"v_mov_b32 v{q}, 0")
    for k in range(128):
        A(f"v_sub_f32 v{24+k%4}, v{F+k}, v{mean}\nv_fmac_f32 v{a[k%4]}, v{24+k%4}, v{24+k%4}")
    tot(r)
    rnd(A, mean); rnd(A, r)
    A(f"v_add_f32 v{r}, {f2u(1e-5)}, v{r}"); rnd(A, r)
    A(f"v_sqrt_f32 v{r}, v{r}"); rnd(A, r)
    A(f"v_rcp_f32 v{r}, v{r}")
    xs(3)
    for k in range(64):
        for j in range(2):
            f = F+2*k+j
            A(f"v_sub_f32 v{f}, v{f}, v{mean}"); rnd(A, f); A(f"v_mul_f32 v{f}, v{f}, v{r}")
        A(f"v_cvt_pk_bf16_f32 v{RW+k}, v{F+2*k}, v{F+2*k+1}")
        if k % 4 == 3:
            A(f"buffer_store_dwordx4 {vr(RW+k-3,4)}, v{vL16}, {ws}, s{sXo} offen offset:{((k//4)%4)*1024} sc1")
            if k % 16 == 15: A(f"s_add_u32 s{sXo}, s{sXo}, 4096")
    xs(4)
    A.wait_vm()
    cnt_add(A, D_CX, None)
    A("s_branch L_o_ffn")
    A("L_o_arm:")
    A(f"s_cmp_ge_u32 s{sIdx}, 80\ns_cbranch_scc1 L_o_ffn")
    A(f"s_cmp_lg_u32 s{sWv}, 0\ns_cbranch_scc1 L_o_ffn")
    for q in range(4): A(f"v_mov_b32 v{32+q}, 0")
    A(f"s_lshl_b32 s{sT0}, s{sIdx}, 12\ns_add_u32 s{sT0}, s{sT0}, {FLAGS - 64*4096 + (1<<32)}")
    for n in range(4): A(f"buffer_store_dwordx4 v[32:35], v{vL16}, {ws}, s{sT0} offen offset:{n*1024} sc1")
    A.wait_vm()
    cnt_add(A, D_CX, None)
    A("L_o_ffn:")
    A.vm = []
    stamp(A, o, 0)
    XB, AC, OU = 16, 80, 96
    A(f"s_lshl_b32 s{sT0}, s{sIdx}, 2\ns_add_u32 s{sT0}, s{sT0}, s{sWv}")
    A(f"s_mul_i32 s{sT1}, s{sT0}, 2979\ns_lshr_b32 s{sT1}, s{sT1}, 16")
    A(f"s_mul_i32 s{sT2}, s{sT1}, 22\ns_sub_u32 s{sCs}, s{sT0}, s{sT2}")
    A(f"s_cmp_ge_u32 s{sT1}, {0 if o.get('nof1') else 16}\ns_cbranch_scc1 L_o_ffn_done")
    A(f"s_lshl_b32 s{sXo}, s{sT1}, 17\ns_add_u32 s{sXo}, s{sXo}, {XF}")
    A(f"s_mul_i32 s{sOo}, s{sT1}, {8*OFU}\ns_lshl_b32 s{sT2}, s{sCs}, 11\ns_add_u32 s{sOo}, s{sOo}, s{sT2}\ns_add_u32 s{sOo}, s{sOo}, {OF+128*1024}")
    A(f"s_lshl_b32 s{sWb}, s{sCs}, 7")
    if o.get('pt'):
        A(f"s_add_u32 s{sT0}, s{sOo}, {7*OFU}")
        for r_ in (sOo, sT0): A(f"buffer_load_dword v126, v{vL16}, {ws}, s{r_} offen")
    A(f"v_mul_u32_u24 v{vA0}, {8*2752}, v{vG}\nv_lshl_add_u32 v{vA0}, v{vC}, 3, v{vA0}")
    jobs = [(None, [(sWb, (32*k+i)*2752) for i in range(8)], (lambda t, k=k: ('a', 16*k+4*t))) for k in range(16)]
    load_w(A, jobs, vA0, 2, 128, AC)
    xs(5)
    wait_cnt(A, OOL, "L_o_cx", D_CX, N_CX, 126)
    def xload(B, n):
        B(f"buffer_load_dwordx4 {vr(XB+4*(n%16),4)}, v{vL16}, {ws}, s{sXo} offen offset:{(n%4)*1024}", tag=('x', n % 16))
        if n % 4 == 3: B(f"s_add_u32 s{sXo}, s{sXo}, 4096")
    for n in range(16): xload(A, n)
    A(f"s_mov_b32 s{sI}, 8")
    A("s_waitcnt vmcnt(0)")
    A("L_o_f1:")
    def body(B):
        for k in range(16):
            B.wait_vm(('x', k))
            for t in range(4):
                ac = vr(AC+4*t, 4)
                B(f"{MF} {ac}, {vr(16*k+4*t,4,'a')}, {vr(XB+4*k,4)}, {ac if k else 0}")
            xload(B, k)
        for j in range(16): B(f"v_max_f32 v{AC+j}, 0, v{AC+j}")
        for i in range(4):
            for tp in range(2): B(f"v_cvt_pk_bf16_f32 v{OU+2*i+tp}, v{AC+8*tp+i}, v{AC+8*tp+4+i}")
        for a_ in range(0 if o.get('nof1s') else 2): B(f"buffer_store_dwordx4 {vr(OU+4*a_,4)}, v{vL16}, {ws}, s{sOo} offen offset:{a_*1024} sc1")
        B(f"s_add_u32 s{sOo}, s{sOo}, {OFU}")
        B(f"s_sub_u32 s{sI}, s{sI}, 1\ns_cmp_lg_u32 s{sI}, 0\ns_cbranch_scc1 L_o_f1")
    two_pass(A, body)
    A("L_o_ffn_done:")
    A.wait_vm()
    A("s_barrier")
    A(f"s_cmp_lg_u32 s{sWv}, 0\ns_cbranch_scc1 L_o_w")
    cnt_add(A, D_CH, None)
    A("L_o_w:")
    A.vm = []
    stamp(A, o, 1)
    AA, AB, BUF, XR, W2 = 16, 24, 32, 160, 168
    vLw, vLr, vFl = vA2, vA3, 9
    A(f"s_and_b32 s{sJ}, s{sR}, 15\ns_lshr_b32 s{sU}, s{sIdx}, 4")
    A(f"s_lshl_b32 s{sWb}, s{sWv}, 20\ns_lshl_b32 s{sJ}, s{sJ}, 6\ns_add_u32 s{sWb}, s{sWb}, s{sJ}")
    A(f"v_lshlrev_b32 v{vA0}, 13, v{vG}\nv_lshl_add_u32 v{vA0}, v{vC}, 2, v{vA0}")
    jobs = [((lambda: srd(A, sW, 40, 4194304)) if k == 0 else None, [(sWb, (32*k+i)*1024) for i in range(8)], (lambda t, k=k: ('a', 8*k+4*t))) for k in range(32)]
    load_w(A, jobs, vA0, 1, BUF, AA)
    A(f"v_lshlrev_b32 v{vA0}, 14, v{vG}\nv_lshl_add_u32 v{vA0}, v{vC}, 2, v{vA0}")
    def pre2(n):
        if n == 0: srd(A, sW, 72, 1376*1024)
        A(f"s_mul_i32 s{sT1}, s{sWv}, 11\ns_add_u32 s{sT1}, s{sT1}, {n}\ns_and_b32 s{sT2}, s{sT1}, 1")
        A(f"s_lshl_b32 s{sT1}, s{sT1}, 15\ns_mul_i32 s{sT2}, s{sT2}, {24*1024}\ns_sub_u32 s{sT1}, s{sT1}, s{sT2}\ns_add_u32 s{sWb}, s{sT1}, s{sJ}")
    jobs = [((lambda n=n: pre2(n)), [(sWb, i*1024) for i in range(8)], (lambda t, n=n: ('v', W2+8*n+4*t))) for n in range(11)]
    load_w(A, jobs, vA0, 1, BUF, AA)
    A(f"s_lshl_b32 s{sT0}, s{sWv}, 12\nv_add_u32 v{vLw}, s{sT0}, v{vL16}\nv_mov_b32 v{vLr}, v{vL16}")
    A(f"v_lshlrev_b32 v{vFl}, 2, v{vC}")
    A(f"s_mul_i32 s{sOo}, s{sU}, {OFU}\ns_add_u32 s{sOo}, s{sOo}, {OF}")
    A(f"s_lshl_b32 s{sFOo}, s{sU}, 8\ns_lshl_b32 s{sT0}, s{sWv}, 6\ns_add_u32 s{sFOo}, s{sFOo}, s{sT0}\ns_add_u32 s{sFOo}, s{sFOo}, {F_O}")
    wait_cnt(A, OOL, "L_o_cx2", D_CX, N_CX, 164)
    wait_cnt(A, OOL, "L_o_ch", D_CH, N_CH, 164)
    stamp(A, o, 2)
    A("L_o_u:")
    A.vm = []; A.lds = []
    A(f"s_lshr_b32 s{sXa}, s{sU}, 1\ns_lshl_b32 s{sXa}, s{sXa}, 15\ns_and_b32 s{sT0}, s{sU}, 1\ns_lshl_b32 s{sT0}, s{sT0}, 12\ns_add_u32 s{sXa}, s{sXa}, s{sT0}\ns_add_u32 s{sXa}, s{sXa}, s{sJ}")
    A(f"s_mul_i32 s{sT0}, s{sWv}, {11*1024}\ns_add_u32 s{sT0}, s{sT0}, s{sOo}\ns_add_u32 s{sT0}, s{sT0}, {128*1024}")
    for n in range(11):
        A(f"buffer_load_dwordx4 {vr(BUF+4*n,4)}, v{vL16}, {ws}, s{sT0} offen offset:{(n%4)*1024}", tag=n)
        if n % 4 == 3: A(f"s_add_u32 s{sT0}, s{sT0}, 4096")
    A(f"buffer_load_dwordx4 {vr(XR,4)}, v{vTok}, s[{sX}:{sX+3}], s{sXa} offen")
    for n in range(11):
        A.wait_vm(n)
        for t in range(2): A(f"{MF} {vr(AB+4*t,4)}, {vr(W2+8*n+4*t,4)}, {vr(BUF+4*n,4)}, {vr(AB+4*t,4) if n else 0}")
    A(f"s_lshl_b32 s{sT0}, s{sWv}, 15\ns_add_u32 s{sT0}, s{sT0}, s{sOo}")
    for t in range(2): A(f"ds_write_b128 v{vLw}, {vr(AB+4*t,4)} offset:{2048+t*1024}")
    A("L_o_fo:")
    A(f"buffer_load_dword v164, v{vFl}, {ws}, s{sFOo} offen sc1")
    A.wait_vm()
    A("v_cmp_eq_u32 vcc, 0, v164\ns_cbranch_vccnz L_o_fo_re")
    OOL.append(retry("L_o_fo_re", "L_o_fo", "L_o_fo_ok").replace(":\n", f":\ns_sleep {o['bk']}\n", 1) if o.get('bk') else retry("L_o_fo_re", "L_o_fo", "L_o_fo_ok"))
    A("L_o_fo_ok:")
    for n in range(32):
        A(f"buffer_load_dwordx4 {vr(BUF+4*n,4)}, v{vL16}, {ws}, s{sT0} offen offset:{(n%4)*1024}", tag=n)
        if n % 4 == 3: A(f"s_add_u32 s{sT0}, s{sT0}, 4096")
    for n in range(32):
        A.wait_vm(n)
        for t in range(2): A(f"{MF} {vr(AA+4*t,4)}, {vr(8*n+4*t,4,'a')}, {vr(BUF+4*n,4)}, {vr(AA+4*t,4) if n else 0}")
    for t in range(2): A(f"ds_write_b128 v{vLw}, {vr(AA+4*t,4)} offset:{t*1024}")
    A.wait_lds()
    A("s_barrier")
    A(f"s_cmp_lg_u32 s{sWv}, 3\ns_cbranch_scc1 L_o_nx")
    for w_ in range(3):
        for n in range(4): A(f"ds_read_b128 {vr(BUF+16*w_+4*n,4)}, v{vLr} offset:{w_*4096+n*1024}", tag=w_)
    A(f"s_mov_b32 s{sT2}, 0xffff0000")
    for i in range(4): A(f"v_lshlrev_b32 v{BUF+48+i}, 16, v{XR+i}\nv_and_b32 v{BUF+52+i}, s{sT2}, v{XR+i}")
    for w_ in range(3):
        A.wait_lds(w_)
        for j in range(16): A(f"v_add_f32 v{AA+j}, v{AA+j}, v{BUF+16*w_+j}")
    for j in range(16): rnd(A, AA+j)
    for j in range(8): A(f"v_add_f32 v{AA+j}, v{AA+j}, v{BUF+48+j}")
    for j in range(8): rnd(A, AA+j)
    for j in range(8): A(f"v_add_f32 v{AA+j}, v{AA+j}, v{AB+j}")
    for i in range(4): A(f"v_cvt_pk_bf16_f32 v{164+i}, v{AA+i}, v{AA+4+i}")
    A(f"buffer_store_dwordx4 v[164:167], v{vTok}, s[{sOut}:{sOut+3}], s{sXa} offen")
    A("s_nop 1")
    A("L_o_nx:")
    A(f"v_xor_b32 v{vLw}, 0x4000, v{vLw}\nv_xor_b32 v{vLr}, 0x4000, v{vLr}")
    A(f"s_add_u32 s{sOo}, s{sOo}, {6*OFU}\ns_add_u32 s{sFOo}, s{sFOo}, {6*256}")
    A(f"s_add_u32 s{sU}, s{sU}, 6\ns_cmp_lt_u32 s{sU}, 128\ns_cbranch_scc1 L_o_u")
    stamp(A, o, 3)
    dump_stamps(A, o, 4, range(54, 66, 2))
    A("s_endpgm")
    for t in OOL: A(t)

def gen(o):
    A = Asm()
    A.L.append("; @launch grid=(256,1,1) block=(256,1,1) lds=163840")
    A('.amdgcn_target "amdgcn-amd-amdhsa--gfx950"')
    header(A, NAME)
    GT.prologue(A, o)
    A(f"s_cmp_gt_u32 s{sR}, 31\ns_cbranch_scc1 L_exit")
    A(f"s_cmp_eq_u32 s{sXCC}, 0\ns_cbranch_scc1 L_team")
    A(f"s_cmp_gt_u32 s{sXCC}, 4\ns_cbranch_scc1 L_og")
    A("s_branch L_head")
    A("L_exit:\ns_endpgm")
    A("L_team:"); A.vm = []; A.lds = []
    (GT2 if o.get('t2') else GT3).emit_team(A, o)
    A("L_head:"); A.vm = []; A.lds = []
    emit_head(A, o)
    A("L_og:"); A.vm = []; A.lds = []
    emit_og(A, o)
    kd(A, NAME, 256, 256)
    t = A.text()
    if o.get('rt'): t = t.replace('s_memtime', 's_memrealtime')
    return t

if __name__ == '__main__':
    import sys
    o = dict(mimic=1, time=0)
    for a in sys.argv[2:]:
        k, v = a.split('='); o[k] = int(v)
    assert all((j*2979 >> 16) == j // 22 for j in range(384))
    open(sys.argv[1], 'w').write(gen(o))
```

```python
from asmlib import *
from layout import *
import struct

def f2u(x): return struct.unpack('<I', struct.pack('<f', x))[0]

vL16, vWL, vXP0, vXP1, vXP2, vXP3, vIdx, vXQw, vXQo, vXQ2, vXK2, vXOw, vInW, vInR, vPub, vFlag = range(16)
P   = 16
QA  = 48
KA  = 56
VA  = 64
KT  = 72
VT  = 80
PM  = 96
KV4 = 100
T   = 104
WV  = 144
X   = QA
sWS, sW = 8, 12
sXCC, sR, sWv, sN, sS = 16, 17, 18, 19, 20
sRingR, sRingW, sRingA = 21, 22, 23
sInW, sInR = 24, 32
sKT, sKM, sSpin, sFB = 34, 35, 36, 37
sMLo, sMHi, sMPub, sMFlag = 38, 40, 42, 44
sT0, sT1, sT2, sT3 = 46, 47, 48, 49
sPLo, sPHi, sScale, sL2E = 50, 51, 52, 53
sRow = 54
sFKT, sRingWb, sRingRb = 58, 60, 61
sKM_ = 64

QK_ORDER = [('q',0,0),('q',0,1),('k',0,0),('k',0,1),('q',1,0),('q',1,1),('k',1,0),('k',1,1)] + \
           [('q',s,t) for s in range(2,8) for t in range(2)] + [('k',s,t) for s in range(2,8) for t in range(2)]
V_ORDER = [('v',s,t) for s in range(8) for t in range(2)]
O_ORDER = [('o',k,2*u+t) for u in range(4) for k in range(2) for t in range(2)]
LDS_QK1 = [(QK_ORDER[i], b) for i, b in zip(range(5), (1,2,3,4,0))]
LDS_QK2 = [(QK_ORDER[i], b) for i, b in zip(range(18,23), (1,2,3,4,0))]
LDS_O1  = [(O_ORDER[i], b) for i, b in zip(range(5), (3,4,0,1,2))]
LDS_O2  = [(O_ORDER[i], b) for i, b in zip(range(13,16), (3,4,0))]
LDSF = LDS_QK1 + LDS_QK2 + LDS_O1 + LDS_O2
place = {}
for i, (f, b) in enumerate(LDSF): place[f] = ('l', i, b)
rest = [f for f in V_ORDER + QK_ORDER + O_ORDER if f not in place]
for i, f in enumerate(rest):
    place[f] = ('a', 8*i) if i < 32 else ('v', WV + 8*(i-32))
assert len(rest) == 46

def breg(f):
    p = place[f]
    if p[0] == 'l': return vr(T + 8*p[2], 8)
    return vr(p[1], 8, p[0])

def lds_fetch(A, f):
    _, i, b = place[f]
    A(f"ds_read_b128 {vr(T+8*b,4)}, v{vWL} offset:{i*2048}", tag=f)
    A(f"ds_read_b128 {vr(T+8*b+4,4)}, v{vWL} offset:{i*2048+1024}", tag=f)

def smf(A, f):
    X_, s, t = f
    if place[f][0] == 'l': A.wait_lds(f)
    if X_ == 'o':
        acc, a = P + 4*t, X + 8 + 4*s
    else:
        acc, a = {'q': QA, 'k': KA, 'v': VA}[X_] + 4*t, P + 4*s
    A(f"v_smfmac_f32_16x16x64_bf16 {vr(acc,4)}, {vr(a,4)}, {breg(f)}, v{vIdx}")

def put_frag(A, f, src):
    p = place[f]
    if p[0] == 'l':
        A(f"ds_write_b128 v{vWL}, {vr(src,4)} offset:{p[1]*2048}")
        A(f"ds_write_b128 v{vWL}, {vr(src+4,4)} offset:{p[1]*2048+1024}")
    elif p[0] == 'a':
        for q in range(8): A(f"v_accvgpr_write_b32 a{p[1]+q}, v{src+q}")

def srd(A, s, karg, nbytes):
    A(f"s_load_dwordx2 s[{s}:{s+1}], s[0:1], {karg}")
    A(f"s_mov_b32 s{s+2}, {nbytes}")
    A(f"s_mov_b32 s{s+3}, 0x00020000")
    A("s_waitcnt lgkmcnt(0)")

def team_setup(A, o):
    t0, t1, t2, l, g, c = 20, 21, 22, 23, 24, 25
    A(f"v_and_b32 v{l}, 63, v0")
    A(f"v_lshrrev_b32 v{g}, 4, v{l}")
    A(f"v_and_b32 v{c}, 15, v{l}")
    A(f"v_lshlrev_b32 v{vL16}, 4, v{l}")
    A(f"s_mul_i32 s{sT0}, s{sWv}, 36864")
    A(f"s_add_u32 s{sT0}, s{sT0}, 16384")
    A(f"v_add_u32 v{vWL}, s{sT0}, v{vL16}")
    A(f"s_lshl_b32 s{sT1}, s{sWv}, 10")
    A(f"v_add_u32 v{vXP0}, s{sT1}, v{vL16}")
    A(f"v_xor_b32 v{vXP1}, 0x400, v{vXP0}")
    A(f"v_xor_b32 v{vXP2}, 0x800, v{vXP0}")
    A(f"v_xor_b32 v{vXP3}, 0xc00, v{vXP0}")
    A(f"v_bfe_u32 v{t0}, v{c}, 1, 1")
    A(f"v_mul_u32_u24 v{t0}, 0xAAAA, v{t0}")
    A(f"v_add_u32 v{vIdx}, 0x4444, v{t0}")
    A(f"s_add_u32 s{sT2}, s{sT1}, 8192")
    A(f"v_lshrrev_b32 v{t0}, 2, v{c}")
    A(f"v_lshlrev_b32 v{t0}, 8, v{t0}")
    A(f"v_lshl_add_u32 v{t0}, v{g}, 5, v{t0}")
    A(f"v_and_b32 v{t1}, 3, v{c}")
    A(f"v_lshl_add_u32 v{t0}, v{t1}, 2, v{t0}")
    A(f"v_add_u32 v{vXQw}, s{sT2}, v{t0}")
    A(f"v_and_b32 v{t1}, 7, v{c}")
    A(f"v_lshlrev_b32 v{t1}, 4, v{t1}")
    A(f"v_lshl_add_u32 v{t0}, v{g}, 8, v{t1}")
    A(f"v_add_u32 v{vXQo}, s{sT2}, v{t0}")
    A(f"v_lshrrev_b32 v{t2}, 3, v{c}")
    A(f"v_lshl_add_u32 v{t0}, v{t2}, 10, v{t0}")
    A(f"v_add_u32 v{vXQ2}, 8192, v{t0}")
    A(f"v_lshl_add_u32 v{t0}, v{g}, 12, v{t1}")
    A(f"v_lshl_add_u32 v{vInW}, v{t2}, 14, v{t0}")
    A(f"v_bfe_u32 v{t0}, v{c}, 1, 1")
    A(f"v_lshlrev_b32 v{t0}, 10, v{t0}")
    A(f"v_lshl_add_u32 v{t0}, v{g}, 8, v{t0}")
    A(f"v_lshrrev_b32 v{t1}, 2, v{c}")
    A(f"v_lshl_add_u32 v{t0}, v{t1}, 5, v{t0}")
    A(f"v_and_b32 v{t1}, 1, v{c}")
    A(f"v_lshl_add_u32 v{t0}, v{t1}, 4, v{t0}")
    A(f"v_add_u32 v{vXK2}, {8192+128}, v{t0}")
    A(f"v_lshlrev_b32 v{t0}, 4, v{t1}")
    A(f"v_lshl_add_u32 v{t0}, v{t2}, 11, v{t0}")
    A(f"v_bfe_u32 v{t1}, v{c}, 1, 2")
    A(f"v_lshl_add_u32 v{t0}, v{t1}, 6, v{t0}")
    A(f"v_and_b32 v{t1}, 1, v{g}")
    A(f"v_lshl_add_u32 v{t0}, v{t1}, 5, v{t0}")
    A(f"v_lshrrev_b32 v{t2}, 1, v{g}")
    A(f"v_lshl_add_u32 v{t0}, v{t2}, 8, v{t0}")
    A(f"s_lshl_b32 s{sT3}, s{sWv}, 9")
    A(f"v_add_u32 v{vXOw}, s{sT3}, v{t0}")
    A(f"v_lshlrev_b32 v{t0}, 6, v{t1}")
    A(f"v_lshl_add_u32 v{t0}, v{t2}, 9, v{t0}")
    A(f"v_lshrrev_b32 v{vInR}, 2, v{c}")
    A(f"v_lshl_add_u32 v{t0}, v{vInR}, 7, v{t0}")
    A(f"v_and_b32 v{vPub}, 3, v{c}")
    A(f"v_lshl_add_u32 v{vInR}, v{vPub}, 4, v{t0}")
    A(f"v_lshlrev_b32 v26, 4, v{vPub}")
    A(f"v_lshl_add_u32 v26, v{t1}, 6, v26")
    A(f"v_lshl_add_u32 v26, v{t2}, 10, v26")
    A(f"v_lshlrev_b32 v{vPub}, 2, v{vPub}")
    A(f"v_lshl_add_u32 v{vPub}, v{t1}, 5, v{vPub}")
    A(f"v_lshl_add_u32 v{vPub}, v{t2}, 4, v{vPub}")
    A(f"v_lshlrev_b32 v27, 20, v{t2}")
    A(f"v_lshl_add_u32 v27, v{t1}, 17, v27")
    A(f"v_lshl_add_u32 v27, v{c}, 2, v27")
    A(f"v_lshlrev_b32 v28, 14, v{t2}")
    A(f"v_lshl_add_u32 v28, v{t1}, 12, v28")
    A(f"v_lshl_add_u32 v28, v{c}, 4, v28")
    A(f"s_mov_b32 s{sMLo}, 0x00ff00ff\ns_mov_b32 s{sMLo+1}, 0x00ff00ff")
    A(f"s_mov_b32 s{sMHi}, 0xff00ff00\ns_mov_b32 s{sMHi+1}, 0xff00ff00")
    A(f"s_mov_b32 s{sMPub}, 0x000f000f\ns_mov_b32 s{sMPub+1}, 0x000f000f")
    A(f"s_cmp_eq_u32 s{sWv}, 0")
    A(f"s_cselect_b32 s{sMFlag}, 1, 0\ns_mov_b32 s{sMFlag+1}, 0")
    A(f"s_mov_b32 s{sScale}, {f2u(128**-0.5)}")
    A(f"s_mov_b32 s{sL2E}, {f2u(1.4426950408889634 * (1.0 if o['mimic'] else 128**-0.5))}")
    A(f"s_lshl_b32 s{sT0}, s{sWv}, 17")
    A(f"s_lshl_b32 s{sT2}, s{sR}, 7")
    A(f"s_add_u32 s{sT0}, s{sT0}, s{sT2}")
    for par in range(2):
        for u in range(4):
            A(f"s_add_u32 s{sInW+4*par+u}, s{sT0}, {INBOX + par*524288 + u*32768}")
    A(f"s_lshl_b32 s{sFKT}, s{sR}, 10")
    A(f"s_lshl_b32 s{sT0}, s{sWv}, 8")
    A(f"s_add_u32 s{sFKT}, s{sFKT}, s{sT0}")
    A(f"s_add_u32 s{sFKT}, s{sFKT}, {F_KT}")
    A(f"v_lshlrev_b32 v{vFlag}, 2, v{l}")
    A(f"s_lshl_b32 s{sT0}, s{sR}, 14")
    A(f"s_lshl_b32 s{sT2}, s{sWv}, 12")
    A(f"s_add_u32 s{sT0}, s{sT0}, s{sT2}")
    A(f"s_add_u32 s{sInR}, s{sT0}, {INBOX}")
    A(f"s_add_u32 s{sInR+1}, s{sT0}, {INBOX+524288}")
    A(f"s_add_u32 s{sKT}, s{sT0}, {KTV}")
    A(f"s_lshl_b32 s{sT0}, s{sR}, 12")
    A(f"s_add_u32 s{sT0}, s{sT0}, s{sT1}")
    A(f"s_add_u32 s{sKM}, s{sT0}, {KMVM - 131072}")
    A(f"s_lshl_b32 s{sRingRb}, s{sWv}, 11")
    A(f"s_and_b32 s{sT0}, s{sR}, 7")
    A(f"s_lshl_b32 s{sT0}, s{sT0}, 10")
    A(f"s_lshr_b32 s{sT2}, s{sR}, 3")
    A(f"s_lshl_b32 s{sT2}, s{sT2}, 8")
    A(f"s_add_u32 s{sT0}, s{sT0}, s{sT2}")
    A(f"s_lshl_b32 s{sT3}, s{sWv}, 6")
    A(f"s_add_u32 s{sRingWb}, s{sT0}, s{sT3}")
    assert RING == 0
    A(f"s_lshl_b32 s{sT0}, s{sR}, 8")
    A(f"s_add_u32 s{sT0}, s{sT0}, s{sT3}")
    for a in range(4):
        A(f"s_xor_b32 s{sT3}, s{sWv}, {a}")
        A(f"s_lshl_b32 s{sT3}, s{sT3}, 14")
        A(f"s_add_u32 s{sRow+a}, s{sT3}, s{sT0}")
    srd(A, sW, 8, 8192)
    A(f"s_and_b32 s{sT0}, s{sR}, 1")
    A(f"s_lshl_b32 s{sT0}, s{sT0}, 7")
    A(f"s_bfe_u32 s{sT3}, s{sR}, 0x20001")
    A(f"s_lshl_b32 s{sT3}, s{sT3}, 2")
    A(f"s_add_u32 s{sT0}, s{sT0}, s{sT3}")
    A(f"s_add_u32 s{sT0}, s{sT0}, s{sT2}")
    A(f"s_add_u32 s{sT0}, s{sT0}, s{sRingRb}")
    A(f"buffer_load_dword v29, v26, s[{sW}:{sW+3}], s{sT0} offen")
    for q in range(4): A(f"v_mov_b32 v{32+q}, -1")
    for par in range(2):
        for n in range(4):
            A(f"buffer_store_dwordx4 v[32:35], v{vL16}, s[{sWS}:{sWS+3}], s{sInR+par} offen offset:{n*1024}")
    for sl in range(1, 4):
        A(f"s_add_u32 s{sT0}, s{sRingWb}, {sl*8192}")
        A(f"buffer_store_dword v32, v{vPub}, s[{sWS}:{sWS+3}], s{sT0} offen")
    A.wait_vm()
    A(f"buffer_store_dword v29, v{vPub}, s[{sWS}:{sWS+3}], s{sRingWb} offen")
    A.wait_vm()
    A("s_barrier")
    A(f"s_mov_b64 exec, s[{sMFlag}:{sMFlag+1}]")
    A(f"v_mov_b32 v30, 1\nv_mov_b32 v31, 64")
    A(f"s_cbranch_execz L_t_noarr")
    A(f"global_atomic_add v31, v30, s[4:5] sc1")
    A("L_t_noarr:")
    A("s_mov_b64 exec, -1")

def team_weights(A, o):
    batches = [(X_, s) for X_ in 'qkv' for s in range(8)]
    NB = 3
    def issue(b):
        X_, s = batches[b]
        if s == 0: srd(A, sW, {'q': 16, 'k': 24, 'v': 32}[X_], 4194304)
        for ib in range(16):
            d = 256*(ib>>3) + 32*((ib>>1)&1) + 8*((ib>>2)&1) + (ib&1) + 64*(s&1)
            A(f"s_add_u32 s{sT0}, s{sRow+(s>>1)}, {d*8192}")
            A(f"buffer_load_dword v{32+16*(b%4)+ib}, v27, s[{sW}:{sW+3}], s{sT0} offen", tag=('w', b))
    for b in range(NB): issue(b)
    for b in range(len(batches)):
        X_, s = batches[b]
        A.wait_vm(('w', b))
        if b + NB < len(batches): issue(b + NB)
        for t in range(2):
            f = (X_, s, t)
            dst = place[f][1] if place[f][0] == 'v' else 128 + 8*t
            for q in range(8):
                A(f"v_perm_b32 v{dst+q}, v{32+16*(b%4)+2*q+1}, v{32+16*(b%4)+2*q}, s{sPHi if t else sPLo}")
            put_frag(A, f, dst)
    srd(A, sW, 40, 4194304)
    A(f"s_lshl_b32 s{sT1}, s{sR}, 17")
    A(f"s_lshl_b32 s{sT2}, s{sWv}, 8")
    A(f"s_add_u32 s{sT1}, s{sT1}, s{sT2}")
    for k in range(2):
        for ib in range(16):
            e = 64*k + 32*(ib>>3) + 8*((ib>>1)&1) + 2*((ib>>2)&1) + (ib&1)
            A(f"s_add_u32 s{sT0}, s{sT1}, {e*1024}")
            A(f"buffer_load_dwordx4 {vr(32+4*ib,4)}, v28, s[{sW}:{sW+3}], s{sT0} offen")
        A.wait_vm()
        for t in range(8):
            f = ('o', k, t)
            dst = place[f][1] if place[f][0] == 'v' else 128 + 8*(t&1)
            for q in range(8):
                A(f"v_perm_b32 v{dst+q}, v{32+4*(2*q+1)+(t>>1)}, v{32+4*(2*q)+(t>>1)}, s{sPHi if t&1 else sPLo}")
            put_frag(A, f, dst)
        A.wait_lds()

def retry(name, back, ok):
    return (f"{name}:\ns_sub_u32 s{sSpin}, s{sSpin}, 1\ns_cbranch_scc0 {back}\ns_mov_b32 s{sSpin}, 0\ns_branch {ok}")

def wait_cnt(A, OOL, name, off, n, va=30):
    A(f"v_mov_b32 v{va+1}, {off}")
    A(f"{name}:")
    A(f"global_load_dword v{va}, v{va+1}, s[4:5] sc1")
    A.wait_vm()
    A(f"v_cmp_gt_u32 vcc, {n}, v{va}")
    A(f"s_cbranch_vccnz {name}_re")
    OOL.append(retry(f"{name}_re", name, f"{name}_ok"))
    A(f"{name}_ok:")

def zero64(A, r, n, val='0'):
    for i in range(0, n, 2): A(f"v_mov_b64 {vr(r+i,2)}, {val}")

def phaseA_prep(A):
    zero64(A, QA, 20 - 4)
    zero64(A, VA, 4, '-1')
    zero64(A, VA+4, 4)

def team_step(A, o, par, OOL):
    ws = f"s[{sWS}:{sWS+3}]"
    def ST(i):
        if o.get('prof') and par == 0: A(f"s_memtime s[{76+2*i}:{77+2*i}]")
    L = f"L_t{par}"
    vt_cur, vt_nxt = VT + 8*par, VT + 8*(par^1)
    tmp = PM
    ST(0)
    A(f"{L}_ring:")
    A.vm = []
    A(f"buffer_load_dwordx4 {vr(P,4)}, v{vL16}, {ws}, s{sRingR} offen sc1")
    A(f"buffer_load_dwordx4 {vr(P+4,4)}, v{vL16}, {ws}, s{sRingR} offen offset:1024 sc1")
    A.wait_vm()
    A(f"ds_write_b128 v{vXP0}, {vr(P,4)}", tag='xpw')
    A(f"ds_write_b128 v{vXP0}, {vr(P+4,4)} offset:4096", tag='xpw')
    A(f"v_max3_u32 v{tmp}, v{P}, v{P+1}, v{P+2}")
    A(f"v_max3_u32 v{tmp}, v{tmp}, v{P+3}, v{P+4}")
    A(f"v_max3_u32 v{tmp}, v{tmp}, v{P+5}, v{P+6}")
    A(f"v_max_u32 v{tmp}, v{tmp}, v{P+7}")
    A(f"v_cmp_eq_u32 vcc, -1, v{tmp}")
    A(f"s_cbranch_vccnz {L}_ring_re")
    OOL.append(retry(f"{L}_ring_re", f"{L}_ring", f"{L}_ring_ok"))
    A(f"{L}_ring_ok:")
    ST(1)
    A.wait_lds()
    A("s_barrier")
    ST(2)
    for s in range(2, 8):
        A(f"ds_read_b128 {vr(P+4*s,4)}, v{vXP0+(s>>1)} offset:{(s&1)*4096}", tag=('xp', s))
    side = {}
    def at(pos, fn): side.setdefault(pos, []).append(fn)
    for i, (f, b) in enumerate(LDS_QK2): at(i, lambda f=f: lds_fetch(A, f))
    def flagchk():
        A(f"{L}_fl:")
        A(f"s_bitcmp1_b64 s[{sKM_}:{sKM_+1}], s{sFB}")
        A(f"s_cbranch_scc0 {L}_fl_re")
        OOL.append(f"{L}_fl_re:\nbuffer_load_dword v{tmp}, v{vFlag}, {ws}, s{sFKT} offen sc1\ns_waitcnt vmcnt(0)\n" +
                   f"v_cmp_ne_u32 s[{sKM_}:{sKM_+1}], 0, v{tmp}\ns_nop 4\n" + retry(f"{L}_fl_re2", f"{L}_fl", f"{L}_fl_ok"))
        A(f"{L}_fl_ok:")
    at(0, flagchk)
    at(1, lambda: A(f"buffer_load_dwordx4 {vr(vt_nxt,4)}, v{vL16}, {ws}, s{sKT} offen offset:2048 sc1"))
    at(2, lambda: A(f"buffer_load_dwordx4 {vr(vt_nxt+4,4)}, v{vL16}, {ws}, s{sKT} offen offset:3072 sc1"))
    def nextflag():
        A(f"s_add_u32 s{sT0}, s{sS}, 2")
        A(f"s_min_u32 s{sFB}, s{sT0}, 63")
    at(3, nextflag)
    at(4, lambda: A(f"buffer_store_dwordx4 {vr(KV4,4)}, v{vL16}, {ws}, s{sKM} offen sc1\ns_add_u32 s{sKM}, s{sKM}, 131072"))
    for n in range(4):
        at(6+n, lambda n=n: A(f"buffer_store_dwordx4 {vr(VA,4)}, v{vL16}, {ws}, s{sInR+(par^1)} offen offset:{n*1024}"))
    at(10, lambda: A(f"buffer_store_dword v{VA}, v{vPub}, {ws}, s{sRingA} offen"))
    at(12, lambda: A(f"v_mov_b64 {vr(VA,2)}, 0"))
    at(13, lambda: A(f"v_mov_b64 {vr(VA+2,2)}, 0"))
    def ringaddr():
        A(f"s_mov_b32 s{sRingA}, s{sRingW}")
    qt = T + 16
    def qx():
        A(f"v_pk_add_f32 {vr(QA,2)}, {vr(QA,2)}, {vr(QA+2,2)}")
        A(f"v_pk_add_f32 {vr(QA+4,2)}, {vr(QA+4,2)}, {vr(QA+6,2)}")
        A(f"v_cvt_pk_bf16_f32 v{qt}, v{QA}, v{QA+4}")
        A(f"v_cvt_pk_bf16_f32 v{qt+1}, v{QA+1}, v{QA+5}")
        A(f"ds_write2_b32 v{vXQw}, v{qt}, v{qt+1} offset0:0 offset1:4")
        A(f"ds_read_b128 {vr(T,4)}, v{vXQo}", tag='qo')
    at(22, qx)
    for i, (f, b) in enumerate(LDS_O1[:2]): at(23+i, lambda f=f: lds_fetch(A, f))
    for pos, f in enumerate(QK_ORDER):
        if f[1] >= 2: A.wait_lds(('xp', f[1]))
        smf(A, f)
        for fn in side.get(pos, []): fn()
    ST(3)
    A.wait_lds('qo')
    A(f"v_mfma_f32_16x16x32_bf16 {vr(QA,4)}, {vr(KT,4)}, {vr(T,4)}, 0")
    A(f"v_mfma_f32_16x16x32_bf16 {vr(QA+4,4)}, {vr(KT+4,4)}, {vr(T,4)}, 0")
    A(f"buffer_load_dwordx4 {vr(KT,4)}, v{vL16}, {ws}, s{sKT} offen sc1")
    A(f"buffer_load_dwordx4 {vr(KT+4,4)}, v{vL16}, {ws}, s{sKT} offen offset:1024 sc1")
    vq = list(V_ORDER)
    def V(n=1):
        for _ in range(n):
            if vq: smf(A, vq.pop(0))
    V(1)
    A(f"v_pk_add_f32 {vr(KA,2)}, {vr(KA,2)}, {vr(KA+2,2)}")
    A(f"v_pk_add_f32 {vr(KA+4,2)}, {vr(KA+4,2)}, {vr(KA+6,2)}")
    A(f"v_cvt_pk_bf16_f32 v{KV4}, v{KA}, v{KA+4}")
    A(f"v_cvt_pk_bf16_f32 v{KV4+1}, v{KA+1}, v{KA+5}")
    A(f"ds_write2_b32 v{vXQw}, v{KV4}, v{KV4+1} offset0:32 offset1:36")
    A(f"s_mov_b64 exec, s[{sMLo}:{sMLo+1}]")
    A(f"ds_write_b128 v{vXP0}, {vr(QA,4)} offset:12288")
    A(f"s_mov_b64 exec, s[{sMHi}:{sMHi+1}]")
    A(f"ds_write_b128 v{vXP0}, {vr(QA+4,4)} offset:12288")
    A("s_mov_b64 exec, -1")
    V(2)
    A(f"s_cmp_lt_u32 s{sS}, 62")
    A(f"s_cselect_b32 s{sT0}, 524288, 0")
    A(f"s_add_u32 s{sKT}, s{sKT}, s{sT0}")
    A.wait_lds()
    ST(4)
    A("s_barrier")
    ST(5)
    q2, k2, SD = T, T+8, T+16
    for n in range(2):
        A(f"ds_read_b128 {vr(k2+4*n,4)}, v{vXK2} offset:{n*2048}", tag=('qk', n))
        A(f"ds_read_b128 {vr(q2+4*n,4)}, v{vXQ2} offset:{n*2048}", tag=('qk', n))
    for n in range(4):
        A(f"ds_read_b128 {vr(X+4*n,4)}, v{vL16} offset:{12288+n*1024}", tag=('xs', n))
    V(6)
    A.wait_lds(('qk', 0))
    A(f"v_mfma_f32_16x16x32_bf16 {vr(SD,4)}, {vr(k2,4)}, {vr(q2,4)}, 0")
    A.wait_lds(('qk', 1))
    A(f"v_mfma_f32_16x16x32_bf16 {vr(SD,4)}, {vr(k2+4,4)}, {vr(q2+4,4)}, {vr(SD,4)}")
    for f, b in LDS_O1[2:4]: lds_fetch(A, f)
    V(2)
    A.wait_lds(('xs', 1))
    A(f"v_pk_add_f32 {vr(X,2)}, {vr(X,2)}, {vr(X+4,2)}")
    A(f"v_pk_add_f32 {vr(X+2,2)}, {vr(X+2,2)}, {vr(X+6,2)}")
    V(1)
    A.wait_lds(('xs', 3))
    A(f"v_pk_add_f32 {vr(X+8,2)}, {vr(X+8,2)}, {vr(X+12,2)}")
    A(f"v_pk_add_f32 {vr(X+10,2)}, {vr(X+10,2)}, {vr(X+14,2)}")
    V(1)
    A(f"v_pk_add_f32 {vr(X,2)}, {vr(X,2)}, {vr(X+8,2)}")
    A(f"v_pk_add_f32 {vr(X+2,2)}, {vr(X+2,2)}, {vr(X+10,2)}")
    sm, mx, t1, t2, PT = X+4, X+5, X+6, X+7, X+8
    A(f"v_add_f32_dpp v{sm}, v{SD+2}, v{SD} row_ror:8 row_mask:0xf bank_mask:0x3")
    A(f"v_add_f32_dpp v{sm}, v{SD+1}, v{SD+3} row_ror:8 row_mask:0xf bank_mask:0xc")
    lds_fetch(A, LDS_O1[4][0])
    V(1)
    if o['mimic']:
        for i in range(5): A(f"v_cvt_pk_bf16_f32 v{X+i}, 0, v{X+i}")
        V(1)
        for i in range(5): A(f"v_mul_f32 v{X+i}, s{sScale}, v{X+i}")
        for i in range(5): A(f"v_cvt_pk_bf16_f32 v{X+i}, 0, v{X+i}")
    V(16)
    A(f"v_max3_f32 v{mx}, v{X}, v{X+1}, v{X+2}")
    A(f"v_max3_f32 v{mx}, v{mx}, v{X+3}, v{sm}")
    A(f"v_max_f32_dpp v{mx}, v{mx}, v{mx} row_ror:8 row_mask:0xf bank_mask:0xf")
    for sw in ('16', '32'):
        A(f"v_mov_b32 v{t1}, v{mx}")
        A(f"v_permlane{sw}_swap_b32 v{t1}, v{mx}")
        A(f"v_max_f32 v{mx}, v{mx}, v{t1}")
    A(f"v_mul_f32 v{mx}, s{sL2E}, v{mx}")
    for i in range(5): A(f"v_fma_f32 v{X+i}, v{X+i}, s{sL2E}, -v{mx}")
    for i in range(5): A(f"v_exp_f32 v{X+i}, v{X+i}")
    A(f"v_pk_add_f32 {vr(VA,2)}, {vr(VA,2)}, {vr(VA+2,2)}")
    A(f"v_pk_add_f32 {vr(VA+4,2)}, {vr(VA+4,2)}, {vr(VA+6,2)}")
    A(f"v_cvt_pk_bf16_f32 v{PT}, v{X}, v{X+1}")
    A(f"v_cvt_pk_bf16_f32 v{PT+1}, v{X+2}, v{X+3}")
    A(f"v_mov_b32_dpp v{t1}, v{sm} row_ror:8 row_mask:0xf bank_mask:0xf")
    A(f"v_cvt_pk_bf16_f32 v{KV4+2}, v{VA}, v{VA+1}")
    A(f"v_mov_b32_dpp v{PT+2}, v{PT} row_ror:8 row_mask:0xf bank_mask:0xf")
    A(f"v_mov_b32_dpp v{PT+3}, v{PT+1} row_ror:8 row_mask:0xf bank_mask:0xf")
    A(f"v_cvt_pk_bf16_f32 v{KV4+3}, v{VA+4}, v{VA+5}")
    if par == 1:
        A(f"s_cmp_eq_u32 s{sS}, 63")
        A(f"s_cbranch_scc1 L_t_tail")
    A(f"v_cvt_pk_bf16_f32 v{PM}, v{sm}, v{t1}")
    A(f"v_mfma_f32_16x16x32_bf16 {vr(VA,4)}, {vr(vt_cur,4)}, {vr(PT,4)}, 0")
    A(f"v_cvt_pk_bf16_f32 v{PM+3}, v{sm}, v{t1}")
    A(f"v_add_f32 v{t2}, v{X}, v{X+1}")
    A(f"v_mfma_f32_16x16x32_bf16 {vr(VA+4,4)}, {vr(vt_cur+4,4)}, {vr(PT,4)}, 0")
    A(f"v_add_f32 v{X+2}, v{X+2}, v{X+3}")
    A(f"v_add_f32 v{t2}, v{t2}, v{sm}")
    A(f"v_mfma_f32_16x16x16_bf16 {vr(VA,4)}, {vr(KV4+2,2)}, {vr(PM,2)}, {vr(VA,4)}")
    A(f"v_add_f32 v{t2}, v{t2}, v{X+2}")
    A(f"v_mfma_f32_16x16x16_bf16 {vr(VA+4,4)}, {vr(KV4+2,2)}, {vr(PM+2,2)}, {vr(VA+4,4)}")
    A(f"v_add_f32_dpp v{t2}, v{t2}, v{t2} row_ror:8 row_mask:0xf bank_mask:0xf")
    for sw in ('16', '32'):
        A(f"v_mov_b32 v{t1}, v{t2}")
        A(f"v_permlane{sw}_swap_b32 v{t1}, v{t2}")
        A(f"v_add_f32 v{t2}, v{t2}, v{t1}")
    A(f"v_rcp_f32 v{t1}, v{t2}")
    for i in range(0, 8, 2):
        A(f"v_pk_mul_f32 {vr(VA+i,2)}, {vr(VA+i,2)}, {vr(t1,2)} op_sel_hi:[1,0]")
    for r in range(4): A(f"v_cvt_pk_bf16_f32 v{X+r}, v{VA+r}, v{VA+4+r}")
    A(f"ds_write_b128 v{vXOw}, {vr(X,4)}")
    zero64(A, P, 16)
    A.wait_lds()
    ST(6)
    A("s_barrier")
    ST(7)
    A(f"ds_read_b128 {vr(X+8,4)}, v{vL16}", tag='o0')
    A(f"ds_read_b128 {vr(X+12,4)}, v{vL16} offset:1024", tag='o1')
    zero64(A, P+16, 16)
    A(f"s_and_b32 s{sT0}, s{sS}, 3")
    A(f"s_lshl_b32 s{sT0}, s{sT0}, 13")
    A(f"s_add_u32 s{sRingA}, s{sT0}, s{sRingWb}")
    A(f"s_add_u32 s{sS}, s{sS}, 1")
    A(f"s_and_b32 s{sT0}, s{sS}, 3")
    A(f"s_lshl_b32 s{sT0}, s{sT0}, 13")
    A(f"s_add_u32 s{sRingW}, s{sT0}, s{sRingWb}")
    A(f"s_add_u32 s{sRingR}, s{sT0}, s{sRingRb}")
    side = {}
    for i, (f, b) in enumerate(LDS_O2): at(i, lambda f=f: lds_fetch(A, f))
    at(3, lambda: lds_fetch(A, LDS_QK1[0][0]))
    at(4, lambda: lds_fetch(A, LDS_QK1[1][0]))
    def fin(u):
        d = P + 8*u
        A(f"v_pk_add_f32 {vr(d,2)}, {vr(d,2)}, {vr(d+2,2)}")
        A(f"v_pk_add_f32 {vr(d+2,2)}, {vr(d+4,2)}, {vr(d+6,2)}")
        A(f"buffer_store_dwordx4 {vr(d,4)}, v{vInW}, {ws}, s{sInW+4*par+u} offen")
    for u in range(3): at(4*u+6, lambda u=u: fin(u))
    for pos, f in enumerate(O_ORDER):
        A.wait_lds('o%d' % f[1])
        smf(A, f)
        for fn in side.get(pos, []): fn()
    for f, b in LDS_QK1[2:]: lds_fetch(A, f)
    fin(3)
    phaseA_prep(A)
    R = P
    ST(8)
    A(f"{L}_in:")
    A.vm = []
    for n in range(4):
        A(f"buffer_load_dwordx4 {vr(R+4*n,4)}, v{vInR}, {ws}, s{sInR+par} offen offset:{n*1024} sc1", tag=n)
    A.wait_vm(1)
    ST(10)
    A(f"v_pk_add_f32 {vr(R,2)}, {vr(R,2)}, {vr(R+4,2)}")
    A(f"v_pk_add_f32 {vr(R+2,2)}, {vr(R+2,2)}, {vr(R+6,2)}")
    A.wait_vm(2)
    A(f"v_pk_add_f32 {vr(R,2)}, {vr(R,2)}, {vr(R+8,2)}")
    A(f"v_pk_add_f32 {vr(R+2,2)}, {vr(R+2,2)}, {vr(R+10,2)}")
    A.wait_vm(3)
    A(f"v_pk_add_f32 {vr(R,2)}, {vr(R,2)}, {vr(R+12,2)}")
    A(f"v_pk_add_f32 {vr(R+2,2)}, {vr(R+2,2)}, {vr(R+14,2)}")
    A(f"v_permlane32_swap_b32 v{R}, v{R+1}")
    A(f"v_permlane32_swap_b32 v{R+2}, v{R+3}")
    A(f"v_add_f32 v{R}, v{R}, v{R+1}")
    A(f"v_add_f32 v{R+2}, v{R+2}, v{R+3}")
    for ro in (8, 4):
        A(f"v_add_f32_dpp v{R}, v{R}, v{R} row_ror:{ro} row_mask:0xf bank_mask:0xf")
        A(f"v_add_f32_dpp v{R+2}, v{R+2}, v{R+2} row_ror:{ro} row_mask:0xf bank_mask:0xf")
    A(f"v_cmp_u_f32 vcc, v{R}, v{R+2}")
    A(f"v_cvt_pk_bf16_f32 v{R+16}, v{R}, v{R+2}")
    A(f"s_cbranch_vccnz {L}_in_re")
    OOL.append(retry(f"{L}_in_re", f"{L}_in", f"{L}_in_ok"))
    A(f"{L}_in_ok:")
    ST(9)
    A(f"s_mov_b64 exec, s[{sMPub}:{sMPub+1}]")
    A(f"buffer_store_dword v{R+16}, v{vPub}, {ws}, s{sRingW} offen")
    A("s_mov_b64 exec, -1")

def emit_team(A, o):
    ws = f"s[{sWS}:{sWS+3}]"
    OOL = []
    team_setup(A, o)
    team_weights(A, o)
    if o.get('time'): A("s_memtime s[70:71]")
    wait_cnt(A, OOL, "L_t_arm", D_ARM, 32)
    wait_cnt(A, OOL, "L_t_cx", D_CX, N_CX)
    A("L_t_f0:")
    A(f"buffer_load_dword v30, v{vFlag}, {ws}, s{sFKT} offen sc1")
    A("s_waitcnt vmcnt(0)")
    A(f"v_cmp_ne_u32 s[{sKM_}:{sKM_+1}], 0, v30")
    A("s_nop 4")
    A(f"s_bitcmp1_b64 s[{sKM_}:{sKM_+1}], 0")
    A("s_cbranch_scc0 L_t_f0_re")
    OOL.append(retry("L_t_f0_re", "L_t_f0", "L_t_f0_ok"))
    A("L_t_f0_ok:")
    for n in range(2):
        A(f"buffer_load_dwordx4 {vr(KT+4*n,4)}, v{vL16}, {ws}, s{sKT} offen offset:{n*1024} sc1")
        A(f"buffer_load_dwordx4 {vr(VT+4*n,4)}, v{vL16}, {ws}, s{sKT} offen offset:{2048+n*1024} sc1")
    A(f"s_add_u32 s{sKT}, s{sKT}, 524288")
    A(f"s_mov_b32 s{sFB}, 1")
    A(f"s_mov_b32 s{sS}, 0")
    A(f"s_mov_b32 s{sRingR}, s{sRingRb}")
    A(f"s_add_u32 s{sRingA}, s{sRingWb}, {3*8192}")
    A(f"v_mov_b32 v{PM+1}, 0\nv_mov_b32 v{PM+2}, 0")
    zero64(A, KV4, 4)
    A.lds = []
    for f, b in LDS_QK1: lds_fetch(A, f)
    phaseA_prep(A)
    if o.get('time'): A("s_memtime s[72:73]")
    team_step(A, o, 0, OOL)
    team_step(A, o, 1, OOL)
    A("s_branch L_t0_ring")
    A("L_t_tail:")
    A(f"buffer_store_dwordx4 {vr(KV4,4)}, v{vL16}, {ws}, s{sKM} offen sc1")
    A("s_waitcnt vmcnt(0) lgkmcnt(0)")
    if o.get('prof'):
        A("s_mov_b64 exec, 1")
        A(f"s_lshl_b32 s{sT0}, s{sR}, 8\ns_lshl_b32 s{sT1}, s{sWv}, 6\ns_add_u32 s{sT0}, s{sT0}, s{sT1}\ns_add_u32 s{sT0}, s{sT0}, {PROF}")
        for i in range(11):
            A(f"v_mov_b32 v32, s{76+2*i}")
            A(f"buffer_store_dword v32, off, {ws}, s{sT0} offset:{4*i}")
            A("s_waitcnt vmcnt(0)")
    if o.get('time'):
        A(f"s_mov_b64 exec, s[{sMFlag}:{sMFlag+1}]")
        A("s_memtime s[74:75]")
        A("s_waitcnt lgkmcnt(0)")
        A(f"s_cmp_lg_u32 s{sR}, 0\ns_cbranch_scc1 L_t_end")
        A("s_sub_u32 s70, s70, s68\ns_sub_u32 s72, s72, s68\ns_sub_u32 s74, s74, s68")
        A(f"v_mov_b32 v32, s70\nv_mov_b32 v33, s72\nv_mov_b32 v34, s74\nv_mov_b32 v35, s{sSpin}\nv_mov_b32 v31, 96")
        A("global_store_dwordx4 v31, v[32:35], s[4:5]")
        A("L_t_end:")
    A("s_endpgm")
    for t in OOL: A(t)

SQ, SK, SX, SV, SO, S1, sTb, sTo = 76, 80, 84, 92, 96, 40, 38, 39
vTa, vTb, vTd = 17, 18, 15
def team_touch(A, j):
    if j < 24:
        m, ph, i = j >> 3, (j >> 2) & 1, j & 3
        A(f"s_xor_b32 s{sT3}, s{sTb}, {ph << 21}\ns_add_u32 s{sT3}, s{sT3}, {32*i*8192}")
        r = (SQ, SK, SV)[m]
        A(f"buffer_load_dword v{vTd}, v{vTa}, s[{r}:{r+3}], s{sT3} offen")
    elif j < 32:
        A(f"s_add_u32 s{sT3}, s{sTo}, {(j-24)*16384}")
        A(f"buffer_load_dword v{vTd}, v{vTb}, s[{SO}:{SO+3}], s{sT3} offen")

def prologue(A, o):
    if o.get('time'): A("s_memtime s[68:69]")
    A("s_load_dwordx2 s[4:5], s[0:1], 88")
    A(f"s_load_dwordx2 s[{sWS}:{sWS+1}], s[0:1], 96")
    for r, k, n in ((SQ, 16, 4194304), (SK, 24, 4194304), (SV, 32, 4194304), (SO, 40, 4194304), (SX, 0, 2097152), (S1, 64, 512*2752)):
        A(f"s_load_dwordx2 s[{r}:{r+1}], s[0:1], {k}\ns_mov_b32 s{r+2}, {n}\ns_mov_b32 s{r+3}, 0x00020000")
    A(f"s_mov_b32 s{sWS+2}, {WS_BYTES}")
    A(f"s_mov_b32 s{sWS+3}, 0x00020000")
    A(f"s_getreg_b32 s{sXCC}, hwreg(HW_REG_XCC_ID, 0, 4)")
    A(f"s_and_b32 s{sXCC}, s{sXCC}, 7")
    A("v_lshrrev_b32 v1, 6, v0")
    A(f"v_readfirstlane_b32 s{sWv}, v1")
    A(f"s_lshl_b32 s{sT0}, s{sXCC}, 2")
    A(f"s_add_u32 s{sT0}, s{sT0}, {D_RANK}")
    A(f"s_mov_b32 s{sSpin}, 0x20000")
    A(f"s_mov_b32 s{sPLo}, 0x05040100\ns_mov_b32 s{sPHi}, 0x07060302")
    A(f"v_mov_b32 v1, s{sT0}")
    A("v_mov_b32 v2, 1")
    A("v_mov_b32 v4, 0")
    A("v_and_b32 v5, 63, v0")
    A(f"s_bfe_u32 s{sT1}, s2, {(5 << 16) | 3}")
    A(f"s_lshl_b32 s{sT2}, s{sT1}, 2\ns_add_u32 s{sT2}, s{sT2}, s{sWv}")
    A("s_waitcnt lgkmcnt(0)")
    A(f"s_cmp_lg_u32 s{sWv}, 0\ns_cbranch_scc1 L_norank")
    A("s_mov_b64 exec, 1")
    A("global_atomic_add v3, v1, v2, s[4:5] sc0" + (" sc1" if o.get('rk') else ""))
    A("s_mov_b64 exec, -1")
    A("L_norank:")
    nt = 0 if o.get('nt') else 6
    A(f"s_cmp_eq_u32 s{sXCC}, 0\ns_cbranch_scc1 L_p_team")
    A(f"s_cmp_gt_u32 s{sXCC}, 4\ns_cbranch_scc1 L_p_og")
    A(f"v_lshrrev_b32 v6, 5, v5\nv_and_b32 v7, 31, v5\nv_lshlrev_b32 v6, 13, v6\nv_lshl_add_u32 v{vTa}, v7, 6, v6")
    A(f"s_lshl_b32 s{sT2}, s{sT2}, 14\ns_lshl_b32 s{sT0}, s{sXCC}, 11\ns_add_u32 s{sT2}, s{sT2}, s{sT0}\ns_sub_u32 s{sT2}, s{sT2}, 2048\ns_add_u32 s{sT3}, s{sT2}, {1<<21}")
    for j in range(nt):
        r = (SQ, SK, SV)[j >> 1]
        A(f"buffer_load_dword v{vTd}, v{vTa}, s[{r}:{r+3}], s{sT3 if j & 1 else sT2} offen")
    A("s_branch L_p_join")
    A("L_p_og:")
    A(f"s_sub_u32 s{sT0}, s{sXCC}, 5\ns_lshl_b32 s{sT0}, s{sT0}, 20\ns_lshl_b32 s{sT1}, s{sT2}, 13\ns_add_u32 s{sT0}, s{sT0}, s{sT1}\ns_lshl_b32 s{sT2}, s{sT2}, 12")
    A(f"v_lshl_add_u32 v{vTa}, v5, 7, s{sT0}\nv_lshl_add_u32 v{vTb}, v5, 6, s{sT2}")
    for j in range(nt):
        if j < 2: A(f"buffer_load_dword v{vTd}, v{vTa}, s[{SX}:{SX+3}], 0 offen offset:{64*j}")
        else: A(f"buffer_load_dword v{vTd}, v{vTb}, s[{S1}:{S1+3}], 0 offen\nv_add_u32 v{vTb}, {128*4096}, v{vTb}")
    A("s_branch L_p_join")
    A("L_p_team:")
    A(f"v_lshrrev_b32 v6, 1, v5\nv_and_b32 v7, 1, v5\nv_lshlrev_b32 v6, 13, v6\nv_lshl_add_u32 v{vTa}, v7, 6, v6")
    A(f"v_lshrrev_b32 v6, 2, v5\nv_and_b32 v7, 3, v5\nv_lshlrev_b32 v6, 10, v6\nv_lshl_add_u32 v{vTb}, v7, 6, v6")
    A(f"s_lshl_b32 s{sTb}, s{sT1}, 8\ns_lshr_b32 s{sT0}, s{sWv}, 1\ns_lshl_b32 s{sT0}, s{sT0}, 7\ns_add_u32 s{sTb}, s{sTb}, s{sT0}\ns_lshl_b32 s{sT0}, s{sWv}, 20\ns_add_u32 s{sTb}, s{sTb}, s{sT0}")
    A(f"s_lshl_b32 s{sTo}, s{sT1}, 17\ns_lshl_b32 s{sT0}, s{sWv}, 8\ns_add_u32 s{sTo}, s{sTo}, s{sT0}")
    for j in range(nt): team_touch(A, j)
    A("L_p_join:")
    A(f"s_cmp_lg_u32 s{sWv}, 0\ns_cbranch_scc1 L_norank2")
    A(f"s_mov_b64 exec, 1\ns_waitcnt vmcnt({nt})")
    A("ds_write_b32 v4, v3")
    A("s_mov_b64 exec, -1")
    A("s_waitcnt lgkmcnt(0)")
    A("L_norank2:")
    A("s_barrier")
    A("ds_read_b32 v3, v4")
    A("s_waitcnt lgkmcnt(0)")
    A(f"v_readfirstlane_b32 s{sR}, v3")
    A("s_barrier")
    A.lds = []; A.vm = []

if __name__ == '__main__':
    import sys
    o = dict(mimic=1, time=1)
    for a in sys.argv[2:]:
        k, v = a.split('='); o[k] = int(v)
    A = Asm()
    A.L.append("; @launch grid=(256,1,1) block=(256,1,1) lds=163840")
    A('.amdgcn_target "amdgcn-amd-amdhsa--gfx950"')
    header(A, "team_kernel")
    prologue(A, o)
    A(f"s_cmp_lg_u32 s{sXCC}, 0\ns_cbranch_scc1 L_exit")
    A(f"s_cmp_gt_u32 s{sR}, 31\ns_cbranch_scc1 L_exit")
    emit_team(A, o)
    A("L_exit:\ns_endpgm")
    kd(A, "team_kernel", 256, 256)
    if o.get('x'):
        x = o['x']; out = []; inl = False; ph = -1
        for ln in A.L:
            if ln.startswith('L_t0_ring:'): inl = True
            if ln.startswith('L_t_tail:'): inl = False
            if inl:
                if ln.startswith('s_barrier'): ph = (ph + 1) % 3
                poll = ('sc1' in ln and 'load' in ln and (f's{sRingR} ' in ln or f'v{vInR},' in ln))
                if (x & 1) and ph == 0 and ln.startswith('buffer_store'): continue
                if (x & 2) and ph == 0 and ln.startswith('buffer_load') and not poll: continue
                if (x & 4) and ln.startswith('ds_read_b128') and f', v{vWL} ' in ln: continue
                if (x & 8) and ph == 2 and ln.startswith('buffer_store_dwordx4'): continue
            out.append(ln)
        A.L = [l.replace('0x20000', '0x2000') if l.startswith(f's_mov_b32 s{sSpin},') else l for l in out]
    open(sys.argv[1], 'w').write(A.text())
```

```python
from asmlib import *
from layout import *
import gen_team as G1
from gen_team import (f2u, srd, retry, wait_cnt, zero64, prologue,
                      sWS, sW, sXCC, sR, sWv, sT0, sT1, sT2, sT3, sPLo, sPHi, sScale, sL2E, sSpin)

vL16, vWL, vXP0, vXP1, vXP2, vXP3, vIdx, vQw, vKw, vSw, vXOw, vInW, vPub, vKTg, vPf, vDum = range(16)
P, QA, KA, VA, KT, VT, PM, KV4, T, WV = 16, 48, 56, 64, 72, 80, 88, 92, 96, 128
sS, sRingR, sRingW, sRingA = 20, 21, 22, 23
sInW, sInR = 24, 26
sKT, sKT1, sVT, sPF, sKM, sFB, sFKT = 29, 30, 31, 32, 35, 37, 33
sRow = 54
sKM_ = 64
sSch, sSnap, sAll, sPend = 60, 62, 37, 66
L_XP, L_Q, L_K, L_ST, L_O, L_SEL, L_W = 0, 8192, 10240, 12288, 13312, 17408, 32768
PARX = 262144

OWN = [(x, s, t) for x in 'qkv' for s in range(2) for t in range(2)]
QO = [('q', s, t) for s in range(2, 8) for t in range(2)]
KO = [('k', s, t) for s in range(2, 8) for t in range(2)]
VO = [('v', s, t) for s in range(2, 8) for t in range(2)]
O_ORDER = [('o', k, 2*u+t) for u in range(4) for k in range(2) for t in range(2)]
GH = list(zip(OWN[:7], (P+8, P+16, P+24, T, T+8, T+16, T+24)))
GM = list(zip(QO[8:12], (T, T+8, T+16, T+24)))
GO = list(zip(O_ORDER[:4], (T, T+8, T+16, T+24)))
GV = [(O_ORDER[15], VT)]
place = {}
for i, (f, r) in enumerate(GH + GM + GO + GV): place[f] = ('l', i, r)
rest = [f for f in OWN + QO + KO + VO + O_ORDER if f not in place]
assert len(rest) == 48
for i, f in enumerate(rest):
    place[f] = ('a', 8*i) if i < 32 else ('v', WV + 8*(i-32))

def breg(f):
    p = place[f]
    if p[0] == 'l': return vr(p[2], 8)
    return vr(p[1], 8, p[0])

def lds_half(A, f, h):
    _, i, r = place[f]
    A(f"ds_read_b128 {vr(r+4*h,4)}, v{vWL} offset:{i*2048+1024*h}", tag=f)

def halves(grp): return [(f, h) for f, _ in grp for h in range(2)]

def smf(A, f):
    X_, s, t = f
    if place[f][0] == 'l': A.wait_lds(f)
    if X_ == 'o':
        A.wait_lds(('o', s))
        acc, a = P + 4*t, KA + 4*s
    else:
        if s >= 2: A.wait_lds(('xp', s))
        acc, a = {'q': QA, 'k': KA, 'v': VA}[X_] + 4*t, P + 4*s
    A(f"v_smfmac_f32_16x16x64_bf16 {vr(acc,4)}, {vr(a,4)}, {breg(f)}, v{vIdx}")

def put_frag(A, f, src):
    p = place[f]
    if p[0] == 'l':
        A(f"ds_write_b128 v{vWL}, {vr(src,4)} offset:{p[1]*2048}")
        A(f"ds_write_b128 v{vWL}, {vr(src+4,4)} offset:{p[1]*2048+1024}")
    elif p[0] == 'a':
        for q in range(8): A(f"v_accvgpr_write_b32 a{p[1]+q}, v{src+q}")

def bits(A, dst, terms, tmp, base=None):
    first = True
    for (src, lo, n, sh) in terms:
        A(f"v_bfe_u32 v{tmp}, v{src}, {lo}, {n}")
        if first and base is None: A(f"v_lshlrev_b32 v{dst}, {sh}, v{tmp}")
        elif first: A(f"v_lshl_add_u32 v{dst}, v{tmp}, {sh}, {base}")
        else: A(f"v_lshl_add_u32 v{dst}, v{tmp}, {sh}, v{dst}")
        first = False

def team_setup(A, o):
    ws = f"s[{sWS}:{sWS+3}]"
    t0, tid = 20, 21
    A(f"v_mov_b32 v{tid}, v0")
    B = lambda dst, terms, base=None: bits(A, dst, [(tid,) + t for t in terms], t0, base)
    B(vL16, [(0, 6, 4)])
    A(f"s_mov_b32 s{sT0}, {L_W}")
    B(vWL, [(0, 6, 4), (6, 2, 15)], f"s{sT0}")
    B(vXP0, [(0, 6, 4), (6, 2, 11)])
    for a in range(1, 4): A(f"v_xor_b32 v{vXP0+a}, {a*2048}, v{vXP0}")
    A(f"v_bfe_u32 v{t0}, v{tid}, 1, 1")
    A(f"v_mul_u32_u24 v{t0}, 0xAAAA, v{t0}")
    A(f"v_add_u32 v{vIdx}, 0x4444, v{t0}")
    A(f"s_mov_b32 s{sT0}, {L_Q}")
    B(vQw, [(7, 1, 10), (2, 2, 8), (6, 1, 7), (4, 2, 5), (0, 2, 2)], f"s{sT0}")
    A(f"s_mov_b32 s{sT0}, {L_K}")
    B(vKw, [(7, 1, 10), (2, 2, 8), (4, 2, 6), (6, 1, 5), (0, 2, 2)], f"s{sT0}")
    B(vSw, [(6, 2, 8), (5, 1, 7), (0, 3, 4), (4, 1, 3), (3, 1, 2)])
    B(vXOw, [(6, 2, 9), (5, 1, 8), (1, 2, 6), (4, 1, 5), (0, 1, 4), (3, 1, 11)])
    B(vInW, [(2, 2, 14), (4, 1, 13), (5, 1, 11), (0, 2, 4)])
    B(vPub, [(2, 2, 28), (4, 1, 5), (5, 1, 4), (0, 2, 2)])
    B(vKTg, [(1, 1, 12), (3, 1, 10), (4, 2, 8), (6, 2, 6), (2, 1, 5), (0, 1, 4)])
    B(vPf, [(0, 5, 7), (5, 1, 6)])
    A(f"s_lshl_b32 s{sFKT}, s{sR}, 8\ns_add_u32 s{sFKT}, s{sFKT}, {F_KT - 128}")
    sch = sum(1 << int(x) for x in str(o.get('sch', '2,9,32')).split(','))
    A(f"s_mov_b32 s{sSch}, {sch & 0xffffffff}\ns_mov_b32 s{sSch+1}, {sch >> 32}\ns_mov_b32 s{sAll}, 0x01010101")
    A(f"v_mov_b32 v{vDum}, 0")
    B(26, [(5, 1, 10), (0, 2, 4), (4, 1, 2)])
    B(27, [(4, 2, 17), (0, 4, 2)])
    B(28, [(5, 1, 14), (4, 1, 12), (0, 4, 4)])
    B(22, [(2, 1, 1), (0, 1, 0)])
    B(23, [(3, 1, 4)])
    A(f"v_mov_b32 v24, 0x3f80")
    A(f"v_lshlrev_b32 v23, v23, v24")
    for j in range(4):
        A(f"v_cmp_eq_u32 vcc, {j}, v22")
        A(f"v_cndmask_b32 v{32+j}, 0, v23, vcc")
    A(f"ds_write_b128 v{vL16}, v[32:35] offset:{L_SEL}")
    A(f"s_mov_b32 s{sScale}, {f2u(128**-0.5)}")
    A(f"s_mov_b32 s{sL2E}, {f2u(1.4426950408889634)}")
    A(f"s_lshl_b32 s{sT0}, s{sWv}, 16\ns_lshl_b32 s{sT1}, s{sR}, 6\ns_add_u32 s{sT0}, s{sT0}, s{sT1}")
    A(f"s_add_u32 s{sInW}, s{sT0}, {INBOX}\ns_add_u32 s{sInW+1}, s{sT0}, {INBOX+4096}")
    A(f"s_lshl_b32 s{sT0}, s{sR}, 13")
    A(f"s_lshl_b32 s{sRingR}, s{sWv}, 11")
    A(f"s_add_u32 s{sInR}, s{sT0}, {INBOX}\ns_add_u32 s{sInR}, s{sInR}, s{sRingR}")
    A(f"s_mul_i32 s{sKT}, s{sR}, {HSTR}\ns_add_u32 s{sKT}, s{sKT}, {HB+SLOT}")
    A(f"s_add_u32 s{sKT1}, s{sKT}, 8192")
    A(f"s_lshl_b32 s{sT0}, s{sWv}, 12\ns_add_u32 s{sVT}, s{sKT}, s{sT0}")
    A(f"s_lshl_b32 s{sT1}, s{sWv}, 10\ns_add_u32 s{sT0}, s{sKT}, s{sT1}")
    A(f"s_sub_u32 s{sKM}, s{sT0}, {SLOT - 16384}")
    assert RING == 0
    def sbits(dst, terms):
        for i, (src, lo, n, sh) in enumerate(terms):
            A(f"s_bfe_u32 s{sT3}, s{src}, {(n << 16) | lo}")
            A(f"s_lshl_b32 s{sT3 if i else dst}, s{sT3}, {sh}")
            if i: A(f"s_add_u32 s{dst}, s{dst}, s{sT3}")
    sbits(sRingA, [(sR, 3, 2, 11), (sWv, 1, 1, 10), (sR, 1, 2, 8), (sWv, 0, 1, 7), (sR, 0, 1, 6)])
    A(f"s_add_u32 s{sRingW}, s{sRingA}, 8192")
    sbits(sT0, [(sR, 0, 5, 8), (sWv, 0, 2, 6)])
    for a in range(4):
        A(f"s_xor_b32 s{sT3}, s{sWv}, {a}\ns_lshl_b32 s{sT3}, s{sT3}, 20\ns_add_u32 s{sRow+a}, s{sT3}, s{sT0}")
    srd(A, sW, 8, 8192)
    sbits(sT0, [(sWv, 0, 1, 12), (sR, 0, 1, 11), (sR, 3, 2, 8), (sR, 1, 2, 6), (sWv, 1, 1, 3)])
    A(f"buffer_load_dword v29, v26, s[{sW}:{sW+3}], s{sT0} offen")
    for q in range(4): A(f"v_mov_b32 v{36+q}, -1")
    for par in range(2):
        for n in range(2):
            A(f"buffer_store_dwordx4 v[36:39], v{vL16}, {ws}, s{sInR} offen offset:{n*1024}")
        A(f"s_xor_b32 s{sInR}, s{sInR}, {PARX}")
    A(f"buffer_store_dword v36, v{vPub}, {ws}, s{sRingW} offen")
    A.wait_vm()
    A(f"buffer_store_dword v29, v{vPub}, {ws}, s{sRingA} offen")
    A.wait_vm()
    A("s_barrier")
    A(f"s_cmp_lg_u32 s{sWv}, 0\ns_cbranch_scc1 L_t_noarr")
    A("s_mov_b64 exec, 1")
    A(f"v_mov_b32 v30, 1\nv_mov_b32 v31, {D_ARM}")
    A(f"global_atomic_add v31, v30, s[4:5] sc1")
    A("s_mov_b64 exec, -1")
    A("L_t_noarr:")

def team_weights(A, o):
    batches = [(X_, s) for X_ in 'qkv' for s in range(8)]
    NB = 3
    def issue(b):
        X_, s = batches[b]
        if s == 0: srd(A, sW, {'q': 16, 'k': 24, 'v': 32}[X_], 4194304)
        for ib in range(16):
            d = 64*(ib>>3) + 8*((ib>>2)&1) + 4*(s&1) + (ib&3)
            A(f"s_add_u32 s{sT0}, s{sRow+(s>>1)}, {d*8192}")
            A(f"buffer_load_dword v{32+16*(b%4)+ib}, v27, s[{sW}:{sW+3}], s{sT0} offen", tag=('w', b))
    for b in range(NB): issue(b)
    for b in range(len(batches)):
        X_, s = batches[b]
        A.wait_vm(('w', b))
        if not o.get('nt'): G1.team_touch(A, b + 6 + o.get('td', 0))
        if b == 0 and not o.get('nt'):
            for j in range(o.get('td', 0)): G1.team_touch(A, 6 + j)
        if b + NB < len(batches): issue(b + NB)
        for t in range(2):
            f = (X_, s, t)
            dst = place[f][1] if place[f][0] == 'v' else 96 + 8*t
            for q in range(8):
                A(f"v_perm_b32 v{dst+q}, v{32+16*(b%4)+2*q+1}, v{32+16*(b%4)+2*q}, s{sPHi if t else sPLo}")
            put_frag(A, f, dst)
    if not o.get('nt'):
        for j in range(30 + o.get('td', 0), 32): G1.team_touch(A, j)
    srd(A, sW, 40, 4194304)
    A(f"s_lshl_b32 s{sT1}, s{sR}, 17")
    A(f"s_lshl_b32 s{sT2}, s{sWv}, 8")
    A(f"s_add_u32 s{sT1}, s{sT1}, s{sT2}")
    for k in range(2):
        for ib in range(16):
            e = 64*k + 32*(ib>>3) + 8*((ib>>1)&1) + 2*((ib>>2)&1) + (ib&1)
            A(f"s_add_u32 s{sT0}, s{sT1}, {e*1024}")
            A(f"buffer_load_dwordx4 {vr(32+4*ib,4)}, v28, s[{sW}:{sW+3}], s{sT0} offen")
        A.wait_vm()
        for t in range(8):
            f = ('o', k, t)
            dst = place[f][1] if place[f][0] == 'v' else 96 + 8*(t&1)
            for q in range(8):
                A(f"v_perm_b32 v{dst+q}, v{32+4*(2*q+1)+(t>>1)}, v{32+4*(2*q)+(t>>1)}, s{sPHi if t&1 else sPLo}")
            put_frag(A, f, dst)
        A.wait_lds()

def nops(A, n):
    while n > 0:
        k = min(n, 8); A(f"s_nop {k-1}"); n -= k

def flagload(k):
    ws = f"s[{sWS}:{sWS+3}]"
    return (f"s_lshl_b32 s{sT0}, s{sS}, 2\ns_add_u32 s{sT0}, s{sT0}, s{sFKT}\ns_sub_u32 s{sT0}, s{sT0}, s{sPF}\ns_add_u32 s{sT0}, s{sT0}, {4*k}\n"
            f"v_mov_b32 v{PM}, v{vPf}\ns_mov_b32 exec_lo, 0\nv_lshrrev_b32 v{PM}, 2, v{vL16}\nv_add_u32 v{PM}, s{sT0}, v{PM}\n" + ("s_mov_b32 exec_lo, -1\n" if k == 2 else "") +
            f"buffer_load_dword v{vDum}, v{PM}, {ws}, s{sPF} offen sc1\ns_mov_b32 exec_lo, -1\n")
FLCMP = f"v_cmp_eq_u32 s[{sSnap}:{sSnap+1}], s{sAll}, v{vDum}\ns_nop 4\n"
FLFIN = f"s_bitset1_b64 s[{sSnap}:{sSnap+1}], 63\ns_andn2_b64 s[{sKM_}:{sKM_+1}], s[{sSnap}:{sSnap+1}], s[{sSch}:{sSch+1}]\ns_mov_b32 s{sPend}, 0\n"

MF = "v_mfma_f32_16x16x32_bf16"
DPP8 = "row_ror:8 row_mask:0xf bank_mask:"


DPP4 = "row_ror:4 row_mask:0xf bank_mask:0xf"

def poll(A, OOL, name, dst, soff, tmp, depth, gap, fill, use, redo=""):
    ws = f"s[{sWS}:{sWS+3}]"
    def issue():
        for n in range(2): A(f"buffer_load_dwordx4 {vr(dst+4*n,4)}, v{vL16}, {ws}, s{soff} offen offset:{n*1024} sc1")
    for i in range(depth - 1):
        issue()
        k = gap
        while fill and k > 0: fill.pop(0)(); k -= 1
        nops(A, k)
    issue()
    while fill: fill.pop(0)()
    A(f"{name}:")
    w = 2 * (depth - 1)
    A(f"s_waitcnt vmcnt({w+1})")
    if depth == 1: use(0)
    A(f"v_max3_u32 v{tmp}, v{dst}, v{dst+1}, v{dst+2}")
    A(f"v_max_u32 v{tmp}, v{tmp}, v{dst+3}")
    if depth > 1: use(0)
    A(f"s_waitcnt vmcnt({w})")
    if depth == 1: use(1)
    A(f"v_max3_u32 v{tmp}, v{tmp}, v{dst+4}, v{dst+5}")
    A(f"v_max3_u32 v{tmp}, v{tmp}, v{dst+6}, v{dst+7}")
    if depth > 1: use(1)
    A(f"v_cmp_eq_u32 vcc, -1, v{tmp}")
    A(f"s_cbranch_vccnz {name}_re")
    ld = "\n".join(f"buffer_load_dwordx4 {vr(dst+4*n,4)}, v{vL16}, {ws}, s{soff} offen offset:{n*1024} sc1" for n in range(2))
    OOL.append(f"{name}_re:\n{ld}\n{redo}\n" + retry(f"{name}_re2", name, f"{name}_ok"))
    A(f"{name}_ok:")
    A.vm = ['poll'] * w

def team_step(A, o, OOL):
    o.setdefault('pf', 0); o.setdefault('dp1', 2); o.setdefault('d1', 56); o.setdefault('d2', 32); o.setdefault('arm', 2)
    ws = f"s[{sWS}:{sWS+3}]"
    def ST(i):
        if o.get('prof') and (o.get('pm', 0xfff) >> i) & 1: A(f"s_memtime s[{76+2*i}:{77+2*i}]")
    nv0 = o.get('nv0', 4)
    spec = o.get('spec', 1)
    order = OWN[:8+nv0] + QO + KO
    A("L_t_pre:")
    A.vm = []; A.lds = []
    def use_ring(n):
        if n == 0: A("s_waitcnt lgkmcnt(0)")
        A(f"ds_write_b128 v{vXP0}, {vr(P+4*n,4)} offset:{n*1024}", tag='xw')
        if spec and n == 0: smf(A, order[0])
        if spec and n == 1: smf(A, order[1])
    redo = "s_nop 7\ns_nop 7\n" + "\n".join(f"v_mov_b64 {vr(QA+i,2)}, 0" for i in range(0, 8, 2)) if spec else ""
    poll(A, OOL, "L_t_ring", P, sRingR, PM, o.get('dp2', 1), o.get('g2', 24), [], use_ring, redo)
    if o.get('prof'): A("s_mov_b64 s[98:99], s[76:77]\ns_mov_b64 s[96:97], s[90:91]")
    ST(0)
    side = {}
    def at(pos, fn): side.setdefault(pos, []).append(fn if callable(fn) else (lambda: A(fn)))
    def run(order, skip=0):
        for pos, f in enumerate(order):
            if pos >= skip: smf(A, f)
            for fn in side.get(pos, []): fn()
        assert max(side) < len(order)
        side.clear()
    b1 = o.get('b1', 3)
    pk = o.get('pk', 1)
    if o.get('arm', 0) > 1: at(pk, f"buffer_store_dword v{VT}, v{vPub}, {ws}, s{sRingW} offen")
    at(pk, lambda: A(f"buffer_load_dwordx4 {vr(KT,4)}, v{vKTg}, {ws}, s{sKT} offen sc1", tag='kt'))
    at(pk, lambda: A(f"buffer_load_dwordx4 {vr(KT+4,4)}, v{vKTg}, {ws}, s{sKT1} offen sc1", tag='kt'))
    at(pk+1, lambda: A(f"buffer_load_dwordx4 {vr(VT,4)}, v{vL16}, {ws}, s{sVT} offen offset:2048 sc1", tag='vt'))
    at(pk+1, lambda: A(f"buffer_load_dwordx4 {vr(VT+4,4)}, v{vL16}, {ws}, s{sVT} offen offset:3072 sc1", tag='vt'))
    def flagchk():
        A("L_t_fl:")
        A(f"s_bitcmp1_b64 s[{sKM_}:{sKM_+1}], s{sS}")
        A("s_cbranch_scc0 L_t_fl_re")
        OOL.append(f"L_t_fl_re:\ns_cmp_eq_u32 s{sPend}, 0\ns_cbranch_scc1 L_t_fl_np\nL_t_fl_c:\n" + FLCMP +
                   f"s_lshr_b64 s[{sSnap}:{sSnap+1}], s[{sSnap}:{sSnap+1}], 32\ns_lshl_b64 s[{sSnap}:{sSnap+1}], s[{sSnap}:{sSnap+1}], s{sS}\n" + FLFIN +
                   f"L_t_fl_np:\ns_bitcmp1_b64 s[{sSnap}:{sSnap+1}], s{sS}\ns_cbranch_scc0 L_t_fl_sync\n"
                   f"s_bitcmp1_b64 s[{sSch}:{sSch+1}], s{sS}\ns_cbranch_scc0 L_t_fl_ok\n" + flagload(2) +
                   f"s_mov_b32 s{sPend}, 1\ns_add_u32 s{sT0}, s{sS}, 1\ns_bitset0_b64 s[{sKM_}:{sKM_+1}], s{sT0}\ns_branch L_t_fl_ok2\n"
                   "L_t_fl_sync:\n" + flagload(1) + "s_waitcnt vmcnt(0)\n" + retry("L_t_fl_re2", "L_t_fl_c", "L_t_fl_ok"))
        A("L_t_fl_ok:")
        A(f"buffer_load_dword v{vDum}, v{vPf}, {ws}, s{sPF} offen sc1")
        A("L_t_fl_ok2:")
    if 'pf' not in o: at(pk+2, flagchk)
    def bar1():
        A.wait_lds('xw'); A("s_barrier"); ST(1)
    at(b1, bar1)
    xr = o.get('xr', 2)
    for s in range(2, 8):
        at(b1 + (s-2)//xr, lambda s=s: A(f"ds_read_b128 {vr(P+4*s,4)}, v{vXP0+(s>>1)} offset:{(s&1)*1024}", tag=('xp', s)))
    if 'pf' in o: at(b1 + o['pf'], flagchk)
    p = b1 + 6//xr
    if not o.get('nokm'): at(p, f"buffer_store_dwordx4 {vr(KV4,4)}, v{vL16}, {ws}, s{sKM} offen sc1\ns_add_u32 s{sKM}, s{sKM}, {SLOT}")
    p = max(p + 1, 7)
    for i, (f, h) in enumerate(halves(GM)): at(p + i, lambda f=f, h=h: lds_half(A, f, h))
    assert b1 + o['pf'] < p + 2
    at(p+2, f"s_add_u32 s{sPF}, s{sPF}, {SLOT}\ns_xor_b32 s{sRingR}, s{sRingR}, 8192")
    if not o.get('nopf'):
        at(p+3, f"s_add_u32 s{sKT}, s{sKT}, {SLOT}\ns_add_u32 s{sKT1}, s{sKT1}, {SLOT}")
        at(p+4, f"s_add_u32 s{sVT}, s{sVT}, {SLOT}")
    qe = 8 + nv0 + 12
    qf = qe + o.get('qf', 1)
    at(qf, f"v_add_f32 v{QA}, v{QA}, v{QA+2}\nv_add_f32 v{QA+1}, v{QA+1}, v{QA+3}\nv_add_f32 v{QA+4}, v{QA+4}, v{QA+6}")
    at(qf+1, f"v_add_f32 v{QA+5}, v{QA+5}, v{QA+7}")
    at(qf+1, f"v_cvt_pk_bf16_f32 v{QA+2}, v{QA}, v{QA+4}\nv_cvt_pk_bf16_f32 v{QA+3}, v{QA+1}, v{QA+5}")
    at(qf+1, lambda: A(f"ds_write2_b32 v{vQw}, v{QA+2}, v{QA+3} offset0:0 offset1:4", tag='qw'))
    def barq():
        A.wait_lds('qw'); A("s_barrier")
        for n in range(2): A(f"ds_read_b128 {vr(QA+4*n,4)}, v{vL16} offset:{L_Q+n*1024}", tag=('q2', n))
    bq = qf + 1 + o.get('bq', 4)
    at(bq, barq)
    go = halves(GO)
    for pos in [qe] + list(range(qf + 2, bq - 1)) + list(range(bq + 1, len(order))):
        if go: at(pos, lambda fh=go.pop(0): lds_half(A, *fh))
    for i, pos in enumerate((o.get('x8', 11), o.get('x9', 23))):
        if not o.get('pa'): at(pos, lambda i=i: ST(8+i))
    run(order, 2 if spec else 0)
    ST(2)
    vq = OWN[8+nv0:] + VO
    def V(n=1):
        for _ in range(n):
            if vq: smf(A, vq.pop(0))
    V(o.get('v0', 0))
    A.wait_vm('kt')
    for n in range(2):
        A.wait_lds(('q2', n))
        A(f"{MF} {vr(PM,4)}, {vr(KT+4*n,4)}, {vr(QA+4*n,4)}, {vr(PM,4) if n else 0}")
    A(f"v_add_f32 v{KA}, v{KA}, v{KA+2}\nv_add_f32 v{KA+1}, v{KA+1}, v{KA+3}")
    A(f"v_add_f32 v{KA+4}, v{KA+4}, v{KA+6}\nv_add_f32 v{KA+5}, v{KA+5}, v{KA+7}")
    A(f"v_cvt_pk_bf16_f32 v{KV4}, v{KA}, v{KA+4}\nv_cvt_pk_bf16_f32 v{KV4+1}, v{KA+1}, v{KA+5}")
    A(f"ds_write2_b32 v{vKw}, v{KV4}, v{KV4+1} offset0:0 offset1:4", tag='kw')
    V(o.get('va', 0))
    def sfin(D):
        A(f"v_add_f32_dpp v{D}, v{D+2}, v{D} {DPP8}0x3")
        A(f"v_add_f32_dpp v{D}, v{D+1}, v{D+3} {DPP8}0xc")
        A(f"v_cvt_pk_bf16_f32 v{D}, 0, v{D}")
        A(f"v_mul_f32 v{D}, s{sScale}, v{D}")
        A(f"v_cvt_pk_bf16_f32 v{D}, 0, v{D}")
    sfin(PM)
    A(f"ds_write_b32 v{vSw}, v{PM} offset:{L_ST}", tag='sw')
    V(o.get('v1', 2))
    A.wait_lds('kw')
    A("s_barrier")
    ST(3)
    for n in range(2): A(f"ds_read_b128 {vr(KA+4*n,4)}, v{vL16} offset:{L_K+n*1024}", tag=('k2', n))
    V(o.get('v2', 1))
    A.wait_lds('sw')
    A("s_barrier")
    X = KT + 4
    A(f"ds_read_b128 {vr(X,4)}, v{vL16} offset:{L_ST}", tag='st')
    A(f"v_mov_b32 v{PM+1}, 0")
    A(f"v_mov_b32 v{PM+2}, 0")
    for i in range(o.get('v3', 3)):
        V(1)
        if go: lds_half(A, *go.pop(0))
    while go: lds_half(A, *go.pop(0))
    for n in range(2):
        A.wait_lds(('k2', n))
        A(f"{MF} {vr(KT,4)}, {vr(KA+4*n,4)}, {vr(QA+4*n,4)}, {vr(KT,4) if n else 0}")
    sm, mx, t1, t2, PT = KT, KA, KT+2, KT+3, QA+4
    V(o.get('v4', 1))
    A.wait_lds('st')
    A(f"v_max3_f32 v{mx}, v{X}, v{X+1}, v{X+2}")
    V(o.get('v5', 1))
    sfin(KT)
    A(f"v_max3_f32 v{mx}, v{mx}, v{X+3}, v{sm}")
    V(1)
    A(f"v_max_f32_dpp v{mx}, v{mx}, v{mx} {DPP8}0xf")
    for sw in ('16', '32'):
        A(f"v_mov_b32 v{t1}, v{mx}")
        V(1)
        A(f"v_permlane{sw}_swap_b32 v{t1}, v{mx}")
        A(f"v_max_f32 v{mx}, v{mx}, v{t1}")
    ST(4)
    A(f"v_mul_f32 v{mx}, s{sL2E}, v{mx}")
    S5 = [X, X+1, X+2, X+3, sm]
    V(1)
    for r in S5: A(f"v_fma_f32 v{r}, v{r}, s{sL2E}, -v{mx}")
    for r in S5:
        V(1)
        A(f"v_exp_f32 v{r}, v{r}")
    V(16)
    A(f"v_cvt_pk_bf16_f32 v{PT}, v{X}, v{X+1}")
    A(f"v_cvt_pk_bf16_f32 v{PT+1}, v{X+2}, v{X+3}")
    A(f"v_mov_b32_dpp v{t1}, v{sm} {DPP8}0xf")
    A(f"v_mov_b32_dpp v{PT+2}, v{PT} {DPP8}0xf")
    A(f"v_mov_b32_dpp v{PT+3}, v{PT+1} {DPP8}0xf")
    A(f"v_add_f32 v{VA}, v{VA}, v{VA+2}\nv_add_f32 v{VA+1}, v{VA+1}, v{VA+3}")
    A.wait_vm('vt')
    OA = KA
    A(f"{MF} {vr(OA,4)}, {vr(VT,4)}, {vr(PT,4)}, 0")
    A(f"v_add_f32 v{VA+4}, v{VA+4}, v{VA+6}\nv_add_f32 v{VA+5}, v{VA+5}, v{VA+7}")
    A(f"v_cvt_pk_bf16_f32 v{KV4+2}, v{VA}, v{VA+1}")
    A(f"{MF} {vr(OA+4,4)}, {vr(VT+4,4)}, {vr(PT,4)}, 0")
    A(f"v_cvt_pk_bf16_f32 v{KV4+3}, v{VA+4}, v{VA+5}")
    A(f"v_cvt_pk_bf16_f32 v{PM}, v{sm}, v{t1}")
    A(f"v_cvt_pk_bf16_f32 v{PM+3}, v{sm}, v{t1}")
    A(f"s_cmp_eq_u32 s{sS}, 63")
    A(f"s_cbranch_scc1 L_t_tail")
    A(f"v_add_f32 v{t2}, v{X}, v{X+1}")
    A(f"v_mfma_f32_16x16x16_bf16 {vr(OA,4)}, {vr(KV4+2,2)}, {vr(PM,2)}, {vr(OA,4)}")
    A(f"v_add_f32 v{X+2}, v{X+2}, v{X+3}")
    A(f"v_add_f32 v{t2}, v{t2}, v{sm}")
    A(f"v_mfma_f32_16x16x16_bf16 {vr(OA+4,4)}, {vr(KV4+2,2)}, {vr(PM+2,2)}, {vr(OA+4,4)}")
    A(f"v_add_f32 v{t2}, v{t2}, v{X+2}")
    zq = [P + i for i in range(0, 32, 2)]
    def Z(n=1):
        for _ in range(n):
            if zq: A(f"v_mov_b64 {vr(zq.pop(0),2)}, 0")
    Z(2)
    A(f"v_add_f32_dpp v{t2}, v{t2}, v{t2} {DPP8}0xf")
    for sw in ('16', '32'):
        A(f"v_mov_b32 v{t1}, v{t2}")
        Z(2)
        A(f"v_permlane{sw}_swap_b32 v{t1}, v{t2}")
        A(f"v_add_f32 v{t2}, v{t2}, v{t1}")
    A(f"v_rcp_f32 v{t1}, v{t2}")
    Z(1)
    for i in range(0, 8, 2):
        A(f"v_pk_mul_f32 {vr(OA+i,2)}, {vr(OA+i,2)}, {vr(t1,2)} op_sel_hi:[1,0]")
    for r in range(4): A(f"v_cvt_pk_bf16_f32 v{QA+r}, v{OA+r}, v{OA+4+r}")
    A(f"ds_write_b128 v{vXOw}, {vr(QA,4)} offset:{L_O}", tag='ow')
    arm = o.get('arm', 0)
    if arm: zero64(A, KT, 4, '-1')
    Z(6 - 2*bool(arm))
    A.wait_lds()
    ST(5)
    if o.get('pa'):
        A("s_waitcnt vmcnt(1)"); ST(8); A("s_waitcnt vmcnt(0)"); ST(9)
    A("s_barrier")
    for n in range(2): A(f"ds_read_b128 {vr(KA+4*n,4)}, v{vL16} offset:{L_O+n*1024}", tag=('o', n))
    for fh in halves(GV): lds_half(A, *fh)
    A(f"ds_read_b128 {vr(VA,4)}, v{vL16} offset:{L_SEL}", tag='sel')
    Z(16)
    if arm:
        A(f"s_xor_b32 s{sT0}, s{sInR}, {PARX}")
        for n in range(2): A(f"buffer_store_dwordx4 {vr(KT,4)}, v{vL16}, {ws}, s{sT0} offen offset:{n*1024}")
    A(f"s_add_u32 s{sS}, s{sS}, 1")
    def fin(t):
        d = P + 4*t
        return [f"v_add_f32 v{d}, v{d}, v{d+2}", f"v_add_f32 v{d+1}, v{d+1}, v{d+3}", f"v_cvt_pk_bf16_f32 v{QA+t}, v{d}, v{d+1}"]
    def st(u): return f"buffer_store_dwordx4 {vr(QA+4*u,4)}, v{vInW}, {ws}, s{sInW+u} offen"
    for u in range(3):
        l = fin(2*u) + fin(2*u+1)
        for i, pos in enumerate((5, 6, 6, 7, 8, 8) if u < 2 else (5, 5, 6, 6, 7, 7)): at(4*u + pos, l[i])
    at(o.get('s0', 12), st(0))
    gh = halves(GH[3:]) + halves(GH[:3])
    for pos in range(4, 4 + o.get('ghw', 0)): at(pos, lambda fh=gh.pop(0): lds_half(A, *fh))
    run(O_ORDER)
    for x in fin(6) + fin(7): A(x)
    A(st(1))
    ST(6)
    fill = [lambda: A(f"s_xor_b32 s{sInW}, s{sInW}, {PARX}"), lambda: A(f"s_xor_b32 s{sInW+1}, s{sInW+1}, {PARX}")]
    zz = [(lambda r=r: A(f"v_mov_b64 {vr(r,2)}, 0")) for r in range(KA+6, QA-1, -2)] + \
         [(lambda r=r: A(f"v_mov_b64 {vr(r,2)}, -1")) for r in (VT, VT+2)[:1 if arm else 2]]
    gl = [(lambda fh=fh: lds_half(A, *fh)) for fh in gh]
    g1n = min(o.get('gh1', 14), len(gl))
    while zz or g1n:
        if g1n: fill.append(gl.pop(0)); g1n -= 1
        if zz: fill.append(zz.pop(0))
    k = o.get('d1', 24)
    while fill and k > 0: fill.pop(0)(); k -= 1
    nops(A, k)
    A.wait_lds('sel')
    def use_in(n):
        A(f"{MF} {vr(PM,4)}, {vr(VA,4)}, {vr(KT+4*n,4)}, {vr(PM,4) if n else 0}")
    poll(A, OOL, "L_t_in", KT, sInR, VA+4, o.get('dp1', 1), o.get('g1', 24), fill, use_in)
    for e in range(2): A(f"v_add_f32_dpp v{PM+e}, v{PM+e}, v{PM+e} {DPP8}0xf")
    for e in range(2): A(f"v_add_f32_dpp v{PM+e}, v{PM+e}, v{PM+e} {DPP4}")
    A(f"v_cvt_pk_bf16_f32 v{PM+2}, v{PM}, v{PM+1}")
    A(f"buffer_store_dword v{PM+2}, v{vPub}, {ws}, s{sRingW} offen")
    ST(7)
    if arm < 2: A(f"buffer_store_dword v{VT}, v{vPub}, {ws}, s{sRingA} offen")
    for n in range(0 if arm else 2): A(f"buffer_store_dwordx4 {vr(VT,4)}, v{vL16}, {ws}, s{sInR} offen offset:{n*1024}")
    A(f"s_xor_b32 s{sRingW}, s{sRingW}, 8192\ns_xor_b32 s{sRingA}, s{sRingA}, 8192")
    A(f"s_xor_b32 s{sInR}, s{sInR}, {PARX}")
    zero64(A, VA, 8)
    for g in gl: g()
    nops(A, o.get('d2', 0))
    if o.get('time') and 'tw' not in o: A(f"s_cmp_lg_u32 s{sS}, 4\ns_cbranch_scc1 L_t_n4\ns_memtime s[70:71]\nL_t_n4:")
    if o.get('prof'):
        A("s_branch L_t_dump" if o.get('pa') else f"s_cmp_eq_u32 s{sS}, {o.get('ps', 40)}\ns_cbranch_scc1 L_t_dump")
        d = "L_t_dump:\ns_waitcnt lgkmcnt(0)\n"
        d += f"s_lshl_b32 s{sT0}, s{sR}, 8\ns_lshl_b32 s{sT1}, s{sWv}, 6\ns_add_u32 s{sT0}, s{sT0}, s{sT1}\ns_add_u32 s{sT0}, s{sT0}, {PROF}\n"
        if o.get('pa'):
            d += f"s_lshl_b32 s{sT1}, s{sS}, 13\ns_add_u32 s{sT0}, s{sT0}, s{sT1}\ns_add_u32 s{sT0}, s{sT0}, {0x400000-PROF}\n"
            d += "".join(f"v_writelane_b32 v{PM}, s{76+2*i}, {i}\n" for i in range(12))
            d += f"v_lshrrev_b32 v{PM+1}, 2, v{vL16}\ns_mov_b64 exec, 0xfff\nbuffer_store_dword v{PM}, v{PM+1}, {ws}, s{sT0} offen\ns_mov_b64 exec, -1\n"
        for i in range(0 if o.get('pa') else 12):
            d += f"v_mov_b32 v{PM}, s{76+2*i}\nbuffer_store_dword v{PM}, off, {ws}, s{sT0} offset:{4*i}\n"
        d += "s_branch L_t_pre"
        OOL.append(d)
    A("s_branch L_t_pre")

def emit_team(A, o):
    ws = f"s[{sWS}:{sWS+3}]"
    OOL = []
    team_setup(A, o)
    team_weights(A, o)
    if o.get('time') and o.get('tw', 9) == 0: A("s_memtime s[70:71]")
    wait_cnt(A, OOL, "L_t_arm", D_ARM, 32)
    if o.get('time') and o.get('tw', 0) == 1: A("s_memtime s[70:71]")
    wait_cnt(A, OOL, "L_t_cx", D_CX, N_CX)
    if o.get('time') and o.get('tw', 0) == 2: A("s_memtime s[70:71]")
    A(f"s_sub_u32 s{sPF}, s{sVT}, {SLOT}")
    A(f"s_mov_b32 s{sS}, 0")
    A("L_t_f0:")
    A(flagload(0) + "s_waitcnt vmcnt(0)\n" + FLCMP)
    A(f"s_bitcmp1_b32 s{sSnap+1}, 0")
    A("s_cbranch_scc0 L_t_f0_re")
    OOL.append(retry("L_t_f0_re", "L_t_f0", "L_t_f0_ok"))
    A("L_t_f0_ok:")
    A(f"s_lshr_b64 s[{sSnap}:{sSnap+1}], s[{sSnap}:{sSnap+1}], 33\n" + FLFIN)
    A(f"s_add_u32 s{sPF}, s{sVT}, {SLOT}")
    A(f"buffer_load_dword v{vDum}, v{vPf}, {ws}, s{sVT} offen sc1")
    A(f"s_mov_b32 s{sS}, 0")
    zero64(A, KV4, 4)
    zero64(A, QA, 24)
    zero64(A, VT, 2, '-1')
    A.lds = []
    for fh in halves(GH): lds_half(A, *fh)
    if o.get('time'): A("s_memtime s[72:73]")
    team_step(A, o, OOL)
    A("L_t_tail:")
    A(f"buffer_store_dwordx4 {vr(KV4,4)}, v{vL16}, {ws}, s{sKM} offen sc1")
    A("s_waitcnt vmcnt(0) lgkmcnt(0)")
    if o.get('time'):
        A("s_memtime s[74:75]")
        A("s_waitcnt lgkmcnt(0)")
        A(f"s_or_b32 s{sT0}, s{sR}, s{sWv}\ns_cbranch_scc1 L_t_end")
        A("s_mov_b64 exec, 1")
        A("s_sub_u32 s70, s70, s68\ns_sub_u32 s72, s72, s68\ns_sub_u32 s74, s74, s68")
        A(f"v_mov_b32 v32, s70\nv_mov_b32 v33, s72\nv_mov_b32 v34, s74\nv_mov_b32 v35, s{sSpin}\nv_mov_b32 v31, 96")
        A("global_store_dwordx4 v31, v[32:35], s[4:5]")
        A("v_mov_b32 v32, s68\nglobal_store_dword v31, v32, s[4:5] offset:16")
        A("L_t_end:")
    A("s_endpgm")
    for t in OOL: A(t)
```

```python
RING  = 0x0000000
FLAGS = 0x0010000
F_KT  = 0x5F00000
F_O   = FLAGS + 0x8000
F_DUM = FLAGS + 0x10000
PROF  = 0x0080000
INBOX = 0x0100000
KMVM  = 0x0400000
XF    = 0x0D00000
KTV   = 0x1000000
OF    = 0x6000000
OFU   = 176 * 1024
QF    = 0x5000000
WS_BYTES = 268435456
D_ARM  = 0
D_RANK = 192
D_CX   = 4
D_CH   = 8
N_CX   = 144
N_CH   = 96
HB    = 0x1000000
HSTR  = 0x200000 + 4096
SLOT  = 28672
SFL   = 28672
```

```python
from asmlib import *
from layout import *
import gen_team as GT
import gen_team2 as GT2
import gen_team3 as GT3
from gen_team import (sWS, sW, sXCC, sR, sWv, sT0, sT1, sT2, sT3, sPLo, sPHi, sScale, sL2E, sSpin, srd, retry, wait_cnt, f2u)
NAME = 'parallel_sum__memory_aug_recurrent_mem_tr__dense_activation_relu__prompt_kernel'
ws = f"s[{sWS}:{sWS+3}]"
MF = "v_mfma_f32_16x16x32_bf16"
vL16, vG, vC, vL, vA0, vA1, vA2, vA3 = 1, 2, 3, 4, 5, 6, 7, 8

def lanes(A):
    A(f"v_and_b32 v{vL}, 63, v0")
    A(f"v_lshrrev_b32 v{vG}, 4, v{vL}")
    A(f"v_and_b32 v{vC}, 15, v{vL}")
    A(f"v_lshlrev_b32 v{vL16}, 4, v{vL}")

def load_w(A, jobs, voff, width, stage, tmp, NB=7):
    nb = NB + 1
    op = {1: 'buffer_load_dword', 2: 'buffer_load_dwordx2'}[width]
    def issue(b):
        pre, rows, dest = jobs[b]
        if pre: pre()
        last = None
        for i, (sr, cst) in enumerate(rows):
            if last is None or not (0 <= cst - last < 4096):
                A(f"s_add_u32 s{sT0}, s{sr}, {cst}"); last = cst
            off = f" offset:{cst-last}" if cst != last else ""
            A(f"{op} {vr(stage+(b%nb)*8*width+i*width, width)}, v{voff}, s[{sW}:{sW+3}], s{sT0} offen{off}", tag=('w', b))
    for b in range(min(NB, len(jobs))): issue(b)
    for b in range(len(jobs)):
        A.wait_vm(('w', b))
        if b + NB < len(jobs): issue(b + NB)
        base = stage + (b % nb)*8*width
        for t in range(2*width):
            kind, idx = jobs[b][2](t)
            d = idx if kind == 'v' else tmp + 4*(t & 1)
            for q in range(4):
                A(f"v_perm_b32 v{d+q}, v{base+(2*q+1)*width+(t>>1)}, v{base+2*q*width+(t>>1)}, s{sPHi if t&1 else sPLo}")
            if kind == 'a':
                for q in range(4): A(f"v_accvgpr_write_b32 a{idx+q}, v{d+q}")

def cnt_add(A, off, name, va=30):
    A(f"v_mov_b32 v{va}, 1\nv_mov_b32 v{va+1}, {off}")
    A("s_mov_b64 exec, 1")
    A(f"global_atomic_add v{va+1}, v{va}, s[4:5] sc1")
    A("s_mov_b64 exec, -1")

def red_g(A, op, v, t):
    for sw in ('16', '32'):
        A(f"v_mov_b32 v{t}, v{v}")
        A(f"v_permlane{sw}_swap_b32 v{t}, v{v}")
        A(f"{op} v{v}, v{v}, v{t}")

def rnd(A, d, s=None): A(f"v_cvt_pk_bf16_f32 v{d}, 0, v{d if s is None else s}")

def two_pass(A, body):
    q = list(A.vm)
    for _ in range(4):
        B = Asm(); B.vm = list(q); body(B); q = list(B.vm)
    A.vm = list(q); body(A)
    assert A.vm == q, (A.vm, q)

def stamp(A, o, i):
    if o.get('time'): A(f"s_memtime s[{70+2*i}:{71+2*i}]")

def dump_stamps(A, o, n, extra=()):
    if not o.get('time'): return
    A("s_waitcnt lgkmcnt(0)")
    A(f"s_lshl_b32 s{sT0}, s{sXCC}, 5\ns_add_u32 s{sT0}, s{sT0}, s{sR}\ns_lshl_b32 s{sT0}, s{sT0}, 2\ns_add_u32 s{sT0}, s{sT0}, s{sWv}\ns_lshl_b32 s{sT0}, s{sT0}, 6\ns_add_u32 s{sT0}, s{sT0}, {PROF+0x10000}")
    for i, r in enumerate([70+2*i for i in range(n)] + list(extra)):
        A(f"s_sub_u32 s{r}, s{r}, s68")
        A(f"v_mov_b32 v{16+i}, s{r}")
        A(f"buffer_store_dword v{16+i}, off, {ws}, s{sT0} offset:{4*i}")
    A(f"v_mov_b32 v15, s{sSpin}\nv_mov_b32 v14, s68")
    A(f"buffer_store_dwordx2 v[14:15], off, {ws}, s{sT0} offset:56")

HS = [8, 16, 17, 18, 24, 31]
def emit_head(A, o):
    OOL = []
    sH, sRep, sXo, sQo, sKo, sMo, sFo, sFp, sI, sWb, sOo, sFOo = 20, 21, 22, 23, 24, 25, 26, 27, 28, 29, 30, 31
    XB, AC, OQ, OK_, OV, NEG, ONE, WV = 16, 80, 104, 108, 112, 120, 124, 128
    lanes(A)
    A(f"s_sub_u32 s{sH}, s{sXCC}, 1\ns_lshl_b32 s{sH}, s{sH}, 3\ns_and_b32 s{sT0}, s{sR}, 7\ns_add_u32 s{sH}, s{sH}, s{sT0}")
    A(f"s_lshr_b32 s{sRep}, s{sR}, 3")
    A(f"s_lshl_b32 s{sWb}, s{sH}, 8\ns_lshl_b32 s{sT0}, s{sWv}, 6\ns_add_u32 s{sWb}, s{sWb}, s{sT0}")
    A(f"v_lshlrev_b32 v{vA0}, 16, v{vG}\nv_lshl_add_u32 v{vA0}, v{vC}, 2, v{vA0}")
    jobs = []
    for xi, X_ in enumerate('qkv'):
        for k in range(16):
            pre = (lambda xi=xi: srd(A, sW, 16+8*xi, 4194304)) if k == 0 else None
            dest = (lambda t, xi=xi, k=k: ('a', 128*xi+8*k+4*t) if xi < 2 else ('v', WV+8*k+4*t))
            jobs.append((pre, [(sWb, (32*k+i)*8192) for i in range(8)], dest))
    A(f"s_lshl_b32 s{sXo}, s{sRep}, 15\ns_add_u32 s{sXo}, s{sXo}, {XF}")
    A(f"s_lshl_b32 s{sT0}, s{sRep}, 5\ns_add_u32 s{sT0}, s{sT0}, s{sH}\ns_lshl_b32 s{sT0}, s{sT0}, 2\ns_add_u32 s{sT0}, s{sT0}, s{sWv}")
    A(f"s_lshl_b32 s{sFp}, s{sT0}, 6\ns_add_u32 s{sFp}, s{sFp}, {F_DUM}")
    def hbase():
        A(f"s_mul_i32 s{sT0}, s{sH}, {HSTR}\ns_mul_i32 s{sT1}, s{sRep}, {SLOT}\ns_add_u32 s{sT0}, s{sT0}, s{sT1}\ns_add_u32 s{sT0}, s{sT0}, {HB+SLOT}")
    hbase()
    A(f"s_lshl_b32 s{sQo}, s{sWv}, 11\ns_add_u32 s{sQo}, s{sQo}, s{sT0}\ns_add_u32 s{sQo}, s{sQo}, 20480")
    A(f"s_lshl_b32 s{sKo}, s{sWv}, 12\ns_add_u32 s{sKo}, s{sKo}, s{sT0}")
    A(f"s_lshl_b32 s{sMo}, s{sWv}, 10\ns_add_u32 s{sMo}, s{sMo}, s{sT0}\ns_add_u32 s{sMo}, s{sMo}, 16384")
    A(f"s_lshl_b32 s{sFo}, s{sH}, 6\ns_add_u32 s{sFo}, s{sFo}, s{sRep}\ns_lshl_b32 s{sFo}, s{sFo}, 2\ns_add_u32 s{sFo}, s{sFo}, s{sWv}\ns_add_u32 s{sFo}, s{sFo}, {F_KT}")
    if o.get('pt'):
        for r_ in (sQo, sKo): A(f"buffer_load_dword v126, v{vL16}, {ws}, s{r_} offen")
    load_w(A, jobs, vA0, 1, XB, AC)
    stamp(A, o, 0)
    for q in range(4): A(f"v_mov_b32 v{NEG+q}, -1")
    A(f"v_mov_b32 v{ONE}, 1")
    wait_cnt(A, OOL, "L_h_cx", D_CX, N_CX, 126)
    stamp(A, o, 1)
    def xload(B, n):
        B(f"buffer_load_dwordx4 {vr(XB+4*(n%16),4)}, v{vL16}, {ws}, s{sXo} offen offset:{(n%4)*1024}", tag=('x', n % 16))
        if n % 4 == 3: B(f"s_add_u32 s{sXo}, s{sXo}, {4096 + (3*32768 if n % 32 == 31 else 0)}")
    for n in range(16): xload(A, n)
    A(f"s_mov_b32 s{sI}, 16")
    A("s_waitcnt vmcnt(0)")
    stamp(A, o, 6)
    A("L_h_p1:")
    def body(B):
        for n in range(32):
            tau, k = n >> 4, n & 15
            x = vr(XB+4*k, 4)
            B.wait_vm(('x', k))
            if o.get('time') and n in HS: B(f"s_cmp_lg_u32 s{sI}, 16\ns_cbranch_scc1 L_h_tx{n}\ns_memtime s[{54+2*HS.index(n)}:{55+2*HS.index(n)}]\nL_h_tx{n}:")
            for xi in range(3):
                for t in range(2):
                    ac = vr(AC+8*xi+4*t, 4); c = ac if k else '0'
                    if xi < 2: B(f"{MF} {ac}, {vr(128*xi+8*k+4*t,4,'a')}, {x}, {c}")
                    else: B(f"{MF} {ac}, {x}, {vr(WV+8*k+4*t,4)}, {c}")
            xload(B, n + 16)
            if n == 1: B(f"buffer_store_dwordx4 {vr(NEG,4)}, v{vL16}, {ws}, s{sMo} offen sc1\ns_add_u32 s{sMo}, s{sMo}, {4*SLOT}", tag='d')
            if n == 0 and o.get('time'): B(f"s_cmp_lg_u32 s{sI}, 15\ns_cbranch_scc1 L_h_ts0\ns_memtime s[78:79]\nL_h_ts0:")
            if n == 17:
                B.wait_vm('dl')
                if o.get('time'): B(f"s_cmp_lg_u32 s{sI}, 15\ns_cbranch_scc1 L_h_ts1\ns_memtime s[80:81]\nL_h_ts1:")
                B("s_mov_b64 exec, 1")
                B(f"buffer_store_byte v{ONE}, off, {ws}, s{sFp} sc1")
                B("s_mov_b64 exec, -1")
                B(f"s_mov_b32 s{sFp}, s{sFo}\ns_add_u32 s{sFo}, s{sFo}, 16")
            if k == 15:
                for i in range(4): B(f"v_cvt_pk_bf16_f32 v{OQ+i}, v{AC+i}, v{AC+4+i}")
                if not o.get('noq'): B(f"buffer_store_dwordx4 {vr(OQ,4)}, v{vL16}, {ws}, s{sQo} offen offset:{tau*1024}")
                for i in range(4): B(f"v_cvt_pk_bf16_f32 v{OK_+i}, v{AC+8+i}, v{AC+12+i}")
                if not o.get('nok'): B(f"buffer_store_dwordx4 {vr(OK_,4)}, v{vL16}, {ws}, s{sKo} offen offset:{tau*1024} sc1")
                for t in range(2):
                    for j in range(2): B(f"v_cvt_pk_bf16_f32 v{OV+4*t+2*tau+j}, v{AC+16+4*t+2*j}, v{AC+16+4*t+2*j+1}")
                if tau:
                    for t in range(2): B(f"buffer_store_dwordx4 {vr(OV+4*t,4)}, v{vL16}, {ws}, s{sKo} offen offset:{2048+t*1024} sc1", tag='dl')
        B(f"s_add_u32 s{sQo}, s{sQo}, {4*SLOT}\ns_add_u32 s{sKo}, s{sKo}, {4*SLOT}")
        B(f"s_sub_u32 s{sI}, s{sI}, 1\ns_cmp_lg_u32 s{sI}, 0\ns_cbranch_scc1 L_h_p1")
    two_pass(A, body)
    A.wait_vm()
    A("s_mov_b64 exec, 1")
    A(f"buffer_store_byte v{ONE}, off, {ws}, s{sFp} sc1")
    A("s_mov_b64 exec, -1")
    A("s_barrier")
    stamp(A, o, 2)
    Q, KT, VT, S, SM, KM, VM, OWN, P, PM, OA, OU, mx, t1, t2, vNeg = 16, 32, 64, 80, 88, 92, 108, 112, 116, 120, 128, 144, 152, 153, 154, 155
    vKw, vKr, vVw, vVr = vA0, vA1, vA2, vA3
    sTq, sHf, sMk = 32, 33, 84
    A(f"s_and_b32 s{sTq}, s{sWv}, 1\ns_lshr_b32 s{sHf}, s{sWv}, 1")
    hbase()
    A(f"s_lshl_b32 s{sQo}, s{sTq}, 10\ns_add_u32 s{sQo}, s{sQo}, s{sT0}\ns_add_u32 s{sQo}, s{sQo}, 20480")
    A(f"s_mov_b32 s{sKo}, s{sT0}")
    A(f"s_lshl_b32 s{sMo}, s{sWv}, 10\ns_add_u32 s{sMo}, s{sMo}, s{sT0}\ns_add_u32 s{sMo}, s{sMo}, 16384")
    A(f"s_lshl_b32 s{sT0}, s{sRep}, 1\ns_add_u32 s{sT0}, s{sT0}, s{sTq}")
    A(f"s_lshl_b32 s{sT1}, s{sH}, 1\ns_add_u32 s{sT1}, s{sT1}, s{sHf}")
    A(f"s_mul_i32 s{sOo}, s{sT0}, {OFU}\ns_lshl_b32 s{sT2}, s{sT1}, 11\ns_add_u32 s{sOo}, s{sOo}, s{sT2}\ns_add_u32 s{sOo}, s{sOo}, {OF}")
    A(f"s_lshl_b32 s{sFOo}, s{sT0}, 8\ns_lshl_b32 s{sT2}, s{sT1}, 2\ns_add_u32 s{sFOo}, s{sFOo}, s{sT2}\ns_add_u32 s{sFOo}, s{sFOo}, {F_O}")
    A(f"s_mov_b32 s{sScale}, {f2u(128**-0.5)}\ns_mov_b32 s{sL2E}, {f2u(1.4426950408889634)}")
    A(f"v_lshrrev_b32 v{t1}, 2, v{vC}\nv_and_b32 v{t2}, 3, v{vC}")
    A(f"v_lshlrev_b32 v{vKw}, 7, v{t1}\nv_lshl_add_u32 v{vKw}, v{vG}, 5, v{vKw}\nv_lshl_add_u32 v{vKw}, v{t2}, 2, v{vKw}")
    A(f"s_lshl_b32 s{sT0}, s{sWv}, 9\nv_add_u32 v{vKw}, s{sT0}, v{vKw}")
    A(f"v_lshl_add_u32 v{vVw}, v{vL}, 3, s{sT0}")
    A(f"s_lshl_b32 s{sT0}, s{sHf}, 10\nv_lshl_add_u32 v{vVr}, v{vL}, 3, s{sT0}")
    A(f"v_and_b32 v{mx}, 1, v{vC}\nv_lshlrev_b32 v{mx}, 4, v{mx}\nv_lshl_add_u32 v{mx}, v{t1}, 5, v{mx}\nv_lshl_add_u32 v{vKr}, v{vG}, 7, v{mx}")
    A(f"v_lshl_add_u32 v{t2}, v{t1}, 3, v{t2}\ns_lshl_b32 s{sT0}, s{sTq}, 2\nv_add_u32 v{t2}, s{sT0}, v{t2}")
    A(f"v_lshlrev_b32 v{t1}, 3, v{vG}\nv_sub_u32 v{t2}, v{t2}, v{t1}")
    for j in range(8): A(f"v_cmp_le_i32 s[{sMk+2*j}:{sMk+2*j+1}], {j}, v{t2}")
    A(f"v_mov_b32 v{vNeg}, {f2u(-1e9)}")
    A(f"v_mov_b32 v{PM+1}, 0\nv_mov_b32 v{PM+2}, 0")
    A(f"s_mov_b32 s{sI}, 16")
    A("L_h_p2:")
    A.vm = []; A.lds = []
    for w_ in range(4):
        if w_ % 2 == 0: A(f"s_add_u32 s{sT0}, s{sQo}, {w_*2048}")
        A(f"buffer_load_dwordx4 {vr(Q+4*w_,4)}, v{vL16}, {ws}, s{sT0} offen offset:{(w_%2)*2048}", tag=('q', w_))
        A(f"s_add_u32 s{sT1}, s{sKo}, {w_*4096}")
        for tk in range(2):
            A(f"buffer_load_dwordx4 {vr(KT+8*w_+4*tk,4)}, v{vL16}, {ws}, s{sT1} offen offset:{tk*1024}", tag=('q', w_))
    A(f"s_lshl_b32 s{sT0}, s{sHf}, 13\ns_add_u32 s{sT0}, s{sT0}, s{sKo}\ns_add_u32 s{sT1}, s{sT0}, 4096")
    for w_ in range(2):
        for t in range(2):
            A(f"buffer_load_dwordx4 {vr(VT+8*w_+4*t,4)}, v{vL16}, {ws}, s{sT0+w_} offen offset:{2048+t*1024}")
    for w_ in range(4):
        A.wait_vm(('q', w_))
        for tk in range(2):
            A(f"{MF} {vr(S+4*tk,4)}, {vr(KT+8*w_+4*tk,4)}, {vr(Q+4*w_,4)}, {vr(S+4*tk,4) if w_ else 0}")
    for j in range(8): rnd(A, S+j)
    for j in range(8): A(f"v_mul_f32 v{S+j}, s{sScale}, v{S+j}")
    for j in range(8): rnd(A, S+j)
    for j in range(8): A(f"v_cndmask_b32 v{S+j}, v{vNeg}, v{S+j}, s[{sMk+2*j}:{sMk+2*j+1}]")
    A(f"v_max3_f32 v{mx}, v{S}, v{S+1}, v{S+2}\nv_max3_f32 v{mx}, v{mx}, v{S+3}, v{S+4}\nv_max3_f32 v{mx}, v{mx}, v{S+5}, v{S+6}\nv_max_f32 v{mx}, v{mx}, v{S+7}")
    A("L_h_km:")
    A(f"buffer_load_dwordx4 {vr(OWN,4)}, v{vL16}, {ws}, s{sMo} offen sc1")
    A.wait_vm()
    A(f"v_max3_u32 v{t1}, v{OWN}, v{OWN+1}, v{OWN+2}\nv_max_u32 v{t1}, v{t1}, v{OWN+3}")
    A(f"v_cmp_eq_u32 vcc, -1, v{t1}\ns_cbranch_vccnz L_h_km_re")
    OOL.append(retry("L_h_km_re", "L_h_km", "L_h_km_ok").replace(":\n", f":\ns_sleep {o['bk']}\n", 1) if o.get('bk') else retry("L_h_km_re", "L_h_km", "L_h_km_ok"))
    A("L_h_km_ok:")
    A(f"ds_write2_b32 v{vKw}, v{OWN}, v{OWN+1} offset0:0 offset1:4")
    A(f"ds_write_b64 v{vVw}, {vr(OWN+2,2)} offset:2048")
    A.wait_lds()
    A("s_barrier")
    for w_ in range(4): A(f"ds_read_b128 {vr(KM+4*w_,4)}, v{vKr} offset:{w_*512}", tag=('k', w_))
    for w_ in range(2): A(f"ds_read_b64 {vr(VM+2*w_,2)}, v{vVr} offset:{2048+w_*512}", tag='v')
    for v_ in (vKw, vKr, vVw, vVr): A(f"v_xor_b32 v{v_}, 4096, v{v_}")
    for w_ in range(4):
        A.wait_lds(('k', w_))
        A(f"{MF} {vr(SM,4)}, {vr(KM+4*w_,4)}, {vr(Q+4*w_,4)}, {vr(SM,4) if w_ else 0}")
    for j in range(2): rnd(A, SM+j)
    for j in range(2): A(f"v_mul_f32 v{SM+j}, s{sScale}, v{SM+j}")
    for j in range(2): rnd(A, SM+j)
    A(f"v_max3_f32 v{mx}, v{mx}, v{SM}, v{SM+1}")
    red_g(A, 'v_max_f32', mx, t1)
    A(f"v_mul_f32 v{mx}, s{sL2E}, v{mx}")
    for j in range(10): A(f"v_fma_f32 v{S+j}, v{S+j}, s{sL2E}, -v{mx}")
    for j in range(10): A(f"v_exp_f32 v{S+j}, v{S+j}")
    A(f"v_add_f32 v{t2}, v{S}, v{S+1}")
    for j in range(2, 10): A(f"v_add_f32 v{t2}, v{t2}, v{S+j}")
    red_g(A, 'v_add_f32', t2, t1)
    A(f"v_rcp_f32 v{t1}, v{t2}")
    for j in range(10): A(f"v_mul_f32 v{S+j}, v{S+j}, v{t1}")
    for j in range(4): A(f"v_cvt_pk_bf16_f32 v{P+j}, v{S+2*j}, v{S+2*j+1}")
    A(f"v_cvt_pk_bf16_f32 v{PM}, v{SM}, v{SM+1}\nv_cvt_pk_bf16_f32 v{PM+3}, v{SM}, v{SM+1}")
    for n in range(4): A(f"{MF} {vr(OA+4*n,4)}, {vr(VT+4*n,4)}, {vr(P,4)}, 0")
    A.wait_lds()
    for n in range(4):
        A(f"v_mfma_f32_16x16x16_bf16 {vr(OA+4*n,4)}, {vr(VM+2*(n>>1),2)}, {vr(PM+2*(n&1),2)}, {vr(OA+4*n,4)}")
    for w_ in range(2):
        for i in range(4): A(f"v_cvt_pk_bf16_f32 v{OU+4*w_+i}, v{OA+8*w_+i}, v{OA+8*w_+4+i}")
        A(f"buffer_store_dwordx4 {vr(OU+4*w_,4)}, v{vL16}, {ws}, s{sOo} offen offset:{w_*1024} sc1")
    A.wait_vm()
    A("s_mov_b64 exec, 1")
    A(f"buffer_store_dword v{ONE}, off, {ws}, s{sFOo} sc1")
    A("s_mov_b64 exec, -1")
    A(f"s_add_u32 s{sQo}, s{sQo}, {4*SLOT}\ns_add_u32 s{sKo}, s{sKo}, {4*SLOT}\ns_add_u32 s{sMo}, s{sMo}, {4*SLOT}")
    A(f"s_add_u32 s{sOo}, s{sOo}, {8*OFU}\ns_add_u32 s{sFOo}, s{sFOo}, {8*256}")
    A(f"s_sub_u32 s{sI}, s{sI}, 1\ns_cmp_lg_u32 s{sI}, 0\ns_cbranch_scc1 L_h_p2")
    stamp(A, o, 3)
    dump_stamps(A, o, 7, range(54, 66, 2))
    A("s_endpgm")
    for t in OOL: A(t)

def emit_og(A, o):
    OOL = []
    sIdx, sXo, sOo, sI, sWb, sJ, sU, sFOo, sXa, sCs = 20, 22, 23, 28, 29, 24, 25, 26, 27, 30
    sX, sOut = 84, 88
    vTok = vA1
    def xs(i):
        if o.get('time'): A(f"s_memtime s[{54+2*i}:{55+2*i}]")
    for i in range(6): xs(i)
    lanes(A)
    srd(A, sX, 0, 2097152)
    srd(A, sOut, 80, 2097152)
    srd(A, sW, 64, 512*2752)
    A(f"s_sub_u32 s{sIdx}, s{sXCC}, 5\ns_lshl_b32 s{sIdx}, s{sIdx}, 5\ns_add_u32 s{sIdx}, s{sIdx}, s{sR}")
    A(f"v_lshrrev_b32 v{vA0}, 2, v{vC}\nv_and_b32 v{vA2}, 3, v{vC}\nv_lshl_add_u32 v{vA0}, v{vA0}, 3, v{vA2}")
    A(f"v_lshlrev_b32 v{vA0}, 10, v{vA0}\nv_lshl_add_u32 v{vTok}, v{vG}, 4, v{vA0}")
    A(f"s_cmp_ge_u32 s{sIdx}, 64\ns_cbranch_scc1 L_o_arm")
    A(f"s_cmp_ge_u32 s{sWv}, 2\ns_cbranch_scc1 L_o_ffn")
    RW, F = 32, 96
    A(f"s_lshl_b32 s{sT0}, s{sIdx}, 15\ns_lshl_b32 s{sT1}, s{sWv}, 12\ns_add_u32 s{sT1}, s{sT0}, s{sT1}")
    for k in range(16): A(f"buffer_load_dwordx4 {vr(RW+4*k,4)}, v{vTok}, s[{sX}:{sX+3}], s{sT1} offen offset:{64*k}", tag=k)
    A(f"s_lshl_b32 s{sT1}, s{sWv}, 14\ns_add_u32 s{sXo}, s{sT0}, s{sT1}\ns_add_u32 s{sXo}, s{sXo}, {XF}")
    A(f"s_mov_b32 s{sT2}, 0xffff0000")
    a = [16, 17, 18, 19]; mean, t1, r = 20, 21, 22
    for q in a: A(f"v_mov_b32 v{q}, 0")
    for k in range(64):
        if k % 4 == 0: A.wait_vm(k // 4)
        if k == 0: xs(1)
        A(f"v_lshlrev_b32 v{F+2*k}, 16, v{RW+k}\nv_and_b32 v{F+2*k+1}, s{sT2}, v{RW+k}")
        A(f"v_add_f32 v{a[(2*k)%4]}, v{a[(2*k)%4]}, v{F+2*k}\nv_add_f32 v{a[(2*k+1)%4]}, v{a[(2*k+1)%4]}, v{F+2*k+1}")
    def tot(d):
        A(f"v_add_f32 v{a[0]}, v{a[0]}, v{a[1]}\nv_add_f32 v{a[2]}, v{a[2]}, v{a[3]}\nv_add_f32 v{d}, v{a[0]}, v{a[2]}")
        red_g(A, 'v_add_f32', d, t1)
        A(f"v_mul_f32 v{d}, {f2u(1/512)}, v{d}")
    tot(mean)
    xs(2)
    for q in a: A(f"v_mov_b32 v{q}, 0")
    for k in range(128):
        A(f"v_sub_f32 v{24+k%4}, v{F+k}, v{mean}\nv_fmac_f32 v{a[k%4]}, v{24+k%4}, v{24+k%4}")
    tot(r)
    rnd(A, mean); rnd(A, r)
    A(f"v_add_f32 v{r}, {f2u(1e-5)}, v{r}"); rnd(A, r)
    A(f"v_sqrt_f32 v{r}, v{r}"); rnd(A, r)
    A(f"v_rcp_f32 v{r}, v{r}")
    xs(3)
    for k in range(64):
        for j in range(2):
            f = F+2*k+j
            A(f"v_sub_f32 v{f}, v{f}, v{mean}"); rnd(A, f); A(f"v_mul_f32 v{f}, v{f}, v{r}")
        A(f"v_cvt_pk_bf16_f32 v{RW+k}, v{F+2*k}, v{F+2*k+1}")
        if k % 4 == 3:
            A(f"buffer_store_dwordx4 {vr(RW+k-3,4)}, v{vL16}, {ws}, s{sXo} offen offset:{((k//4)%4)*1024} sc1")
            if k % 16 == 15: A(f"s_add_u32 s{sXo}, s{sXo}, 4096")
    xs(4)
    A.wait_vm()
    cnt_add(A, D_CX, None)
    A("s_branch L_o_ffn")
    A("L_o_arm:")
    A(f"s_cmp_ge_u32 s{sIdx}, 80\ns_cbranch_scc1 L_o_ffn")
    A(f"s_cmp_lg_u32 s{sWv}, 0\ns_cbranch_scc1 L_o_ffn")
    for q in range(4): A(f"v_mov_b32 v{32+q}, 0")
    A(f"s_lshl_b32 s{sT0}, s{sIdx}, 10\ns_add_u32 s{sT0}, s{sT0}, {F_KT - 64*1024}")
    A(f"buffer_store_dwordx4 v[32:35], v{vL16}, {ws}, s{sT0} offen sc1")
    A(f"s_lshl_b32 s{sT0}, s{sIdx}, 11\ns_add_u32 s{sT0}, s{sT0}, {(F_O - 64*2048) % (1<<32)}")
    for n in range(2): A(f"buffer_store_dwordx4 v[32:35], v{vL16}, {ws}, s{sT0} offen offset:{n*1024} sc1")
    A.wait_vm()
    cnt_add(A, D_CX, None)
    A("L_o_ffn:")
    A.vm = []
    stamp(A, o, 0)
    XB, AC, OU = 16, 80, 96
    A(f"s_lshl_b32 s{sT0}, s{sIdx}, 2\ns_add_u32 s{sT0}, s{sT0}, s{sWv}")
    A(f"s_mul_i32 s{sT1}, s{sT0}, 2979\ns_lshr_b32 s{sT1}, s{sT1}, 16")
    A(f"s_mul_i32 s{sT2}, s{sT1}, 22\ns_sub_u32 s{sCs}, s{sT0}, s{sT2}")
    A(f"s_cmp_ge_u32 s{sT1}, {0 if o.get('nof1') else 16}\ns_cbranch_scc1 L_o_ffn_done")
    A(f"s_lshl_b32 s{sXo}, s{sT1}, 17\ns_add_u32 s{sXo}, s{sXo}, {XF}")
    A(f"s_mul_i32 s{sOo}, s{sT1}, {8*OFU}\ns_lshl_b32 s{sT2}, s{sCs}, 11\ns_add_u32 s{sOo}, s{sOo}, s{sT2}\ns_add_u32 s{sOo}, s{sOo}, {OF+128*1024}")
    A(f"s_lshl_b32 s{sWb}, s{sCs}, 7")
    if o.get('pt'):
        A(f"s_add_u32 s{sT0}, s{sOo}, {7*OFU}")
        for r_ in (sOo, sT0): A(f"buffer_load_dword v126, v{vL16}, {ws}, s{r_} offen")
    A(f"v_mul_u32_u24 v{vA0}, {8*2752}, v{vG}\nv_lshl_add_u32 v{vA0}, v{vC}, 3, v{vA0}")
    jobs = [(None, [(sWb, (32*k+i)*2752) for i in range(8)], (lambda t, k=k: ('a', 16*k+4*t))) for k in range(16)]
    load_w(A, jobs, vA0, 2, 128, AC)
    xs(5)
    wait_cnt(A, OOL, "L_o_cx", D_CX, N_CX, 126)
    def xload(B, n):
        B(f"buffer_load_dwordx4 {vr(XB+4*(n%16),4)}, v{vL16}, {ws}, s{sXo} offen offset:{(n%4)*1024}", tag=('x', n % 16))
        if n % 4 == 3: B(f"s_add_u32 s{sXo}, s{sXo}, 4096")
    for n in range(16): xload(A, n)
    A(f"s_mov_b32 s{sI}, 8")
    A("s_waitcnt vmcnt(0)")
    A("L_o_f1:")
    def body(B):
        for k in range(16):
            B.wait_vm(('x', k))
            for t in range(4):
                ac = vr(AC+4*t, 4)
                B(f"{MF} {ac}, {vr(16*k+4*t,4,'a')}, {vr(XB+4*k,4)}, {ac if k else 0}")
            xload(B, k)
        for j in range(16): B(f"v_max_f32 v{AC+j}, 0, v{AC+j}")
        for i in range(4):
            for tp in range(2): B(f"v_cvt_pk_bf16_f32 v{OU+2*i+tp}, v{AC+8*tp+i}, v{AC+8*tp+4+i}")
        for a_ in range(0 if o.get('nof1s') else 2): B(f"buffer_store_dwordx4 {vr(OU+4*a_,4)}, v{vL16}, {ws}, s{sOo} offen offset:{a_*1024} sc1")
        B(f"s_add_u32 s{sOo}, s{sOo}, {OFU}")
        B(f"s_sub_u32 s{sI}, s{sI}, 1\ns_cmp_lg_u32 s{sI}, 0\ns_cbranch_scc1 L_o_f1")
    two_pass(A, body)
    A("L_o_ffn_done:")
    A.wait_vm()
    A("s_barrier")
    A(f"s_cmp_lg_u32 s{sWv}, 0\ns_cbranch_scc1 L_o_w")
    cnt_add(A, D_CH, None)
    A("L_o_w:")
    A.vm = []
    stamp(A, o, 1)
    AA, AB, BUF, XR, W2 = 16, 24, 32, 160, 168
    vLw, vLr, vFl = vA2, vA3, 9
    A(f"s_and_b32 s{sJ}, s{sR}, 15\ns_lshr_b32 s{sU}, s{sIdx}, 4")
    A(f"s_lshl_b32 s{sWb}, s{sWv}, 20\ns_lshl_b32 s{sJ}, s{sJ}, 6\ns_add_u32 s{sWb}, s{sWb}, s{sJ}")
    A(f"v_lshlrev_b32 v{vA0}, 13, v{vG}\nv_lshl_add_u32 v{vA0}, v{vC}, 2, v{vA0}")
    jobs = [((lambda: srd(A, sW, 40, 4194304)) if k == 0 else None, [(sWb, (32*k+i)*1024) for i in range(8)], (lambda t, k=k: ('a', 8*k+4*t))) for k in range(32)]
    load_w(A, jobs, vA0, 1, BUF, AA)
    A(f"v_lshlrev_b32 v{vA0}, 14, v{vG}\nv_lshl_add_u32 v{vA0}, v{vC}, 2, v{vA0}")
    def pre2(n):
        if n == 0: srd(A, sW, 72, 1376*1024)
        A(f"s_mul_i32 s{sT1}, s{sWv}, 11\ns_add_u32 s{sT1}, s{sT1}, {n}\ns_and_b32 s{sT2}, s{sT1}, 1")
        A(f"s_lshl_b32 s{sT1}, s{sT1}, 15\ns_mul_i32 s{sT2}, s{sT2}, {24*1024}\ns_sub_u32 s{sT1}, s{sT1}, s{sT2}\ns_add_u32 s{sWb}, s{sT1}, s{sJ}")
    jobs = [((lambda n=n: pre2(n)), [(sWb, i*1024) for i in range(8)], (lambda t, n=n: ('v', W2+8*n+4*t))) for n in range(11)]
    load_w(A, jobs, vA0, 1, BUF, AA)
    A(f"s_lshl_b32 s{sT0}, s{sWv}, 12\nv_add_u32 v{vLw}, s{sT0}, v{vL16}\nv_mov_b32 v{vLr}, v{vL16}")
    A(f"v_lshlrev_b32 v{vFl}, 2, v{vC}")
    A(f"s_mul_i32 s{sOo}, s{sU}, {OFU}\ns_add_u32 s{sOo}, s{sOo}, {OF}")
    A(f"s_lshl_b32 s{sFOo}, s{sU}, 8\ns_lshl_b32 s{sT0}, s{sWv}, 6\ns_add_u32 s{sFOo}, s{sFOo}, s{sT0}\ns_add_u32 s{sFOo}, s{sFOo}, {F_O}")
    wait_cnt(A, OOL, "L_o_cx2", D_CX, N_CX, 164)
    wait_cnt(A, OOL, "L_o_ch", D_CH, N_CH, 164)
    stamp(A, o, 2)
    A("L_o_u:")
    A.vm = []; A.lds = []
    A(f"s_lshr_b32 s{sXa}, s{sU}, 1\ns_lshl_b32 s{sXa}, s{sXa}, 15\ns_and_b32 s{sT0}, s{sU}, 1\ns_lshl_b32 s{sT0}, s{sT0}, 12\ns_add_u32 s{sXa}, s{sXa}, s{sT0}\ns_add_u32 s{sXa}, s{sXa}, s{sJ}")
    A(f"s_mul_i32 s{sT0}, s{sWv}, {11*1024}\ns_add_u32 s{sT0}, s{sT0}, s{sOo}\ns_add_u32 s{sT0}, s{sT0}, {128*1024}")
    for n in range(11):
        A(f"buffer_load_dwordx4 {vr(BUF+4*n,4)}, v{vL16}, {ws}, s{sT0} offen offset:{(n%4)*1024}", tag=n)
        if n % 4 == 3: A(f"s_add_u32 s{sT0}, s{sT0}, 4096")
    A(f"buffer_load_dwordx4 {vr(XR,4)}, v{vTok}, s[{sX}:{sX+3}], s{sXa} offen")
    for n in range(11):
        A.wait_vm(n)
        for t in range(2): A(f"{MF} {vr(AB+4*t,4)}, {vr(W2+8*n+4*t,4)}, {vr(BUF+4*n,4)}, {vr(AB+4*t,4) if n else 0}")
    A(f"s_lshl_b32 s{sT0}, s{sWv}, 15\ns_add_u32 s{sT0}, s{sT0}, s{sOo}")
    for t in range(2): A(f"ds_write_b128 v{vLw}, {vr(AB+4*t,4)} offset:{2048+t*1024}")
    A("L_o_fo:")
    A(f"buffer_load_dword v164, v{vFl}, {ws}, s{sFOo} offen sc1")
    A.wait_vm()
    A("v_cmp_eq_u32 vcc, 0, v164\ns_cbranch_vccnz L_o_fo_re")
    OOL.append(retry("L_o_fo_re", "L_o_fo", "L_o_fo_ok").replace(":\n", f":\ns_sleep {o['bk']}\n", 1) if o.get('bk') else retry("L_o_fo_re", "L_o_fo", "L_o_fo_ok"))
    A("L_o_fo_ok:")
    for n in range(32):
        A(f"buffer_load_dwordx4 {vr(BUF+4*n,4)}, v{vL16}, {ws}, s{sT0} offen offset:{(n%4)*1024}", tag=n)
        if n % 4 == 3: A(f"s_add_u32 s{sT0}, s{sT0}, 4096")
    for n in range(32):
        A.wait_vm(n)
        for t in range(2): A(f"{MF} {vr(AA+4*t,4)}, {vr(8*n+4*t,4,'a')}, {vr(BUF+4*n,4)}, {vr(AA+4*t,4) if n else 0}")
    for t in range(2): A(f"ds_write_b128 v{vLw}, {vr(AA+4*t,4)} offset:{t*1024}")
    A.wait_lds()
    A("s_barrier")
    A(f"s_cmp_lg_u32 s{sWv}, 3\ns_cbranch_scc1 L_o_nx")
    for w_ in range(3):
        for n in range(4): A(f"ds_read_b128 {vr(BUF+16*w_+4*n,4)}, v{vLr} offset:{w_*4096+n*1024}", tag=w_)
    A(f"s_mov_b32 s{sT2}, 0xffff0000")
    for i in range(4): A(f"v_lshlrev_b32 v{BUF+48+i}, 16, v{XR+i}\nv_and_b32 v{BUF+52+i}, s{sT2}, v{XR+i}")
    for w_ in range(3):
        A.wait_lds(w_)
        for j in range(16): A(f"v_add_f32 v{AA+j}, v{AA+j}, v{BUF+16*w_+j}")
    for j in range(16): rnd(A, AA+j)
    for j in range(8): A(f"v_add_f32 v{AA+j}, v{AA+j}, v{BUF+48+j}")
    for j in range(8): rnd(A, AA+j)
    for j in range(8): A(f"v_add_f32 v{AA+j}, v{AA+j}, v{AB+j}")
    for i in range(4): A(f"v_cvt_pk_bf16_f32 v{164+i}, v{AA+i}, v{AA+4+i}")
    A(f"buffer_store_dwordx4 v[164:167], v{vTok}, s[{sOut}:{sOut+3}], s{sXa} offen")
    A("s_nop 1")
    A("L_o_nx:")
    A(f"v_xor_b32 v{vLw}, 0x4000, v{vLw}\nv_xor_b32 v{vLr}, 0x4000, v{vLr}")
    A(f"s_add_u32 s{sOo}, s{sOo}, {6*OFU}\ns_add_u32 s{sFOo}, s{sFOo}, {6*256}")
    A(f"s_add_u32 s{sU}, s{sU}, 6\ns_cmp_lt_u32 s{sU}, 128\ns_cbranch_scc1 L_o_u")
    stamp(A, o, 3)
    dump_stamps(A, o, 4, range(54, 66, 2))
    A("s_endpgm")
    for t in OOL: A(t)

def gen(o):
    A = Asm()
    A.L.append("; @launch grid=(256,1,1) block=(256,1,1) lds=163840")
    A('.amdgcn_target "amdgcn-amd-amdhsa--gfx950"')
    header(A, NAME)
    GT.prologue(A, o)
    A(f"s_cmp_gt_u32 s{sR}, 31\ns_cbranch_scc1 L_exit")
    A(f"s_cmp_eq_u32 s{sXCC}, 0\ns_cbranch_scc1 L_team")
    A(f"s_cmp_gt_u32 s{sXCC}, 4\ns_cbranch_scc1 L_og")
    A("s_branch L_head")
    A("L_exit:\ns_endpgm")
    A("L_team:"); A.vm = []; A.lds = []
    (GT2 if o.get('t2') else GT3).emit_team(A, o)
    A("L_head:"); A.vm = []; A.lds = []
    emit_head(A, o)
    A("L_og:"); A.vm = []; A.lds = []
    emit_og(A, o)
    kd(A, NAME, 256, 256)
    t = A.text()
    if o.get('rt'): t = t.replace('s_memtime', 's_memrealtime')
    return t

if __name__ == '__main__':
    import sys
    o = dict(mimic=1, time=0)
    for a in sys.argv[2:]:
        k, v = a.split('='); o[k] = v if ',' in v else int(v)
    assert all((j*2979 >> 16) == j // 22 for j in range(384))
    open(sys.argv[1], 'w').write(gen(o))
```

```python
from asmlib import *
from layout import *
import struct

def f2u(x): return struct.unpack('<I', struct.pack('<f', x))[0]

vL16, vWL, vXP0, vXP1, vXP2, vXP3, vIdx, vXQw, vXQo, vXQ2, vXK2, vXOw, vInW, vInR, vPub, vFlag = range(16)
P   = 16
QA  = 48
KA  = 56
VA  = 64
KT  = 72
VT  = 80
PM  = 96
KV4 = 100
T   = 104
WV  = 144
X   = QA
sWS, sW = 8, 12
sXCC, sR, sWv, sN, sS = 16, 17, 18, 19, 20
sRingR, sRingW, sRingA = 21, 22, 23
sInW, sInR = 24, 32
sKT, sKM, sSpin, sFB = 34, 35, 36, 37
sMLo, sMHi, sMPub, sMFlag = 38, 40, 42, 44
sT0, sT1, sT2, sT3 = 46, 47, 48, 49
sPLo, sPHi, sScale, sL2E = 50, 51, 52, 53
sRow = 54
sFKT, sRingWb, sRingRb = 58, 60, 61
sKM_ = 64

QK_ORDER = [('q',0,0),('q',0,1),('k',0,0),('k',0,1),('q',1,0),('q',1,1),('k',1,0),('k',1,1)] + \
           [('q',s,t) for s in range(2,8) for t in range(2)] + [('k',s,t) for s in range(2,8) for t in range(2)]
V_ORDER = [('v',s,t) for s in range(8) for t in range(2)]
O_ORDER = [('o',k,2*u+t) for u in range(4) for k in range(2) for t in range(2)]
LDS_QK1 = [(QK_ORDER[i], b) for i, b in zip(range(5), (1,2,3,4,0))]
LDS_QK2 = [(QK_ORDER[i], b) for i, b in zip(range(18,23), (1,2,3,4,0))]
LDS_O1  = [(O_ORDER[i], b) for i, b in zip(range(5), (3,4,0,1,2))]
LDS_O2  = [(O_ORDER[i], b) for i, b in zip(range(13,16), (3,4,0))]
LDSF = LDS_QK1 + LDS_QK2 + LDS_O1 + LDS_O2
place = {}
for i, (f, b) in enumerate(LDSF): place[f] = ('l', i, b)
rest = [f for f in V_ORDER + QK_ORDER + O_ORDER if f not in place]
for i, f in enumerate(rest):
    place[f] = ('a', 8*i) if i < 32 else ('v', WV + 8*(i-32))
assert len(rest) == 46

def breg(f):
    p = place[f]
    if p[0] == 'l': return vr(T + 8*p[2], 8)
    return vr(p[1], 8, p[0])

def lds_fetch(A, f):
    _, i, b = place[f]
    A(f"ds_read_b128 {vr(T+8*b,4)}, v{vWL} offset:{i*2048}", tag=f)
    A(f"ds_read_b128 {vr(T+8*b+4,4)}, v{vWL} offset:{i*2048+1024}", tag=f)

def smf(A, f):
    X_, s, t = f
    if place[f][0] == 'l': A.wait_lds(f)
    if X_ == 'o':
        acc, a = P + 4*t, X + 8 + 4*s
    else:
        acc, a = {'q': QA, 'k': KA, 'v': VA}[X_] + 4*t, P + 4*s
    A(f"v_smfmac_f32_16x16x64_bf16 {vr(acc,4)}, {vr(a,4)}, {breg(f)}, v{vIdx}")

def put_frag(A, f, src):
    p = place[f]
    if p[0] == 'l':
        A(f"ds_write_b128 v{vWL}, {vr(src,4)} offset:{p[1]*2048}")
        A(f"ds_write_b128 v{vWL}, {vr(src+4,4)} offset:{p[1]*2048+1024}")
    elif p[0] == 'a':
        for q in range(8): A(f"v_accvgpr_write_b32 a{p[1]+q}, v{src+q}")

def srd(A, s, karg, nbytes):
    A(f"s_load_dwordx2 s[{s}:{s+1}], s[0:1], {karg}")
    A(f"s_mov_b32 s{s+2}, {nbytes}")
    A(f"s_mov_b32 s{s+3}, 0x00020000")
    A("s_waitcnt lgkmcnt(0)")

def team_setup(A, o):
    t0, t1, t2, l, g, c = 20, 21, 22, 23, 24, 25
    A(f"v_and_b32 v{l}, 63, v0")
    A(f"v_lshrrev_b32 v{g}, 4, v{l}")
    A(f"v_and_b32 v{c}, 15, v{l}")
    A(f"v_lshlrev_b32 v{vL16}, 4, v{l}")
    A(f"s_mul_i32 s{sT0}, s{sWv}, 36864")
    A(f"s_add_u32 s{sT0}, s{sT0}, 16384")
    A(f"v_add_u32 v{vWL}, s{sT0}, v{vL16}")
    A(f"s_lshl_b32 s{sT1}, s{sWv}, 10")
    A(f"v_add_u32 v{vXP0}, s{sT1}, v{vL16}")
    A(f"v_xor_b32 v{vXP1}, 0x400, v{vXP0}")
    A(f"v_xor_b32 v{vXP2}, 0x800, v{vXP0}")
    A(f"v_xor_b32 v{vXP3}, 0xc00, v{vXP0}")
    A(f"v_bfe_u32 v{t0}, v{c}, 1, 1")
    A(f"v_mul_u32_u24 v{t0}, 0xAAAA, v{t0}")
    A(f"v_add_u32 v{vIdx}, 0x4444, v{t0}")
    A(f"s_add_u32 s{sT2}, s{sT1}, 8192")
    A(f"v_lshrrev_b32 v{t0}, 2, v{c}")
    A(f"v_lshlrev_b32 v{t0}, 8, v{t0}")
    A(f"v_lshl_add_u32 v{t0}, v{g}, 5, v{t0}")
    A(f"v_and_b32 v{t1}, 3, v{c}")
    A(f"v_lshl_add_u32 v{t0}, v{t1}, 2, v{t0}")
    A(f"v_add_u32 v{vXQw}, s{sT2}, v{t0}")
    A(f"v_and_b32 v{t1}, 7, v{c}")
    A(f"v_lshlrev_b32 v{t1}, 4, v{t1}")
    A(f"v_lshl_add_u32 v{t0}, v{g}, 8, v{t1}")
    A(f"v_add_u32 v{vXQo}, s{sT2}, v{t0}")
    A(f"v_lshrrev_b32 v{t2}, 3, v{c}")
    A(f"v_lshl_add_u32 v{t0}, v{t2}, 10, v{t0}")
    A(f"v_add_u32 v{vXQ2}, 8192, v{t0}")
    A(f"v_lshl_add_u32 v{t0}, v{g}, 12, v{t1}")
    A(f"v_lshl_add_u32 v{vInW}, v{t2}, 14, v{t0}")
    A(f"v_bfe_u32 v{t0}, v{c}, 1, 1")
    A(f"v_lshlrev_b32 v{t0}, 10, v{t0}")
    A(f"v_lshl_add_u32 v{t0}, v{g}, 8, v{t0}")
    A(f"v_lshrrev_b32 v{t1}, 2, v{c}")
    A(f"v_lshl_add_u32 v{t0}, v{t1}, 5, v{t0}")
    A(f"v_and_b32 v{t1}, 1, v{c}")
    A(f"v_lshl_add_u32 v{t0}, v{t1}, 4, v{t0}")
    A(f"v_add_u32 v{vXK2}, {8192+128}, v{t0}")
    A(f"v_lshlrev_b32 v{t0}, 4, v{t1}")
    A(f"v_lshl_add_u32 v{t0}, v{t2}, 11, v{t0}")
    A(f"v_bfe_u32 v{t1}, v{c}, 1, 2")
    A(f"v_lshl_add_u32 v{t0}, v{t1}, 6, v{t0}")
    A(f"v_and_b32 v{t1}, 1, v{g}")
    A(f"v_lshl_add_u32 v{t0}, v{t1}, 5, v{t0}")
    A(f"v_lshrrev_b32 v{t2}, 1, v{g}")
    A(f"v_lshl_add_u32 v{t0}, v{t2}, 8, v{t0}")
    A(f"s_lshl_b32 s{sT3}, s{sWv}, 9")
    A(f"v_add_u32 v{vXOw}, s{sT3}, v{t0}")
    A(f"v_lshlrev_b32 v{t0}, 6, v{t1}")
    A(f"v_lshl_add_u32 v{t0}, v{t2}, 9, v{t0}")
    A(f"v_lshrrev_b32 v{vInR}, 2, v{c}")
    A(f"v_lshl_add_u32 v{t0}, v{vInR}, 7, v{t0}")
    A(f"v_and_b32 v{vPub}, 3, v{c}")
    A(f"v_lshl_add_u32 v{vInR}, v{vPub}, 4, v{t0}")
    A(f"v_lshlrev_b32 v26, 4, v{vPub}")
    A(f"v_lshl_add_u32 v26, v{t1}, 6, v26")
    A(f"v_lshl_add_u32 v26, v{t2}, 10, v26")
    A(f"v_lshlrev_b32 v{vPub}, 2, v{vPub}")
    A(f"v_lshl_add_u32 v{vPub}, v{t1}, 5, v{vPub}")
    A(f"v_lshl_add_u32 v{vPub}, v{t2}, 4, v{vPub}")
    A(f"v_lshlrev_b32 v27, 20, v{t2}")
    A(f"v_lshl_add_u32 v27, v{t1}, 17, v27")
    A(f"v_lshl_add_u32 v27, v{c}, 2, v27")
    A(f"v_lshlrev_b32 v28, 14, v{t2}")
    A(f"v_lshl_add_u32 v28, v{t1}, 12, v28")
    A(f"v_lshl_add_u32 v28, v{c}, 4, v28")
    A(f"s_mov_b32 s{sMLo}, 0x00ff00ff\ns_mov_b32 s{sMLo+1}, 0x00ff00ff")
    A(f"s_mov_b32 s{sMHi}, 0xff00ff00\ns_mov_b32 s{sMHi+1}, 0xff00ff00")
    A(f"s_mov_b32 s{sMPub}, 0x000f000f\ns_mov_b32 s{sMPub+1}, 0x000f000f")
    A(f"s_cmp_eq_u32 s{sWv}, 0")
    A(f"s_cselect_b32 s{sMFlag}, 1, 0\ns_mov_b32 s{sMFlag+1}, 0")
    A(f"s_mov_b32 s{sScale}, {f2u(128**-0.5)}")
    A(f"s_mov_b32 s{sL2E}, {f2u(1.4426950408889634 * (1.0 if o['mimic'] else 128**-0.5))}")
    A(f"s_lshl_b32 s{sT0}, s{sWv}, 17")
    A(f"s_lshl_b32 s{sT2}, s{sR}, 7")
    A(f"s_add_u32 s{sT0}, s{sT0}, s{sT2}")
    for par in range(2):
        for u in range(4):
            A(f"s_add_u32 s{sInW+4*par+u}, s{sT0}, {INBOX + par*524288 + u*32768}")
    A(f"s_lshl_b32 s{sFKT}, s{sR}, 10")
    A(f"s_lshl_b32 s{sT0}, s{sWv}, 8")
    A(f"s_add_u32 s{sFKT}, s{sFKT}, s{sT0}")
    A(f"s_add_u32 s{sFKT}, s{sFKT}, {F_KT}")
    A(f"v_lshlrev_b32 v{vFlag}, 2, v{l}")
    A(f"s_lshl_b32 s{sT0}, s{sR}, 14")
    A(f"s_lshl_b32 s{sT2}, s{sWv}, 12")
    A(f"s_add_u32 s{sT0}, s{sT0}, s{sT2}")
    A(f"s_add_u32 s{sInR}, s{sT0}, {INBOX}")
    A(f"s_add_u32 s{sInR+1}, s{sT0}, {INBOX+524288}")
    A(f"s_add_u32 s{sKT}, s{sT0}, {KTV}")
    A(f"s_lshl_b32 s{sT0}, s{sR}, 12")
    A(f"s_add_u32 s{sT0}, s{sT0}, s{sT1}")
    A(f"s_add_u32 s{sKM}, s{sT0}, {KMVM - 131072}")
    A(f"s_lshl_b32 s{sRingRb}, s{sWv}, 11")
    A(f"s_and_b32 s{sT0}, s{sR}, 7")
    A(f"s_lshl_b32 s{sT0}, s{sT0}, 10")
    A(f"s_lshr_b32 s{sT2}, s{sR}, 3")
    A(f"s_lshl_b32 s{sT2}, s{sT2}, 8")
    A(f"s_add_u32 s{sT0}, s{sT0}, s{sT2}")
    A(f"s_lshl_b32 s{sT3}, s{sWv}, 6")
    A(f"s_add_u32 s{sRingWb}, s{sT0}, s{sT3}")
    assert RING == 0
    A(f"s_lshl_b32 s{sT0}, s{sR}, 8")
    A(f"s_add_u32 s{sT0}, s{sT0}, s{sT3}")
    for a in range(4):
        A(f"s_xor_b32 s{sT3}, s{sWv}, {a}")
        A(f"s_lshl_b32 s{sT3}, s{sT3}, 14")
        A(f"s_add_u32 s{sRow+a}, s{sT3}, s{sT0}")
    srd(A, sW, 8, 8192)
    A(f"s_and_b32 s{sT0}, s{sR}, 1")
    A(f"s_lshl_b32 s{sT0}, s{sT0}, 7")
    A(f"s_bfe_u32 s{sT3}, s{sR}, 0x20001")
    A(f"s_lshl_b32 s{sT3}, s{sT3}, 2")
    A(f"s_add_u32 s{sT0}, s{sT0}, s{sT3}")
    A(f"s_add_u32 s{sT0}, s{sT0}, s{sT2}")
    A(f"s_add_u32 s{sT0}, s{sT0}, s{sRingRb}")
    A(f"buffer_load_dword v29, v26, s[{sW}:{sW+3}], s{sT0} offen")
    for q in range(4): A(f"v_mov_b32 v{32+q}, -1")
    for par in range(2):
        for n in range(4):
            A(f"buffer_store_dwordx4 v[32:35], v{vL16}, s[{sWS}:{sWS+3}], s{sInR+par} offen offset:{n*1024}")
    for sl in range(1, 4):
        A(f"s_add_u32 s{sT0}, s{sRingWb}, {sl*8192}")
        A(f"buffer_store_dword v32, v{vPub}, s[{sWS}:{sWS+3}], s{sT0} offen")
    A.wait_vm()
    A(f"buffer_store_dword v29, v{vPub}, s[{sWS}:{sWS+3}], s{sRingWb} offen")
    A.wait_vm()
    A("s_barrier")
    A(f"s_mov_b64 exec, s[{sMFlag}:{sMFlag+1}]")
    A(f"v_mov_b32 v30, 1\nv_mov_b32 v31, 64")
    A(f"s_cbranch_execz L_t_noarr")
    A(f"global_atomic_add v31, v30, s[4:5] sc1")
    A("L_t_noarr:")
    A("s_mov_b64 exec, -1")

def team_weights(A, o):
    batches = [(X_, s) for X_ in 'qkv' for s in range(8)]
    NB = 3
    def issue(b):
        X_, s = batches[b]
        if s == 0: srd(A, sW, {'q': 16, 'k': 24, 'v': 32}[X_], 4194304)
        for ib in range(16):
            d = 256*(ib>>3) + 32*((ib>>1)&1) + 8*((ib>>2)&1) + (ib&1) + 64*(s&1)
            A(f"s_add_u32 s{sT0}, s{sRow+(s>>1)}, {d*8192}")
            A(f"buffer_load_dword v{32+16*(b%4)+ib}, v27, s[{sW}:{sW+3}], s{sT0} offen", tag=('w', b))
    for b in range(NB): issue(b)
    for b in range(len(batches)):
        X_, s = batches[b]
        A.wait_vm(('w', b))
        if b + NB < len(batches): issue(b + NB)
        for t in range(2):
            f = (X_, s, t)
            dst = place[f][1] if place[f][0] == 'v' else 128 + 8*t
            for q in range(8):
                A(f"v_perm_b32 v{dst+q}, v{32+16*(b%4)+2*q+1}, v{32+16*(b%4)+2*q}, s{sPHi if t else sPLo}")
            put_frag(A, f, dst)
    srd(A, sW, 40, 4194304)
    A(f"s_lshl_b32 s{sT1}, s{sR}, 17")
    A(f"s_lshl_b32 s{sT2}, s{sWv}, 8")
    A(f"s_add_u32 s{sT1}, s{sT1}, s{sT2}")
    for k in range(2):
        for ib in range(16):
            e = 64*k + 32*(ib>>3) + 8*((ib>>1)&1) + 2*((ib>>2)&1) + (ib&1)
            A(f"s_add_u32 s{sT0}, s{sT1}, {e*1024}")
            A(f"buffer_load_dwordx4 {vr(32+4*ib,4)}, v28, s[{sW}:{sW+3}], s{sT0} offen")
        A.wait_vm()
        for t in range(8):
            f = ('o', k, t)
            dst = place[f][1] if place[f][0] == 'v' else 128 + 8*(t&1)
            for q in range(8):
                A(f"v_perm_b32 v{dst+q}, v{32+4*(2*q+1)+(t>>1)}, v{32+4*(2*q)+(t>>1)}, s{sPHi if t&1 else sPLo}")
            put_frag(A, f, dst)
        A.wait_lds()

def retry(name, back, ok):
    return (f"{name}:\ns_sub_u32 s{sSpin}, s{sSpin}, 1\ns_cbranch_scc0 {back}\ns_mov_b32 s{sSpin}, 0\ns_branch {ok}")

def wait_cnt(A, OOL, name, off, n, va=30):
    A(f"v_mov_b32 v{va+1}, {off}")
    A(f"{name}:")
    A(f"global_load_dword v{va}, v{va+1}, s[4:5] sc1")
    A.wait_vm()
    A(f"v_cmp_gt_u32 vcc, {n}, v{va}")
    A(f"s_cbranch_vccnz {name}_re")
    OOL.append(retry(f"{name}_re", name, f"{name}_ok"))
    A(f"{name}_ok:")

def wait_cnt1(A, OOL, name, off, ns, va=30, dly=0):
    A(f"s_cmp_lg_u32 s{sWv}, 0\ns_cbranch_scc1 {name}_ok")
    A(f"v_mov_b32 v{va+2}, {off}")
    A(f"{name}:")
    if len(ns) == 1: A(f"global_load_dword v{va}, v{va+2}, s[4:5] sc1")
    else: A(f"global_load_dwordx2 v[{va}:{va+1}], v{va+2}, s[4:5] sc1")
    A.wait_vm()
    for i, n in enumerate(ns):
        A(f"v_cmp_gt_u32 vcc, {n}, v{va+i}")
        A(f"s_cbranch_vccnz {name}_re")
    OOL.append(retry(f"{name}_re", name, f"{name}_ok").replace(":\n", ":\n" + "s_nop 15\n"*dly, 1))
    A(f"{name}_ok:")
    A("s_barrier")

def zero64(A, r, n, val='0'):
    for i in range(0, n, 2): A(f"v_mov_b64 {vr(r+i,2)}, {val}")

def phaseA_prep(A):
    zero64(A, QA, 20 - 4)
    zero64(A, VA, 4, '-1')
    zero64(A, VA+4, 4)

def team_step(A, o, par, OOL):
    ws = f"s[{sWS}:{sWS+3}]"
    def ST(i):
        if o.get('prof') and par == 0: A(f"s_memtime s[{76+2*i}:{77+2*i}]")
    L = f"L_t{par}"
    vt_cur, vt_nxt = VT + 8*par, VT + 8*(par^1)
    tmp = PM
    ST(0)
    A(f"{L}_ring:")
    A.vm = []
    A(f"buffer_load_dwordx4 {vr(P,4)}, v{vL16}, {ws}, s{sRingR} offen sc1")
    A(f"buffer_load_dwordx4 {vr(P+4,4)}, v{vL16}, {ws}, s{sRingR} offen offset:1024 sc1")
    A.wait_vm()
    A(f"ds_write_b128 v{vXP0}, {vr(P,4)}", tag='xpw')
    A(f"ds_write_b128 v{vXP0}, {vr(P+4,4)} offset:4096", tag='xpw')
    A(f"v_max3_u32 v{tmp}, v{P}, v{P+1}, v{P+2}")
    A(f"v_max3_u32 v{tmp}, v{tmp}, v{P+3}, v{P+4}")
    A(f"v_max3_u32 v{tmp}, v{tmp}, v{P+5}, v{P+6}")
    A(f"v_max_u32 v{tmp}, v{tmp}, v{P+7}")
    A(f"v_cmp_eq_u32 vcc, -1, v{tmp}")
    A(f"s_cbranch_vccnz {L}_ring_re")
    OOL.append(retry(f"{L}_ring_re", f"{L}_ring", f"{L}_ring_ok"))
    A(f"{L}_ring_ok:")
    ST(1)
    A.wait_lds()
    A("s_barrier")
    ST(2)
    for s in range(2, 8):
        A(f"ds_read_b128 {vr(P+4*s,4)}, v{vXP0+(s>>1)} offset:{(s&1)*4096}", tag=('xp', s))
    side = {}
    def at(pos, fn): side.setdefault(pos, []).append(fn)
    for i, (f, b) in enumerate(LDS_QK2): at(i, lambda f=f: lds_fetch(A, f))
    def flagchk():
        A(f"{L}_fl:")
        A(f"s_bitcmp1_b64 s[{sKM_}:{sKM_+1}], s{sFB}")
        A(f"s_cbranch_scc0 {L}_fl_re")
        OOL.append(f"{L}_fl_re:\nbuffer_load_dword v{tmp}, v{vFlag}, {ws}, s{sFKT} offen sc1\ns_waitcnt vmcnt(0)\n" +
                   f"v_cmp_ne_u32 s[{sKM_}:{sKM_+1}], 0, v{tmp}\ns_nop 4\n" + retry(f"{L}_fl_re2", f"{L}_fl", f"{L}_fl_ok"))
        A(f"{L}_fl_ok:")
    at(0, flagchk)
    at(1, lambda: A(f"buffer_load_dwordx4 {vr(vt_nxt,4)}, v{vL16}, {ws}, s{sKT} offen offset:2048 sc1"))
    at(2, lambda: A(f"buffer_load_dwordx4 {vr(vt_nxt+4,4)}, v{vL16}, {ws}, s{sKT} offen offset:3072 sc1"))
    def nextflag():
        A(f"s_add_u32 s{sT0}, s{sS}, 2")
        A(f"s_min_u32 s{sFB}, s{sT0}, 63")
    at(3, nextflag)
    at(4, lambda: A(f"buffer_store_dwordx4 {vr(KV4,4)}, v{vL16}, {ws}, s{sKM} offen sc1\ns_add_u32 s{sKM}, s{sKM}, 131072"))
    for n in range(4):
        at(6+n, lambda n=n: A(f"buffer_store_dwordx4 {vr(VA,4)}, v{vL16}, {ws}, s{sInR+(par^1)} offen offset:{n*1024}"))
    at(10, lambda: A(f"buffer_store_dword v{VA}, v{vPub}, {ws}, s{sRingA} offen"))
    at(12, lambda: A(f"v_mov_b64 {vr(VA,2)}, 0"))
    at(13, lambda: A(f"v_mov_b64 {vr(VA+2,2)}, 0"))
    def ringaddr():
        A(f"s_mov_b32 s{sRingA}, s{sRingW}")
    qt = T + 16
    def qx():
        A(f"v_pk_add_f32 {vr(QA,2)}, {vr(QA,2)}, {vr(QA+2,2)}")
        A(f"v_pk_add_f32 {vr(QA+4,2)}, {vr(QA+4,2)}, {vr(QA+6,2)}")
        A(f"v_cvt_pk_bf16_f32 v{qt}, v{QA}, v{QA+4}")
        A(f"v_cvt_pk_bf16_f32 v{qt+1}, v{QA+1}, v{QA+5}")
        A(f"ds_write2_b32 v{vXQw}, v{qt}, v{qt+1} offset0:0 offset1:4")
        A(f"ds_read_b128 {vr(T,4)}, v{vXQo}", tag='qo')
    at(22, qx)
    for i, (f, b) in enumerate(LDS_O1[:2]): at(23+i, lambda f=f: lds_fetch(A, f))
    for pos, f in enumerate(QK_ORDER):
        if f[1] >= 2: A.wait_lds(('xp', f[1]))
        smf(A, f)
        for fn in side.get(pos, []): fn()
    ST(3)
    A.wait_lds('qo')
    A(f"v_mfma_f32_16x16x32_bf16 {vr(QA,4)}, {vr(KT,4)}, {vr(T,4)}, 0")
    A(f"v_mfma_f32_16x16x32_bf16 {vr(QA+4,4)}, {vr(KT+4,4)}, {vr(T,4)}, 0")
    A(f"buffer_load_dwordx4 {vr(KT,4)}, v{vL16}, {ws}, s{sKT} offen sc1")
    A(f"buffer_load_dwordx4 {vr(KT+4,4)}, v{vL16}, {ws}, s{sKT} offen offset:1024 sc1")
    vq = list(V_ORDER)
    def V(n=1):
        for _ in range(n):
            if vq: smf(A, vq.pop(0))
    V(1)
    A(f"v_pk_add_f32 {vr(KA,2)}, {vr(KA,2)}, {vr(KA+2,2)}")
    A(f"v_pk_add_f32 {vr(KA+4,2)}, {vr(KA+4,2)}, {vr(KA+6,2)}")
    A(f"v_cvt_pk_bf16_f32 v{KV4}, v{KA}, v{KA+4}")
    A(f"v_cvt_pk_bf16_f32 v{KV4+1}, v{KA+1}, v{KA+5}")
    A(f"ds_write2_b32 v{vXQw}, v{KV4}, v{KV4+1} offset0:32 offset1:36")
    A(f"s_mov_b64 exec, s[{sMLo}:{sMLo+1}]")
    A(f"ds_write_b128 v{vXP0}, {vr(QA,4)} offset:12288")
    A(f"s_mov_b64 exec, s[{sMHi}:{sMHi+1}]")
    A(f"ds_write_b128 v{vXP0}, {vr(QA+4,4)} offset:12288")
    A("s_mov_b64 exec, -1")
    V(2)
    A(f"s_cmp_lt_u32 s{sS}, 62")
    A(f"s_cselect_b32 s{sT0}, 524288, 0")
    A(f"s_add_u32 s{sKT}, s{sKT}, s{sT0}")
    A.wait_lds()
    ST(4)
    A("s_barrier")
    ST(5)
    q2, k2, SD = T, T+8, T+16
    for n in range(2):
        A(f"ds_read_b128 {vr(k2+4*n,4)}, v{vXK2} offset:{n*2048}", tag=('qk', n))
        A(f"ds_read_b128 {vr(q2+4*n,4)}, v{vXQ2} offset:{n*2048}", tag=('qk', n))
    for n in range(4):
        A(f"ds_read_b128 {vr(X+4*n,4)}, v{vL16} offset:{12288+n*1024}", tag=('xs', n))
    V(6)
    A.wait_lds(('qk', 0))
    A(f"v_mfma_f32_16x16x32_bf16 {vr(SD,4)}, {vr(k2,4)}, {vr(q2,4)}, 0")
    A.wait_lds(('qk', 1))
    A(f"v_mfma_f32_16x16x32_bf16 {vr(SD,4)}, {vr(k2+4,4)}, {vr(q2+4,4)}, {vr(SD,4)}")
    for f, b in LDS_O1[2:4]: lds_fetch(A, f)
    V(2)
    A.wait_lds(('xs', 1))
    A(f"v_pk_add_f32 {vr(X,2)}, {vr(X,2)}, {vr(X+4,2)}")
    A(f"v_pk_add_f32 {vr(X+2,2)}, {vr(X+2,2)}, {vr(X+6,2)}")
    V(1)
    A.wait_lds(('xs', 3))
    A(f"v_pk_add_f32 {vr(X+8,2)}, {vr(X+8,2)}, {vr(X+12,2)}")
    A(f"v_pk_add_f32 {vr(X+10,2)}, {vr(X+10,2)}, {vr(X+14,2)}")
    V(1)
    A(f"v_pk_add_f32 {vr(X,2)}, {vr(X,2)}, {vr(X+8,2)}")
    A(f"v_pk_add_f32 {vr(X+2,2)}, {vr(X+2,2)}, {vr(X+10,2)}")
    sm, mx, t1, t2, PT = X+4, X+5, X+6, X+7, X+8
    A(f"v_add_f32_dpp v{sm}, v{SD+2}, v{SD} row_ror:8 row_mask:0xf bank_mask:0x3")
    A(f"v_add_f32_dpp v{sm}, v{SD+1}, v{SD+3} row_ror:8 row_mask:0xf bank_mask:0xc")
    lds_fetch(A, LDS_O1[4][0])
    V(1)
    if o['mimic']:
        for i in range(5): A(f"v_cvt_pk_bf16_f32 v{X+i}, 0, v{X+i}")
        V(1)
        for i in range(5): A(f"v_mul_f32 v{X+i}, s{sScale}, v{X+i}")
        for i in range(5): A(f"v_cvt_pk_bf16_f32 v{X+i}, 0, v{X+i}")
    V(16)
    A(f"v_max3_f32 v{mx}, v{X}, v{X+1}, v{X+2}")
    A(f"v_max3_f32 v{mx}, v{mx}, v{X+3}, v{sm}")
    A(f"v_max_f32_dpp v{mx}, v{mx}, v{mx} row_ror:8 row_mask:0xf bank_mask:0xf")
    for sw in ('16', '32'):
        A(f"v_mov_b32 v{t1}, v{mx}")
        A(f"v_permlane{sw}_swap_b32 v{t1}, v{mx}")
        A(f"v_max_f32 v{mx}, v{mx}, v{t1}")
    A(f"v_mul_f32 v{mx}, s{sL2E}, v{mx}")
    for i in range(5): A(f"v_fma_f32 v{X+i}, v{X+i}, s{sL2E}, -v{mx}")
    for i in range(5): A(f"v_exp_f32 v{X+i}, v{X+i}")
    A(f"v_pk_add_f32 {vr(VA,2)}, {vr(VA,2)}, {vr(VA+2,2)}")
    A(f"v_pk_add_f32 {vr(VA+4,2)}, {vr(VA+4,2)}, {vr(VA+6,2)}")
    A(f"v_cvt_pk_bf16_f32 v{PT}, v{X}, v{X+1}")
    A(f"v_cvt_pk_bf16_f32 v{PT+1}, v{X+2}, v{X+3}")
    A(f"v_mov_b32_dpp v{t1}, v{sm} row_ror:8 row_mask:0xf bank_mask:0xf")
    A(f"v_cvt_pk_bf16_f32 v{KV4+2}, v{VA}, v{VA+1}")
    A(f"v_mov_b32_dpp v{PT+2}, v{PT} row_ror:8 row_mask:0xf bank_mask:0xf")
    A(f"v_mov_b32_dpp v{PT+3}, v{PT+1} row_ror:8 row_mask:0xf bank_mask:0xf")
    A(f"v_cvt_pk_bf16_f32 v{KV4+3}, v{VA+4}, v{VA+5}")
    if par == 1:
        A(f"s_cmp_eq_u32 s{sS}, 63")
        A(f"s_cbranch_scc1 L_t_tail")
    A(f"v_cvt_pk_bf16_f32 v{PM}, v{sm}, v{t1}")
    A(f"v_mfma_f32_16x16x32_bf16 {vr(VA,4)}, {vr(vt_cur,4)}, {vr(PT,4)}, 0")
    A(f"v_cvt_pk_bf16_f32 v{PM+3}, v{sm}, v{t1}")
    A(f"v_add_f32 v{t2}, v{X}, v{X+1}")
    A(f"v_mfma_f32_16x16x32_bf16 {vr(VA+4,4)}, {vr(vt_cur+4,4)}, {vr(PT,4)}, 0")
    A(f"v_add_f32 v{X+2}, v{X+2}, v{X+3}")
    A(f"v_add_f32 v{t2}, v{t2}, v{sm}")
    A(f"v_mfma_f32_16x16x16_bf16 {vr(VA,4)}, {vr(KV4+2,2)}, {vr(PM,2)}, {vr(VA,4)}")
    A(f"v_add_f32 v{t2}, v{t2}, v{X+2}")
    A(f"v_mfma_f32_16x16x16_bf16 {vr(VA+4,4)}, {vr(KV4+2,2)}, {vr(PM+2,2)}, {vr(VA+4,4)}")
    A(f"v_add_f32_dpp v{t2}, v{t2}, v{t2} row_ror:8 row_mask:0xf bank_mask:0xf")
    for sw in ('16', '32'):
        A(f"v_mov_b32 v{t1}, v{t2}")
        A(f"v_permlane{sw}_swap_b32 v{t1}, v{t2}")
        A(f"v_add_f32 v{t2}, v{t2}, v{t1}")
    A(f"v_rcp_f32 v{t1}, v{t2}")
    for i in range(0, 8, 2):
        A(f"v_pk_mul_f32 {vr(VA+i,2)}, {vr(VA+i,2)}, {vr(t1,2)} op_sel_hi:[1,0]")
    for r in range(4): A(f"v_cvt_pk_bf16_f32 v{X+r}, v{VA+r}, v{VA+4+r}")
    A(f"ds_write_b128 v{vXOw}, {vr(X,4)}")
    zero64(A, P, 16)
    A.wait_lds()
    ST(6)
    A("s_barrier")
    ST(7)
    A(f"ds_read_b128 {vr(X+8,4)}, v{vL16}", tag='o0')
    A(f"ds_read_b128 {vr(X+12,4)}, v{vL16} offset:1024", tag='o1')
    zero64(A, P+16, 16)
    A(f"s_and_b32 s{sT0}, s{sS}, 3")
    A(f"s_lshl_b32 s{sT0}, s{sT0}, 13")
    A(f"s_add_u32 s{sRingA}, s{sT0}, s{sRingWb}")
    A(f"s_add_u32 s{sS}, s{sS}, 1")
    A(f"s_and_b32 s{sT0}, s{sS}, 3")
    A(f"s_lshl_b32 s{sT0}, s{sT0}, 13")
    A(f"s_add_u32 s{sRingW}, s{sT0}, s{sRingWb}")
    A(f"s_add_u32 s{sRingR}, s{sT0}, s{sRingRb}")
    side = {}
    for i, (f, b) in enumerate(LDS_O2): at(i, lambda f=f: lds_fetch(A, f))
    at(3, lambda: lds_fetch(A, LDS_QK1[0][0]))
    at(4, lambda: lds_fetch(A, LDS_QK1[1][0]))
    def fin(u):
        d = P + 8*u
        A(f"v_pk_add_f32 {vr(d,2)}, {vr(d,2)}, {vr(d+2,2)}")
        A(f"v_pk_add_f32 {vr(d+2,2)}, {vr(d+4,2)}, {vr(d+6,2)}")
        A(f"buffer_store_dwordx4 {vr(d,4)}, v{vInW}, {ws}, s{sInW+4*par+u} offen")
    for u in range(3): at(4*u+6, lambda u=u: fin(u))
    for pos, f in enumerate(O_ORDER):
        A.wait_lds('o%d' % f[1])
        smf(A, f)
        for fn in side.get(pos, []): fn()
    for f, b in LDS_QK1[2:]: lds_fetch(A, f)
    fin(3)
    phaseA_prep(A)
    R = P
    ST(8)
    A(f"{L}_in:")
    A.vm = []
    for n in range(4):
        A(f"buffer_load_dwordx4 {vr(R+4*n,4)}, v{vInR}, {ws}, s{sInR+par} offen offset:{n*1024} sc1", tag=n)
    A.wait_vm(1)
    ST(10)
    A(f"v_pk_add_f32 {vr(R,2)}, {vr(R,2)}, {vr(R+4,2)}")
    A(f"v_pk_add_f32 {vr(R+2,2)}, {vr(R+2,2)}, {vr(R+6,2)}")
    A.wait_vm(2)
    A(f"v_pk_add_f32 {vr(R,2)}, {vr(R,2)}, {vr(R+8,2)}")
    A(f"v_pk_add_f32 {vr(R+2,2)}, {vr(R+2,2)}, {vr(R+10,2)}")
    A.wait_vm(3)
    A(f"v_pk_add_f32 {vr(R,2)}, {vr(R,2)}, {vr(R+12,2)}")
    A(f"v_pk_add_f32 {vr(R+2,2)}, {vr(R+2,2)}, {vr(R+14,2)}")
    A(f"v_permlane32_swap_b32 v{R}, v{R+1}")
    A(f"v_permlane32_swap_b32 v{R+2}, v{R+3}")
    A(f"v_add_f32 v{R}, v{R}, v{R+1}")
    A(f"v_add_f32 v{R+2}, v{R+2}, v{R+3}")
    for ro in (8, 4):
        A(f"v_add_f32_dpp v{R}, v{R}, v{R} row_ror:{ro} row_mask:0xf bank_mask:0xf")
        A(f"v_add_f32_dpp v{R+2}, v{R+2}, v{R+2} row_ror:{ro} row_mask:0xf bank_mask:0xf")
    A(f"v_cmp_u_f32 vcc, v{R}, v{R+2}")
    A(f"v_cvt_pk_bf16_f32 v{R+16}, v{R}, v{R+2}")
    A(f"s_cbranch_vccnz {L}_in_re")
    OOL.append(retry(f"{L}_in_re", f"{L}_in", f"{L}_in_ok"))
    A(f"{L}_in_ok:")
    ST(9)
    A(f"s_mov_b64 exec, s[{sMPub}:{sMPub+1}]")
    A(f"buffer_store_dword v{R+16}, v{vPub}, {ws}, s{sRingW} offen")
    A("s_mov_b64 exec, -1")

def emit_team(A, o):
    ws = f"s[{sWS}:{sWS+3}]"
    OOL = []
    team_setup(A, o)
    team_weights(A, o)
    if o.get('time'): A("s_memtime s[70:71]")
    wait_cnt(A, OOL, "L_t_arm", D_ARM, 32)
    wait_cnt(A, OOL, "L_t_cx", D_CX, N_CX)
    A("L_t_f0:")
    A(f"buffer_load_dword v30, v{vFlag}, {ws}, s{sFKT} offen sc1")
    A("s_waitcnt vmcnt(0)")
    A(f"v_cmp_ne_u32 s[{sKM_}:{sKM_+1}], 0, v30")
    A("s_nop 4")
    A(f"s_bitcmp1_b64 s[{sKM_}:{sKM_+1}], 0")
    A("s_cbranch_scc0 L_t_f0_re")
    OOL.append(retry("L_t_f0_re", "L_t_f0", "L_t_f0_ok"))
    A("L_t_f0_ok:")
    for n in range(2):
        A(f"buffer_load_dwordx4 {vr(KT+4*n,4)}, v{vL16}, {ws}, s{sKT} offen offset:{n*1024} sc1")
        A(f"buffer_load_dwordx4 {vr(VT+4*n,4)}, v{vL16}, {ws}, s{sKT} offen offset:{2048+n*1024} sc1")
    A(f"s_add_u32 s{sKT}, s{sKT}, 524288")
    A(f"s_mov_b32 s{sFB}, 1")
    A(f"s_mov_b32 s{sS}, 0")
    A(f"s_mov_b32 s{sRingR}, s{sRingRb}")
    A(f"s_add_u32 s{sRingA}, s{sRingWb}, {3*8192}")
    A(f"v_mov_b32 v{PM+1}, 0\nv_mov_b32 v{PM+2}, 0")
    zero64(A, KV4, 4)
    A.lds = []
    for f, b in LDS_QK1: lds_fetch(A, f)
    phaseA_prep(A)
    if o.get('time'): A("s_memtime s[72:73]")
    team_step(A, o, 0, OOL)
    team_step(A, o, 1, OOL)
    A("s_branch L_t0_ring")
    A("L_t_tail:")
    A(f"buffer_store_dwordx4 {vr(KV4,4)}, v{vL16}, {ws}, s{sKM} offen sc1")
    A("s_waitcnt vmcnt(0) lgkmcnt(0)")
    if o.get('prof'):
        A("s_mov_b64 exec, 1")
        A(f"s_lshl_b32 s{sT0}, s{sR}, 8\ns_lshl_b32 s{sT1}, s{sWv}, 6\ns_add_u32 s{sT0}, s{sT0}, s{sT1}\ns_add_u32 s{sT0}, s{sT0}, {PROF}")
        for i in range(11):
            A(f"v_mov_b32 v32, s{76+2*i}")
            A(f"buffer_store_dword v32, off, {ws}, s{sT0} offset:{4*i}")
            A("s_waitcnt vmcnt(0)")
    if o.get('time'):
        A(f"s_mov_b64 exec, s[{sMFlag}:{sMFlag+1}]")
        A("s_memtime s[74:75]")
        A("s_waitcnt lgkmcnt(0)")
        A(f"s_cmp_lg_u32 s{sR}, 0\ns_cbranch_scc1 L_t_end")
        A("s_sub_u32 s70, s70, s68\ns_sub_u32 s72, s72, s68\ns_sub_u32 s74, s74, s68")
        A(f"v_mov_b32 v32, s70\nv_mov_b32 v33, s72\nv_mov_b32 v34, s74\nv_mov_b32 v35, s{sSpin}\nv_mov_b32 v31, 96")
        A("global_store_dwordx4 v31, v[32:35], s[4:5]")
        A("L_t_end:")
    A("s_endpgm")
    for t in OOL: A(t)

SQ, SK, SX, SV, SO, S1, sTb, sTo = 76, 80, 84, 92, 96, 40, 38, 39
vTa, vTb, vTd = 17, 18, 15
def team_touch(A, j):
    if j < 24:
        m, ph, i = j >> 3, (j >> 2) & 1, j & 3
        A(f"s_xor_b32 s{sT3}, s{sTb}, {ph << 21}\ns_add_u32 s{sT3}, s{sT3}, {32*i*8192}")
        r = (SQ, SK, SV)[m]
        A(f"buffer_load_dword v{vTd}, v{vTa}, s[{r}:{r+3}], s{sT3} offen")
    elif j < 32:
        A(f"s_add_u32 s{sT3}, s{sTo}, {(j-24)*16384}")
        A(f"buffer_load_dword v{vTd}, v{vTb}, s[{SO}:{SO+3}], s{sT3} offen")

def prologue(A, o):
    if o.get('time'): A("s_memtime s[68:69]")
    A("s_load_dwordx2 s[4:5], s[0:1], 88")
    A(f"s_load_dwordx2 s[{sWS}:{sWS+1}], s[0:1], 96")
    for r, k, n in ((SQ, 16, 4194304), (SK, 24, 4194304), (SV, 32, 4194304), (SO, 40, 4194304), (SX, 0, 2097152), (S1, 64, 512*2752)):
        A(f"s_load_dwordx2 s[{r}:{r+1}], s[0:1], {k}\ns_mov_b32 s{r+2}, {n}\ns_mov_b32 s{r+3}, 0x00020000")
    A(f"s_mov_b32 s{sWS+2}, {WS_BYTES}")
    A(f"s_mov_b32 s{sWS+3}, 0x00020000")
    A(f"s_getreg_b32 s{sXCC}, hwreg(HW_REG_XCC_ID, 0, 4)")
    A(f"s_and_b32 s{sXCC}, s{sXCC}, 7")
    A("v_lshrrev_b32 v1, 6, v0")
    A(f"v_readfirstlane_b32 s{sWv}, v1")
    A(f"s_lshl_b32 s{sT0}, s{sXCC}, 2")
    A(f"s_add_u32 s{sT0}, s{sT0}, {D_RANK}")
    A(f"s_mov_b32 s{sSpin}, 0x20000")
    A(f"s_mov_b32 s{sPLo}, 0x05040100\ns_mov_b32 s{sPHi}, 0x07060302")
    A(f"v_mov_b32 v1, s{sT0}")
    A("v_mov_b32 v2, 1")
    A(f"v_mov_b32 v4, 0\nv_mov_b32 v{vTb}, 0")
    A("v_and_b32 v5, 63, v0")
    A(f"s_bfe_u32 s{sT1}, s2, {(5 << 16) | 3}")
    A(f"s_lshl_b32 s{sT2}, s{sT1}, 2\ns_add_u32 s{sT2}, s{sT2}, s{sWv}")
    A("s_waitcnt lgkmcnt(0)")
    A(f"s_cmp_lg_u32 s{sWv}, 0\ns_cbranch_scc1 L_norank")
    A("s_mov_b64 exec, 1")
    A("global_atomic_add v3, v1, v2, s[4:5] sc0" + (" sc1" if o.get('rk') else ""))
    A("s_mov_b64 exec, -1")
    A("L_norank:")
    nt = 0 if o.get('nt') else 6
    A(f"s_cmp_eq_u32 s{sXCC}, 0\ns_cbranch_scc1 L_p_team")
    A(f"s_cmp_gt_u32 s{sXCC}, 4\ns_cbranch_scc1 L_p_og")
    A(f"v_lshrrev_b32 v6, 5, v5\nv_and_b32 v7, 31, v5\nv_lshlrev_b32 v6, 13, v6\nv_lshl_add_u32 v{vTa}, v7, 6, v6")
    A(f"s_lshl_b32 s{sT2}, s{sT2}, 14\ns_lshl_b32 s{sT0}, s{sXCC}, 11\ns_add_u32 s{sT2}, s{sT2}, s{sT0}\ns_sub_u32 s{sT2}, s{sT2}, 2048\ns_add_u32 s{sT3}, s{sT2}, {1<<21}")
    for j in range(nt):
        r = (SQ, SK, SV)[j >> 1]
        A(f"buffer_load_dword v{vTd}, v{vTa}, s[{r}:{r+3}], s{sT3 if j & 1 else sT2} offen")
    A("s_branch L_p_join")
    A("L_p_og:")
    A(f"s_sub_u32 s{sT0}, s{sXCC}, 5\ns_lshl_b32 s{sT0}, s{sT0}, 20\ns_lshl_b32 s{sT1}, s{sT2}, 13\ns_add_u32 s{sT0}, s{sT0}, s{sT1}\ns_lshl_b32 s{sT2}, s{sT2}, 12")
    A(f"v_lshl_add_u32 v{vTa}, v5, 7, s{sT0}\nv_lshl_add_u32 v{vTb}, v5, 6, s{sT2}")
    for j in range(nt):
        if j < 2: A(f"buffer_load_dword v{vTd}, v{vTa}, s[{SX}:{SX+3}], 0 offen offset:{64*j}")
        else: A(f"buffer_load_dword v{vTd}, v{vTb}, s[{S1}:{S1+3}], 0 offen\nv_add_u32 v{vTb}, {128*4096}, v{vTb}")
    A("s_branch L_p_join")
    A("L_p_team:")
    A(f"v_lshrrev_b32 v6, 1, v5\nv_and_b32 v7, 1, v5\nv_lshlrev_b32 v6, 13, v6\nv_lshl_add_u32 v{vTa}, v7, 6, v6")
    A(f"v_lshrrev_b32 v6, 2, v5\nv_and_b32 v7, 3, v5\nv_lshlrev_b32 v6, 10, v6\nv_lshl_add_u32 v{vTb}, v7, 6, v6")
    A(f"s_lshl_b32 s{sTb}, s{sT1}, 8\ns_lshr_b32 s{sT0}, s{sWv}, 1\ns_lshl_b32 s{sT0}, s{sT0}, 7\ns_add_u32 s{sTb}, s{sTb}, s{sT0}\ns_lshl_b32 s{sT0}, s{sWv}, 20\ns_add_u32 s{sTb}, s{sTb}, s{sT0}")
    A(f"s_lshl_b32 s{sTo}, s{sT1}, 17\ns_lshl_b32 s{sT0}, s{sWv}, 8\ns_add_u32 s{sTo}, s{sTo}, s{sT0}")
    for j in range(nt): team_touch(A, j)
    A("L_p_join:")
    A(f"s_cmp_lg_u32 s{sWv}, 0\ns_cbranch_scc1 L_norank2")
    A(f"s_mov_b64 exec, 1\ns_waitcnt vmcnt({nt})")
    A("ds_write_b32 v4, v3")
    A("s_mov_b64 exec, -1")
    A("s_waitcnt lgkmcnt(0)")
    A("L_norank2:")
    A("s_barrier")
    A("ds_read_b32 v3, v4")
    A("s_waitcnt lgkmcnt(0)")
    A(f"v_readfirstlane_b32 s{sR}, v3")
    A("s_barrier")
    A.lds = []; A.vm = []

if __name__ == '__main__':
    import sys
    o = dict(mimic=1, time=1)
    for a in sys.argv[2:]:
        k, v = a.split('='); o[k] = int(v)
    A = Asm()
    A.L.append("; @launch grid=(256,1,1) block=(256,1,1) lds=163840")
    A('.amdgcn_target "amdgcn-amd-amdhsa--gfx950"')
    header(A, "team_kernel")
    prologue(A, o)
    A(f"s_cmp_lg_u32 s{sXCC}, 0\ns_cbranch_scc1 L_exit")
    A(f"s_cmp_gt_u32 s{sR}, 31\ns_cbranch_scc1 L_exit")
    emit_team(A, o)
    A("L_exit:\ns_endpgm")
    kd(A, "team_kernel", 256, 256)
    if o.get('x'):
        x = o['x']; out = []; inl = False; ph = -1
        for ln in A.L:
            if ln.startswith('L_t0_ring:'): inl = True
            if ln.startswith('L_t_tail:'): inl = False
            if inl:
                if ln.startswith('s_barrier'): ph = (ph + 1) % 3
                poll = ('sc1' in ln and 'load' in ln and (f's{sRingR} ' in ln or f'v{vInR},' in ln))
                if (x & 1) and ph == 0 and ln.startswith('buffer_store'): continue
                if (x & 2) and ph == 0 and ln.startswith('buffer_load') and not poll: continue
                if (x & 4) and ln.startswith('ds_read_b128') and f', v{vWL} ' in ln: continue
                if (x & 8) and ph == 2 and ln.startswith('buffer_store_dwordx4'): continue
            out.append(ln)
        A.L = [l.replace('0x20000', '0x2000') if l.startswith(f's_mov_b32 s{sSpin},') else l for l in out]
    open(sys.argv[1], 'w').write(A.text())
```

```python
from asmlib import *
from layout import *
import gen_team as G1
from gen_team import (f2u, srd, retry, wait_cnt, zero64, prologue,
                      sWS, sW, sXCC, sR, sWv, sT0, sT1, sT2, sT3, sPLo, sPHi, sScale, sL2E, sSpin)

vL16, vWL, vXP0, vXP1, vXP2, vXP3, vIdx, vQw, vKw, vSw, vXOw, vInW, vPub, vKTg, vPf, vDum = range(16)
P, QA, KA, VA, KT, VT, PM, KV4, T, WV = 16, 48, 56, 64, 72, 80, 88, 92, 96, 128
sS, sRingR, sRingW, sRingA = 20, 21, 22, 23
sInW, sInR = 24, 26
sKT, sKT1, sVT, sPF, sKM, sFB, sFKT = 29, 30, 31, 32, 35, 37, 33
sRow = 54
sKM_ = 64
sSch, sSnap, sAll, sPend = 60, 62, 37, 66
L_XP, L_Q, L_K, L_ST, L_O, L_SEL, L_W = 0, 8192, 10240, 12288, 13312, 17408, 32768
PARX = 262144

OWN = [(x, s, t) for x in 'qkv' for s in range(2) for t in range(2)]
QO = [('q', s, t) for s in range(2, 8) for t in range(2)]
KO = [('k', s, t) for s in range(2, 8) for t in range(2)]
VO = [('v', s, t) for s in range(2, 8) for t in range(2)]
O_ORDER = [('o', k, 2*u+t) for u in range(4) for k in range(2) for t in range(2)]
GH = list(zip(OWN[:7], (P+8, P+16, P+24, T, T+8, T+16, T+24)))
GM = list(zip(QO[8:12], (T, T+8, T+16, T+24)))
GO = list(zip(O_ORDER[:4], (T, T+8, T+16, T+24)))
GV = [(O_ORDER[15], VT)]
place = {}
for i, (f, r) in enumerate(GH + GM + GO + GV): place[f] = ('l', i, r)
rest = [f for f in OWN + QO + KO + VO + O_ORDER if f not in place]
assert len(rest) == 48
for i, f in enumerate(rest):
    place[f] = ('a', 8*i) if i < 32 else ('v', WV + 8*(i-32))

def breg(f):
    p = place[f]
    if p[0] == 'l': return vr(p[2], 8)
    return vr(p[1], 8, p[0])

def lds_half(A, f, h):
    _, i, r = place[f]
    A(f"ds_read_b128 {vr(r+4*h,4)}, v{vWL} offset:{i*2048+1024*h}", tag=f)

def halves(grp): return [(f, h) for f, _ in grp for h in range(2)]

def smf(A, f):
    X_, s, t = f
    if place[f][0] == 'l': A.wait_lds(f)
    if X_ == 'o':
        A.wait_lds(('o', s))
        acc, a = P + 4*t, KA + 4*s
    else:
        if s >= 2: A.wait_lds(('xp', s))
        acc, a = {'q': QA, 'k': KA, 'v': VA}[X_] + 4*t, P + 4*s
    A(f"v_smfmac_f32_16x16x64_bf16 {vr(acc,4)}, {vr(a,4)}, {breg(f)}, v{vIdx}")

def put_frag(A, f, src):
    p = place[f]
    if p[0] == 'l':
        A(f"ds_write_b128 v{vWL}, {vr(src,4)} offset:{p[1]*2048}")
        A(f"ds_write_b128 v{vWL}, {vr(src+4,4)} offset:{p[1]*2048+1024}")
    elif p[0] == 'a':
        for q in range(8): A(f"v_accvgpr_write_b32 a{p[1]+q}, v{src+q}")

def bits(A, dst, terms, tmp, base=None):
    first = True
    for (src, lo, n, sh) in terms:
        A(f"v_bfe_u32 v{tmp}, v{src}, {lo}, {n}")
        if first and base is None: A(f"v_lshlrev_b32 v{dst}, {sh}, v{tmp}")
        elif first: A(f"v_lshl_add_u32 v{dst}, v{tmp}, {sh}, {base}")
        else: A(f"v_lshl_add_u32 v{dst}, v{tmp}, {sh}, v{dst}")
        first = False

def team_setup(A, o):
    ws = f"s[{sWS}:{sWS+3}]"
    t0, tid = 20, 21
    A(f"v_mov_b32 v{tid}, v0")
    B = lambda dst, terms, base=None: bits(A, dst, [(tid,) + t for t in terms], t0, base)
    B(vL16, [(0, 6, 4)])
    A(f"s_mov_b32 s{sT0}, {L_W}")
    B(vWL, [(0, 6, 4), (6, 2, 15)], f"s{sT0}")
    B(vXP0, [(0, 6, 4), (6, 2, 11)])
    for a in range(1, 4): A(f"v_xor_b32 v{vXP0+a}, {a*2048}, v{vXP0}")
    A(f"v_bfe_u32 v{t0}, v{tid}, 1, 1")
    A(f"v_mul_u32_u24 v{t0}, 0xAAAA, v{t0}")
    A(f"v_add_u32 v{vIdx}, 0x4444, v{t0}")
    A(f"s_mov_b32 s{sT0}, {L_Q}")
    B(vQw, [(7, 1, 10), (2, 2, 8), (6, 1, 7), (4, 2, 5), (0, 2, 2)], f"s{sT0}")
    A(f"s_mov_b32 s{sT0}, {L_K}")
    B(vKw, [(7, 1, 10), (2, 2, 8), (4, 2, 6), (6, 1, 5), (0, 2, 2)], f"s{sT0}")
    B(vSw, [(6, 2, 8), (5, 1, 7), (0, 3, 4), (4, 1, 3), (3, 1, 2)])
    B(vXOw, [(6, 2, 9), (5, 1, 8), (1, 2, 6), (4, 1, 5), (0, 1, 4), (3, 1, 11)])
    B(vInW, [(2, 2, 14), (4, 1, 13), (5, 1, 11), (0, 2, 4)])
    B(vPub, [(2, 2, 28), (4, 1, 5), (5, 1, 4), (0, 2, 2)])
    B(vKTg, [(1, 1, 12), (3, 1, 10), (4, 2, 8), (6, 2, 6), (2, 1, 5), (0, 1, 4)])
    B(vPf, [(0, 5, 7), (5, 1, 6)])
    A(f"s_lshl_b32 s{sFKT}, s{sR}, 8\ns_add_u32 s{sFKT}, s{sFKT}, {F_KT - 128}")
    sch = sum(1 << int(x) for x in str(o.get('sch', '2,9,32')).split(','))
    A(f"s_mov_b32 s{sSch}, {sch & 0xffffffff}\ns_mov_b32 s{sSch+1}, {sch >> 32}\ns_mov_b32 s{sAll}, 0x01010101")
    A(f"v_mov_b32 v{vDum}, 0")
    B(26, [(5, 1, 10), (0, 2, 4), (4, 1, 2)])
    B(27, [(4, 2, 17), (0, 4, 2)])
    B(28, [(5, 1, 14), (4, 1, 12), (0, 4, 4)])
    B(22, [(2, 1, 1), (0, 1, 0)])
    B(23, [(3, 1, 4)])
    A(f"v_mov_b32 v24, 0x3f80")
    A(f"v_lshlrev_b32 v23, v23, v24")
    for j in range(4):
        A(f"v_cmp_eq_u32 vcc, {j}, v22")
        A(f"v_cndmask_b32 v{32+j}, 0, v23, vcc")
    A(f"ds_write_b128 v{vL16}, v[32:35] offset:{L_SEL}")
    A(f"s_mov_b32 s{sScale}, {f2u(128**-0.5)}")
    A(f"s_mov_b32 s{sL2E}, {f2u(1.4426950408889634)}")
    A(f"s_lshl_b32 s{sT0}, s{sWv}, 16\ns_lshl_b32 s{sT1}, s{sR}, 6\ns_add_u32 s{sT0}, s{sT0}, s{sT1}")
    A(f"s_add_u32 s{sInW}, s{sT0}, {INBOX}\ns_add_u32 s{sInW+1}, s{sT0}, {INBOX+4096}")
    A(f"s_lshl_b32 s{sT0}, s{sR}, 13")
    A(f"s_lshl_b32 s{sRingR}, s{sWv}, 11")
    A(f"s_add_u32 s{sInR}, s{sT0}, {INBOX}\ns_add_u32 s{sInR}, s{sInR}, s{sRingR}")
    A(f"s_mul_i32 s{sKT}, s{sR}, {HSTR}\ns_add_u32 s{sKT}, s{sKT}, {HB+SLOT}")
    A(f"s_add_u32 s{sKT1}, s{sKT}, 8192")
    A(f"s_lshl_b32 s{sT0}, s{sWv}, 12\ns_add_u32 s{sVT}, s{sKT}, s{sT0}")
    A(f"s_lshl_b32 s{sT1}, s{sWv}, 10\ns_add_u32 s{sT0}, s{sKT}, s{sT1}")
    A(f"s_sub_u32 s{sKM}, s{sT0}, {SLOT - 16384}")
    assert RING == 0
    def sbits(dst, terms):
        for i, (src, lo, n, sh) in enumerate(terms):
            A(f"s_bfe_u32 s{sT3}, s{src}, {(n << 16) | lo}")
            A(f"s_lshl_b32 s{sT3 if i else dst}, s{sT3}, {sh}")
            if i: A(f"s_add_u32 s{dst}, s{dst}, s{sT3}")
    sbits(sRingA, [(sR, 3, 2, 11), (sWv, 1, 1, 10), (sR, 1, 2, 8), (sWv, 0, 1, 7), (sR, 0, 1, 6)])
    A(f"s_add_u32 s{sRingW}, s{sRingA}, 8192")
    sbits(sT0, [(sR, 0, 5, 8), (sWv, 0, 2, 6)])
    for a in range(4):
        A(f"s_xor_b32 s{sT3}, s{sWv}, {a}\ns_lshl_b32 s{sT3}, s{sT3}, 20\ns_add_u32 s{sRow+a}, s{sT3}, s{sT0}")
    srd(A, sW, 8, 8192)
    sbits(sT0, [(sWv, 0, 1, 12), (sR, 0, 1, 11), (sR, 3, 2, 8), (sR, 1, 2, 6), (sWv, 1, 1, 3)])
    A(f"buffer_load_dword v29, v26, s[{sW}:{sW+3}], s{sT0} offen")
    for q in range(4): A(f"v_mov_b32 v{96+q}, -1")
    for par in range(2):
        for n in range(2):
            A(f"buffer_store_dwordx4 v[96:99], v{vL16}, {ws}, s{sInR} offen offset:{n*1024}")
        A(f"s_xor_b32 s{sInR}, s{sInR}, {PARX}")
    A(f"buffer_store_dword v96, v{vPub}, {ws}, s{sRingW} offen")
    if not o.get('ea', 1): arm_b(A); arm_c(A)

def arm_b(A, w=True):
    if w: A.wait_vm()
    A(f"buffer_store_dword v29, v{vPub}, s[{sWS}:{sWS+3}], s{sRingA} offen", tag='armb')

def arm_c(A):
    A.wait_vm('armb')
    A("s_barrier")
    A(f"s_cmp_lg_u32 s{sWv}, 0\ns_cbranch_scc1 L_t_noarr")
    A("s_mov_b64 exec, 1")
    A(f"v_mov_b32 v30, 1\nv_mov_b32 v31, {D_ARM}")
    q = list(A.vm)
    A(f"global_atomic_add v31, v30, s[4:5] sc1")
    A.vm = q
    A("s_mov_b64 exec, -1")
    A("L_t_noarr:")

def team_weights(A, o):
    batches = [(X_, s) for X_ in 'qkv' for s in range(8)]
    NB = 3
    def issue(b):
        X_, s = batches[b]
        if s == 0: srd(A, sW, {'q': 16, 'k': 24, 'v': 32}[X_], 4194304)
        for ib in range(16):
            d = 64*(ib>>3) + 8*((ib>>2)&1) + 4*(s&1) + (ib&3)
            A(f"s_add_u32 s{sT0}, s{sRow+(s>>1)}, {d*8192}")
            A(f"buffer_load_dword v{32+16*(b%4)+ib}, v27, s[{sW}:{sW+3}], s{sT0} offen", tag=('w', b))
    for b in range(NB): issue(b)
    for b in range(len(batches)):
        X_, s = batches[b]
        A.wait_vm(('w', b))
        if o.get('ea', 1) and b == 0: arm_b(A, False)
        if o.get('ea', 1) and b == 4: arm_c(A)
        if not o.get('nt'): G1.team_touch(A, b + 6 + o.get('td', 0))
        if b == 0 and not o.get('nt'):
            for j in range(o.get('td', 0)): G1.team_touch(A, 6 + j)
        if b + NB < len(batches): issue(b + NB)
        for t in range(2):
            f = (X_, s, t)
            dst = place[f][1] if place[f][0] == 'v' else 96 + 8*t
            for q in range(8):
                A(f"v_perm_b32 v{dst+q}, v{32+16*(b%4)+2*q+1}, v{32+16*(b%4)+2*q}, s{sPHi if t else sPLo}")
            put_frag(A, f, dst)
    if not o.get('nt'):
        for j in range(30 + o.get('td', 0), 32): G1.team_touch(A, j)
    srd(A, sW, 40, 4194304)
    A(f"s_lshl_b32 s{sT1}, s{sR}, 17")
    A(f"s_lshl_b32 s{sT2}, s{sWv}, 8")
    A(f"s_add_u32 s{sT1}, s{sT1}, s{sT2}")
    for k in range(2):
        for ib in range(16):
            e = 64*k + 32*(ib>>3) + 8*((ib>>1)&1) + 2*((ib>>2)&1) + (ib&1)
            A(f"s_add_u32 s{sT0}, s{sT1}, {e*1024}")
            A(f"buffer_load_dwordx4 {vr(32+4*ib,4)}, v28, s[{sW}:{sW+3}], s{sT0} offen")
        A.wait_vm()
        for t in range(8):
            f = ('o', k, t)
            dst = place[f][1] if place[f][0] == 'v' else 96 + 8*(t&1)
            for q in range(8):
                A(f"v_perm_b32 v{dst+q}, v{32+4*(2*q+1)+(t>>1)}, v{32+4*(2*q)+(t>>1)}, s{sPHi if t&1 else sPLo}")
            put_frag(A, f, dst)
        A.wait_lds()

def team_weights_dma(A, o):
    order = [('v', s) for s in range(8)] + [('k', s) for s in range(2, 8)] + [('q', 2), ('q', 3), ('q', 0), ('q', 1), ('k', 0), ('k', 1), ('q', 6), ('q', 7), ('q', 4), ('q', 5)]
    vD, vRd, vTc, sLb = 27, 26, 25, sT2
    bits(A, vD, [(21, 2, 2, 17), (21, 4, 2, 13), (21, 0, 2, 4)], 24)
    bits(A, vTc, [(21, 2, 4, 10), (21, 0, 2, 6)], 24)
    A(f"s_lshl_b32 s{sLb}, s{sWv}, 15\ns_add_u32 s{sLb}, s{sLb}, {L_W}")
    A(f"v_lshrrev_b32 v{vRd}, 2, v{vL16}\nv_add_u32 v{vRd}, s{sLb}, v{vRd}")
    def issue(n):
        X_, s = order[n]
        if n == 0 or order[n-1][0] != X_: srd(A, sW, {'q': 16, 'k': 24, 'v': 32}[X_], 4194304)
        for h in range(4):
            d = 64*(h>>1) + 8*(h&1) + 4*(s&1)
            A(f"s_add_u32 m0, s{sLb}, {(n%8)*4096 + h*1024}")
            A(f"s_add_u32 s{sT0}, s{sRow+(s>>1)}, {d*8192}")
            A(f"buffer_load_dwordx4 v{vD}, s[{sW}:{sW+3}], s{sT0} offen lds", tag=('w', n))
    def rd(n):
        A.wait_vm(('w', n))
        for j in range(8): A(f"ds_read2st64_b32 {vr(32+16*(n&1)+2*j,2)}, v{vRd} offset0:{(n%8)*16+2*j} offset1:{(n%8)*16+2*j+1}", tag=('r', n))
    def wo(k):
        for ib in range(16):
            e = 64*k + 32*(ib>>3) + 8*((ib>>1)&1) + 2*((ib>>2)&1) + (ib&1)
            A(f"s_add_u32 s{sT0}, s{sT1}, {e*1024}")
            A(f"buffer_load_dwordx4 {vr(64+4*ib,4)}, v28, s[{sW}:{sW+3}], s{sT0} offen", tag=('o', k))
    A.lds = []
    for n in range(8): issue(n)
    rd(0)
    arm_b(A, False)
    for n in range(24):
        X_, s = order[n]
        if n + 1 < 24: rd(n + 1)
        A.wait_lds(('r', n))
        if n + 8 < 24: issue(n + 8)
        if n == 15:
            srd(A, sW, 40, 4194304)
            A(f"s_lshl_b32 s{sT1}, s{sR}, 17\ns_lshl_b32 s{sT0}, s{sWv}, 8\ns_add_u32 s{sT1}, s{sT1}, s{sT0}")
            wo(0)
            for j in range(4):
                A(f"s_add_u32 s{sT0}, s{sT1}, {(64+16*j)*1024}")
                A(f"buffer_load_dword v{vDum}, v{vTc}, s[{sW}:{sW+3}], s{sT0} offen")
        if n == 9: arm_c(A)
        for t in range(2):
            f = (X_, s, t)
            dst = place[f][1] if place[f][0] == 'v' else 168 + 8*t
            for q in range(8):
                A(f"v_perm_b32 v{dst+q}, v{32+16*(n&1)+2*q+1}, v{32+16*(n&1)+2*q}, s{sPHi if t else sPLo}")
            put_frag(A, f, dst)
    for k in range(2):
        if k: wo(1)
        A.wait_vm(('o', k))
        A.wait_lds()
        for t in range(8):
            f = ('o', k, t)
            dst = place[f][1] if place[f][0] == 'v' else 32 + 8*(t&1)
            for q in range(8):
                A(f"v_perm_b32 v{dst+q}, v{64+4*(2*q+1)+(t>>1)}, v{64+4*(2*q)+(t>>1)}, s{sPHi if t&1 else sPLo}")
            put_frag(A, f, dst)
    A.wait_vm()
    A.wait_lds()

def team_weights_dma2(A, o):
    units = [(X_, par, hf) for X_ in 'qkv' for par in range(2) for hf in range(2)]
    NU = len(units)
    vD, vTc, vRd, sLb, sB = 27, 26, 22, sT2, sT3
    park = {f: 168 + 8*i for i, (f, _) in enumerate(GH + GM)}
    A("v_bfe_u32 v16, v21, 4, 2\nv_lshl_add_u32 v17, v16, 2, v21\nv_and_b32 v17, 15, v17\nv_lshlrev_b32 v17, 4, v17")
    A(f"v_lshl_add_u32 v{vD}, v16, 17, v17")
    bits(A, vTc, [(21, 2, 4, 10), (21, 0, 2, 6)], 20)
    A(f"s_lshl_b32 s{sLb}, s{sWv}, 15\ns_add_u32 s{sLb}, s{sLb}, {L_W}")
    A(f"s_lshl_b32 s{sB}, s{sWv}, 6\ns_sub_u32 s{sB}, s{sRow}, s{sB}")
    A(f"v_sub_u32 v17, s{sWv}, v16\nv_and_b32 v17, 3, v17\nv_lshlrev_b32 v17, 6, v17\nv_lshl_add_u32 v17, v16, 8, v17")
    bits(A, vRd, [(21, 0, 4, 2), (21, 6, 2, 15)], 20, "v17")
    for a in (3, 2, 1, 0): A(f"v_xor_b32 v{vRd+a}, {a << 15}, v{vRd}\nv_add_u32 v{vRd+a}, {L_W}, v{vRd+a}")
    def issue(u):
        X_, par, hf = units[u]
        if u % 4 == 0: srd(A, sW, {'q': 16, 'k': 24, 'v': 32}[X_], 4194304)
        for i in range(8):
            d = 64*hf + 8*(i>>2) + 4*par + (i&3)
            A(f"s_add_u32 m0, s{sLb}, {(u%4)*8192 + i*1024}")
            A(f"s_add_u32 s{sT0}, s{sB}, {d*8192}")
            A(f"buffer_load_dwordx4 v{vD}, s[{sW}:{sW+3}], s{sT0} offen lds", tag=('w', u))
    def wo(k):
        for ib in range(16):
            e = 64*k + 32*(ib>>3) + 8*((ib>>1)&1) + 2*((ib>>2)&1) + (ib&1)
            A(f"s_add_u32 s{sT0}, s{sT1}, {e*1024}")
            A(f"buffer_load_dwordx4 {vr(64+4*ib,4)}, v28, s[{sW}:{sW+3}], s{sT0} offen", tag=('o', k))
    A.lds = []
    NI = o.get('ni', 4)
    for u in range(NI): issue(u)
    for u in range(NU):
        X_, par, hf = units[u]
        A.wait_vm(('w', u))
        if u == 0: arm_b(A, False)
        if u == 5: arm_c(A)
        else: A("s_barrier")
        for a in range(4):
            for j in range(4): A(f"ds_read2st64_b32 {vr(32+8*a+2*j,2)}, v{vRd+a} offset0:{(u%4)*32+8*j} offset1:{(u%4)*32+8*j+4}", tag=('r', a))
        if 1 <= u and u + NI - 1 < NU: issue(u + NI - 1)
        if u + NI - 1 == NU - 1 + o.get('wd', 0):
            srd(A, sW, 40, 4194304)
            A(f"s_lshl_b32 s{sT1}, s{sR}, 17\ns_lshl_b32 s{sT0}, s{sWv}, 8\ns_add_u32 s{sT1}, s{sT1}, s{sT0}")
            wo(0)
            for j in range(4):
                A(f"s_add_u32 s{sT0}, s{sT1}, {(64+16*j)*1024}")
                A(f"buffer_load_dword v{vDum}, v{vTc}, s[{sW}:{sW+3}], s{sT0} offen")
        for a in range(4):
            A.wait_lds(('r', a))
            for t in range(2):
                f = (X_, 2*a + par, t)
                p = place[f]
                dst = 16 if p[0] == 'a' else (park[f] if p[0] == 'l' else p[1]) + 4*hf
                for q in range(4): A(f"v_perm_b32 v{dst+q}, v{32+8*a+2*q+1}, v{32+8*a+2*q}, s{sPHi if t else sPLo}")
                if p[0] == 'a':
                    for q in range(4): A(f"v_accvgpr_write_b32 a{p[1]+4*hf+q}, v{16+q}")
    A("s_barrier")
    for f in park: put_frag(A, f, park[f])
    for k in range(2):
        if k: wo(1)
        A.wait_vm(('o', k))
        A.wait_lds()
        for t in range(8):
            f = ('o', k, t)
            dst = place[f][1] if place[f][0] == 'v' else 32 + 8*(t&1)
            for q in range(8):
                A(f"v_perm_b32 v{dst+q}, v{64+4*(2*q+1)+(t>>1)}, v{64+4*(2*q)+(t>>1)}, s{sPHi if t&1 else sPLo}")
            put_frag(A, f, dst)
    A.wait_vm()
    A.wait_lds()

def nops(A, n):
    while n > 0:
        k = min(n, 8); A(f"s_nop {k-1}"); n -= k

def flagload(k):
    ws = f"s[{sWS}:{sWS+3}]"
    return (f"s_lshl_b32 s{sT0}, s{sS}, 2\ns_add_u32 s{sT0}, s{sT0}, s{sFKT}\ns_sub_u32 s{sT0}, s{sT0}, s{sPF}\ns_add_u32 s{sT0}, s{sT0}, {4*k}\n"
            f"v_mov_b32 v{PM}, v{vPf}\ns_mov_b32 exec_lo, 0\nv_lshrrev_b32 v{PM}, 2, v{vL16}\nv_add_u32 v{PM}, s{sT0}, v{PM}\n" + ("s_mov_b32 exec_lo, -1\n" if k == 2 else "") +
            f"buffer_load_dword v{vDum}, v{PM}, {ws}, s{sPF} offen sc1\ns_mov_b32 exec_lo, -1\n")
FLCMP = f"v_cmp_eq_u32 s[{sSnap}:{sSnap+1}], s{sAll}, v{vDum}\ns_nop 4\n"
FLFIN = f"s_bitset1_b64 s[{sSnap}:{sSnap+1}], 63\ns_andn2_b64 s[{sKM_}:{sKM_+1}], s[{sSnap}:{sSnap+1}], s[{sSch}:{sSch+1}]\ns_mov_b32 s{sPend}, 0\n"

MF = "v_mfma_f32_16x16x32_bf16"
DPP8 = "row_ror:8 row_mask:0xf bank_mask:"


DPP4 = "row_ror:4 row_mask:0xf bank_mask:0xf"

def poll(A, OOL, name, dst, soff, tmp, depth, gap, fill, use, redo=""):
    ws = f"s[{sWS}:{sWS+3}]"
    def issue():
        for n in range(2): A(f"buffer_load_dwordx4 {vr(dst+4*n,4)}, v{vL16}, {ws}, s{soff} offen offset:{n*1024} sc1")
    for i in range(depth - 1):
        issue()
        k = gap
        while fill and k > 0: fill.pop(0)(); k -= 1
        nops(A, k)
    issue()
    while fill: fill.pop(0)()
    A(f"{name}:")
    w = 2 * (depth - 1)
    A(f"s_waitcnt vmcnt({w+1})")
    if depth == 1: use(0)
    A(f"v_max3_u32 v{tmp}, v{dst}, v{dst+1}, v{dst+2}")
    A(f"v_max_u32 v{tmp}, v{tmp}, v{dst+3}")
    if depth > 1: use(0)
    A(f"s_waitcnt vmcnt({w})")
    if depth == 1: use(1)
    A(f"v_max3_u32 v{tmp}, v{tmp}, v{dst+4}, v{dst+5}")
    A(f"v_max3_u32 v{tmp}, v{tmp}, v{dst+6}, v{dst+7}")
    if depth > 1: use(1)
    A(f"v_cmp_eq_u32 vcc, -1, v{tmp}")
    A(f"s_cbranch_vccnz {name}_re")
    ld = "\n".join(f"buffer_load_dwordx4 {vr(dst+4*n,4)}, v{vL16}, {ws}, s{soff} offen offset:{n*1024} sc1" for n in range(2))
    OOL.append(f"{name}_re:\n{ld}\n{redo}\n" + retry(f"{name}_re2", name, f"{name}_ok"))
    A(f"{name}_ok:")
    A.vm = ['poll'] * w

def team_step(A, o, OOL):
    o.setdefault('pf', 0); o.setdefault('dp1', 2); o.setdefault('d1', 56); o.setdefault('d2', 32); o.setdefault('arm', 2)
    ws = f"s[{sWS}:{sWS+3}]"
    def ST(i):
        if o.get('prof') and (o.get('pm', 0xfff) >> i) & 1: A(f"s_memtime s[{76+2*i}:{77+2*i}]")
    nv0 = o.get('nv0', 4)
    spec = o.get('spec', 1)
    order = OWN[:8+nv0] + QO + KO
    A("L_t_pre:")
    A.vm = []; A.lds = []
    def use_ring(n):
        if n == 0: A("s_waitcnt lgkmcnt(0)")
        A(f"ds_write_b128 v{vXP0}, {vr(P+4*n,4)} offset:{n*1024}", tag='xw')
        if spec and n == 0: smf(A, order[0])
        if spec and n == 1: smf(A, order[1])
    redo = "s_nop 7\ns_nop 7\n" + "\n".join(f"v_mov_b64 {vr(QA+i,2)}, 0" for i in range(0, 8, 2)) if spec else ""
    poll(A, OOL, "L_t_ring", P, sRingR, PM, o.get('dp2', 1), o.get('g2', 24), [], use_ring, redo)
    if o.get('prof'): A("s_mov_b64 s[98:99], s[76:77]\ns_mov_b64 s[96:97], s[90:91]")
    ST(0)
    side = {}
    def at(pos, fn): side.setdefault(pos, []).append(fn if callable(fn) else (lambda: A(fn)))
    def run(order, skip=0):
        for pos, f in enumerate(order):
            if pos >= skip: smf(A, f)
            for fn in side.get(pos, []): fn()
        assert max(side) < len(order)
        side.clear()
    b1 = o.get('b1', 3)
    pk = o.get('pk', 1)
    if o.get('arm', 0) > 1: at(pk, f"buffer_store_dword v{VT}, v{vPub}, {ws}, s{sRingW} offen")
    at(pk, lambda: A(f"buffer_load_dwordx4 {vr(KT,4)}, v{vKTg}, {ws}, s{sKT} offen sc1", tag='kt'))
    at(pk, lambda: A(f"buffer_load_dwordx4 {vr(KT+4,4)}, v{vKTg}, {ws}, s{sKT1} offen sc1", tag='kt'))
    at(pk+1, lambda: A(f"buffer_load_dwordx4 {vr(VT,4)}, v{vL16}, {ws}, s{sVT} offen offset:2048 sc1", tag='vt'))
    at(pk+1, lambda: A(f"buffer_load_dwordx4 {vr(VT+4,4)}, v{vL16}, {ws}, s{sVT} offen offset:3072 sc1", tag='vt'))
    def flagchk():
        A("L_t_fl:")
        A(f"s_bitcmp1_b64 s[{sKM_}:{sKM_+1}], s{sS}")
        A("s_cbranch_scc0 L_t_fl_re")
        OOL.append(f"L_t_fl_re:\ns_cmp_eq_u32 s{sPend}, 0\ns_cbranch_scc1 L_t_fl_np\nL_t_fl_c:\n" + FLCMP +
                   f"s_lshr_b64 s[{sSnap}:{sSnap+1}], s[{sSnap}:{sSnap+1}], 32\ns_lshl_b64 s[{sSnap}:{sSnap+1}], s[{sSnap}:{sSnap+1}], s{sS}\n" + FLFIN +
                   f"L_t_fl_np:\ns_bitcmp1_b64 s[{sSnap}:{sSnap+1}], s{sS}\ns_cbranch_scc0 L_t_fl_sync\n"
                   f"s_bitcmp1_b64 s[{sSch}:{sSch+1}], s{sS}\ns_cbranch_scc0 L_t_fl_ok\n" + flagload(2) +
                   f"s_mov_b32 s{sPend}, 1\ns_add_u32 s{sT0}, s{sS}, 1\ns_bitset0_b64 s[{sKM_}:{sKM_+1}], s{sT0}\ns_branch L_t_fl_ok2\n"
                   "L_t_fl_sync:\n" + flagload(1) + "s_waitcnt vmcnt(0)\n" + retry("L_t_fl_re2", "L_t_fl_c", "L_t_fl_ok"))
        A("L_t_fl_ok:")
        A(f"buffer_load_dword v{vDum}, v{vPf}, {ws}, s{sPF} offen sc1")
        A("L_t_fl_ok2:")
    if 'pf' not in o: at(pk+2, flagchk)
    def bar1():
        A.wait_lds('xw'); A("s_barrier"); ST(1)
    at(b1, bar1)
    xr = o.get('xr', 2)
    for s in range(2, 8):
        at(b1 + (s-2)//xr, lambda s=s: A(f"ds_read_b128 {vr(P+4*s,4)}, v{vXP0+(s>>1)} offset:{(s&1)*1024}", tag=('xp', s)))
    if 'pf' in o: at(b1 + o['pf'], flagchk)
    p = b1 + 6//xr
    if not o.get('nokm'): at(p, f"buffer_store_dwordx4 {vr(KV4,4)}, v{vL16}, {ws}, s{sKM} offen sc1\ns_add_u32 s{sKM}, s{sKM}, {SLOT}")
    p = max(p + 1, 7)
    for i, (f, h) in enumerate(halves(GM)): at(p + i, lambda f=f, h=h: lds_half(A, f, h))
    assert b1 + o['pf'] < p + 2
    at(p+2, f"s_add_u32 s{sPF}, s{sPF}, {SLOT}\ns_xor_b32 s{sRingR}, s{sRingR}, 8192")
    if not o.get('nopf'):
        at(p+3, f"s_add_u32 s{sKT}, s{sKT}, {SLOT}\ns_add_u32 s{sKT1}, s{sKT1}, {SLOT}")
        at(p+4, f"s_add_u32 s{sVT}, s{sVT}, {SLOT}")
    qe = 8 + nv0 + 12
    qf = qe + o.get('qf', 1)
    at(qf, f"v_add_f32 v{QA}, v{QA}, v{QA+2}\nv_add_f32 v{QA+1}, v{QA+1}, v{QA+3}\nv_add_f32 v{QA+4}, v{QA+4}, v{QA+6}")
    at(qf+1, f"v_add_f32 v{QA+5}, v{QA+5}, v{QA+7}")
    at(qf+1, f"v_cvt_pk_bf16_f32 v{QA+2}, v{QA}, v{QA+4}\nv_cvt_pk_bf16_f32 v{QA+3}, v{QA+1}, v{QA+5}")
    at(qf+1, lambda: A(f"ds_write2_b32 v{vQw}, v{QA+2}, v{QA+3} offset0:0 offset1:4", tag='qw'))
    def barq():
        A.wait_lds('qw'); A("s_barrier")
        for n in range(2): A(f"ds_read_b128 {vr(QA+4*n,4)}, v{vL16} offset:{L_Q+n*1024}", tag=('q2', n))
    bq = qf + 1 + o.get('bq', 4)
    at(bq, barq)
    go = halves(GO)
    for pos in [qe] + list(range(qf + 2, bq - 1)) + list(range(bq + 1, len(order))):
        if go: at(pos, lambda fh=go.pop(0): lds_half(A, *fh))
    for i, pos in enumerate((o.get('x8', 11), o.get('x9', 23))):
        if not o.get('pa'): at(pos, lambda i=i: ST(8+i))
    run(order, 2 if spec else 0)
    ST(2)
    vq = OWN[8+nv0:] + VO
    def V(n=1):
        for _ in range(n):
            if vq: smf(A, vq.pop(0))
    V(o.get('v0', 0))
    A.wait_vm('kt')
    for n in range(2):
        A.wait_lds(('q2', n))
        A(f"{MF} {vr(PM,4)}, {vr(KT+4*n,4)}, {vr(QA+4*n,4)}, {vr(PM,4) if n else 0}")
    A(f"v_add_f32 v{KA}, v{KA}, v{KA+2}\nv_add_f32 v{KA+1}, v{KA+1}, v{KA+3}")
    A(f"v_add_f32 v{KA+4}, v{KA+4}, v{KA+6}\nv_add_f32 v{KA+5}, v{KA+5}, v{KA+7}")
    A(f"v_cvt_pk_bf16_f32 v{KV4}, v{KA}, v{KA+4}\nv_cvt_pk_bf16_f32 v{KV4+1}, v{KA+1}, v{KA+5}")
    A(f"ds_write2_b32 v{vKw}, v{KV4}, v{KV4+1} offset0:0 offset1:4", tag='kw')
    V(o.get('va', 0))
    def sfin(D):
        A(f"v_add_f32_dpp v{D}, v{D+2}, v{D} {DPP8}0x3")
        A(f"v_add_f32_dpp v{D}, v{D+1}, v{D+3} {DPP8}0xc")
        A(f"v_cvt_pk_bf16_f32 v{D}, 0, v{D}")
        A(f"v_mul_f32 v{D}, s{sScale}, v{D}")
        A(f"v_cvt_pk_bf16_f32 v{D}, 0, v{D}")
    sfin(PM)
    A(f"ds_write_b32 v{vSw}, v{PM} offset:{L_ST}", tag='sw')
    V(o.get('v1', 2))
    A.wait_lds('kw')
    A("s_barrier")
    ST(3)
    for n in range(2): A(f"ds_read_b128 {vr(KA+4*n,4)}, v{vL16} offset:{L_K+n*1024}", tag=('k2', n))
    V(o.get('v2', 1))
    A.wait_lds('sw')
    A("s_barrier")
    X = KT + 4
    A(f"ds_read_b128 {vr(X,4)}, v{vL16} offset:{L_ST}", tag='st')
    A(f"v_mov_b32 v{PM+1}, 0")
    A(f"v_mov_b32 v{PM+2}, 0")
    for i in range(o.get('v3', 3)):
        V(1)
        if go: lds_half(A, *go.pop(0))
    while go: lds_half(A, *go.pop(0))
    for n in range(2):
        A.wait_lds(('k2', n))
        A(f"{MF} {vr(KT,4)}, {vr(KA+4*n,4)}, {vr(QA+4*n,4)}, {vr(KT,4) if n else 0}")
    sm, mx, t1, t2, PT = KT, KA, KT+2, KT+3, QA+4
    V(o.get('v4', 1))
    A.wait_lds('st')
    A(f"v_max3_f32 v{mx}, v{X}, v{X+1}, v{X+2}")
    V(o.get('v5', 1))
    sfin(KT)
    A(f"v_max3_f32 v{mx}, v{mx}, v{X+3}, v{sm}")
    V(1)
    A(f"v_max_f32_dpp v{mx}, v{mx}, v{mx} {DPP8}0xf")
    for sw in ('16', '32'):
        A(f"v_mov_b32 v{t1}, v{mx}")
        V(1)
        A(f"v_permlane{sw}_swap_b32 v{t1}, v{mx}")
        A(f"v_max_f32 v{mx}, v{mx}, v{t1}")
    ST(4)
    A(f"v_mul_f32 v{mx}, s{sL2E}, v{mx}")
    S5 = [X, X+1, X+2, X+3, sm]
    V(1)
    for r in S5: A(f"v_fma_f32 v{r}, v{r}, s{sL2E}, -v{mx}")
    for r in S5:
        V(1)
        A(f"v_exp_f32 v{r}, v{r}")
    V(16)
    A(f"v_cvt_pk_bf16_f32 v{PT}, v{X}, v{X+1}")
    A(f"v_cvt_pk_bf16_f32 v{PT+1}, v{X+2}, v{X+3}")
    A(f"v_mov_b32_dpp v{t1}, v{sm} {DPP8}0xf")
    A(f"v_mov_b32_dpp v{PT+2}, v{PT} {DPP8}0xf")
    A(f"v_mov_b32_dpp v{PT+3}, v{PT+1} {DPP8}0xf")
    A(f"v_add_f32 v{VA}, v{VA}, v{VA+2}\nv_add_f32 v{VA+1}, v{VA+1}, v{VA+3}")
    A.wait_vm('vt')
    OA = KA
    A(f"{MF} {vr(OA,4)}, {vr(VT,4)}, {vr(PT,4)}, 0")
    A(f"v_add_f32 v{VA+4}, v{VA+4}, v{VA+6}\nv_add_f32 v{VA+5}, v{VA+5}, v{VA+7}")
    A(f"v_cvt_pk_bf16_f32 v{KV4+2}, v{VA}, v{VA+1}")
    A(f"{MF} {vr(OA+4,4)}, {vr(VT+4,4)}, {vr(PT,4)}, 0")
    A(f"v_cvt_pk_bf16_f32 v{KV4+3}, v{VA+4}, v{VA+5}")
    A(f"v_cvt_pk_bf16_f32 v{PM}, v{sm}, v{t1}")
    A(f"v_cvt_pk_bf16_f32 v{PM+3}, v{sm}, v{t1}")
    A(f"s_cmp_eq_u32 s{sS}, 63")
    A(f"s_cbranch_scc1 L_t_tail")
    A(f"v_add_f32 v{t2}, v{X}, v{X+1}")
    A(f"v_mfma_f32_16x16x16_bf16 {vr(OA,4)}, {vr(KV4+2,2)}, {vr(PM,2)}, {vr(OA,4)}")
    A(f"v_add_f32 v{X+2}, v{X+2}, v{X+3}")
    A(f"v_add_f32 v{t2}, v{t2}, v{sm}")
    A(f"v_mfma_f32_16x16x16_bf16 {vr(OA+4,4)}, {vr(KV4+2,2)}, {vr(PM+2,2)}, {vr(OA+4,4)}")
    A(f"v_add_f32 v{t2}, v{t2}, v{X+2}")
    zq = [P + i for i in range(0, 32, 2)]
    def Z(n=1):
        for _ in range(n):
            if zq: A(f"v_mov_b64 {vr(zq.pop(0),2)}, 0")
    Z(2)
    A(f"v_add_f32_dpp v{t2}, v{t2}, v{t2} {DPP8}0xf")
    for sw in ('16', '32'):
        A(f"v_mov_b32 v{t1}, v{t2}")
        Z(2)
        A(f"v_permlane{sw}_swap_b32 v{t1}, v{t2}")
        A(f"v_add_f32 v{t2}, v{t2}, v{t1}")
    A(f"v_rcp_f32 v{t1}, v{t2}")
    Z(1)
    for i in range(0, 8, 2):
        A(f"v_pk_mul_f32 {vr(OA+i,2)}, {vr(OA+i,2)}, {vr(t1,2)} op_sel_hi:[1,0]")
    for r in range(4): A(f"v_cvt_pk_bf16_f32 v{QA+r}, v{OA+r}, v{OA+4+r}")
    A(f"ds_write_b128 v{vXOw}, {vr(QA,4)} offset:{L_O}", tag='ow')
    arm = o.get('arm', 0)
    if arm: zero64(A, KT, 4, '-1')
    Z(6 - 2*bool(arm))
    A.wait_lds()
    ST(5)
    if o.get('pa'):
        A("s_waitcnt vmcnt(1)"); ST(8); A("s_waitcnt vmcnt(0)"); ST(9)
    A("s_barrier")
    for n in range(2): A(f"ds_read_b128 {vr(KA+4*n,4)}, v{vL16} offset:{L_O+n*1024}", tag=('o', n))
    for fh in halves(GV): lds_half(A, *fh)
    A(f"ds_read_b128 {vr(VA,4)}, v{vL16} offset:{L_SEL}", tag='sel')
    Z(16)
    if arm:
        A(f"s_xor_b32 s{sT0}, s{sInR}, {PARX}")
        for n in range(2): A(f"buffer_store_dwordx4 {vr(KT,4)}, v{vL16}, {ws}, s{sT0} offen offset:{n*1024}")
    A(f"s_add_u32 s{sS}, s{sS}, 1")
    def fin(t):
        d = P + 4*t
        return [f"v_add_f32 v{d}, v{d}, v{d+2}", f"v_add_f32 v{d+1}, v{d+1}, v{d+3}", f"v_cvt_pk_bf16_f32 v{QA+t}, v{d}, v{d+1}"]
    def st(u): return f"buffer_store_dwordx4 {vr(QA+4*u,4)}, v{vInW}, {ws}, s{sInW+u} offen"
    for u in range(3):
        l = fin(2*u) + fin(2*u+1)
        for i, pos in enumerate((5, 6, 6, 7, 8, 8) if u < 2 else (5, 5, 6, 6, 7, 7)): at(4*u + pos, l[i])
    at(o.get('s0', 12), st(0))
    gh = halves(GH[3:]) + halves(GH[:3])
    for pos in range(4, 4 + o.get('ghw', 0)): at(pos, lambda fh=gh.pop(0): lds_half(A, *fh))
    run(O_ORDER)
    for x in fin(6) + fin(7): A(x)
    A(st(1))
    ST(6)
    fill = [lambda: A(f"s_xor_b32 s{sInW}, s{sInW}, {PARX}"), lambda: A(f"s_xor_b32 s{sInW+1}, s{sInW+1}, {PARX}")]
    zz = [(lambda r=r: A(f"v_mov_b64 {vr(r,2)}, 0")) for r in range(KA+6, QA-1, -2)] + \
         [(lambda r=r: A(f"v_mov_b64 {vr(r,2)}, -1")) for r in (VT, VT+2)[:1 if arm else 2]]
    gl = [(lambda fh=fh: lds_half(A, *fh)) for fh in gh]
    g1n = min(o.get('gh1', 14), len(gl))
    while zz or g1n:
        if g1n: fill.append(gl.pop(0)); g1n -= 1
        if zz: fill.append(zz.pop(0))
    k = o.get('d1', 24)
    while fill and k > 0: fill.pop(0)(); k -= 1
    nops(A, k)
    A.wait_lds('sel')
    def use_in(n):
        A(f"{MF} {vr(PM,4)}, {vr(VA,4)}, {vr(KT+4*n,4)}, {vr(PM,4) if n else 0}")
    poll(A, OOL, "L_t_in", KT, sInR, VA+4, o.get('dp1', 1), o.get('g1', 24), fill, use_in)
    for e in range(2): A(f"v_add_f32_dpp v{PM+e}, v{PM+e}, v{PM+e} {DPP8}0xf")
    for e in range(2): A(f"v_add_f32_dpp v{PM+e}, v{PM+e}, v{PM+e} {DPP4}")
    A(f"v_cvt_pk_bf16_f32 v{PM+2}, v{PM}, v{PM+1}")
    A(f"buffer_store_dword v{PM+2}, v{vPub}, {ws}, s{sRingW} offen")
    ST(7)
    if arm < 2: A(f"buffer_store_dword v{VT}, v{vPub}, {ws}, s{sRingA} offen")
    for n in range(0 if arm else 2): A(f"buffer_store_dwordx4 {vr(VT,4)}, v{vL16}, {ws}, s{sInR} offen offset:{n*1024}")
    A(f"s_xor_b32 s{sRingW}, s{sRingW}, 8192\ns_xor_b32 s{sRingA}, s{sRingA}, 8192")
    A(f"s_xor_b32 s{sInR}, s{sInR}, {PARX}")
    zero64(A, VA, 8)
    for g in gl: g()
    nops(A, o.get('d2', 0))
    if o.get('time') and 'tw' not in o: A(f"s_cmp_lg_u32 s{sS}, 4\ns_cbranch_scc1 L_t_n4\ns_memtime s[70:71]\nL_t_n4:")
    if o.get('prof'):
        A("s_branch L_t_dump" if o.get('pa') else f"s_cmp_eq_u32 s{sS}, {o.get('ps', 40)}\ns_cbranch_scc1 L_t_dump")
        d = "L_t_dump:\ns_waitcnt lgkmcnt(0)\n"
        d += f"s_lshl_b32 s{sT0}, s{sR}, 8\ns_lshl_b32 s{sT1}, s{sWv}, 6\ns_add_u32 s{sT0}, s{sT0}, s{sT1}\ns_add_u32 s{sT0}, s{sT0}, {PROF}\n"
        if o.get('pa'):
            d += f"s_lshl_b32 s{sT1}, s{sS}, 13\ns_add_u32 s{sT0}, s{sT0}, s{sT1}\ns_add_u32 s{sT0}, s{sT0}, {0x400000-PROF}\n"
            d += "".join(f"v_writelane_b32 v{PM}, s{76+2*i}, {i}\n" for i in range(12))
            d += f"v_lshrrev_b32 v{PM+1}, 2, v{vL16}\ns_mov_b64 exec, 0xfff\nbuffer_store_dword v{PM}, v{PM+1}, {ws}, s{sT0} offen\ns_mov_b64 exec, -1\n"
        for i in range(0 if o.get('pa') else 12):
            d += f"v_mov_b32 v{PM}, s{76+2*i}\nbuffer_store_dword v{PM}, off, {ws}, s{sT0} offset:{4*i}\n"
        d += "s_branch L_t_pre"
        OOL.append(d)
    A("s_branch L_t_pre")

def emit_team(A, o):
    ws = f"s[{sWS}:{sWS+3}]"
    OOL = []
    if o.get('rx'): A(f"s_xor_b32 s{sR}, s{sR}, {o['rx']}")
    team_setup(A, o)
    [team_weights, team_weights_dma, team_weights_dma2][o.get('td2', 2)](A, o)
    if o.get('time') and o.get('tw', 9) == 0: A("s_memtime s[70:71]")
    if o.get('w1', 1): G1.wait_cnt1(A, OOL, "L_t_arm", D_ARM, [32, N_CX], 32, o.get('tdl', 4))
    else: wait_cnt(A, OOL, "L_t_arm", D_ARM, 32)
    if o.get('time') and o.get('tw', 0) == 1: A("s_memtime s[70:71]")
    if not o.get('w1', 1): wait_cnt(A, OOL, "L_t_cx", D_CX, N_CX)
    if o.get('time') and o.get('tw', 0) == 2: A("s_memtime s[70:71]")
    A(f"s_sub_u32 s{sPF}, s{sVT}, {SLOT}")
    A(f"s_mov_b32 s{sS}, 0")
    A("L_t_f0:")
    A(flagload(0) + "s_waitcnt vmcnt(0)\n" + FLCMP)
    A(f"s_bitcmp1_b32 s{sSnap+1}, 0")
    A("s_cbranch_scc0 L_t_f0_re")
    OOL.append(retry("L_t_f0_re", "L_t_f0", "L_t_f0_ok"))
    A("L_t_f0_ok:")
    A(f"s_lshr_b64 s[{sSnap}:{sSnap+1}], s[{sSnap}:{sSnap+1}], 33\n" + FLFIN)
    A(f"s_add_u32 s{sPF}, s{sVT}, {SLOT}")
    A(f"buffer_load_dword v{vDum}, v{vPf}, {ws}, s{sVT} offen sc1")
    A(f"s_mov_b32 s{sS}, 0")
    zero64(A, KV4, 4)
    zero64(A, QA, 24)
    zero64(A, VT, 2, '-1')
    A.lds = []
    for fh in halves(GH): lds_half(A, *fh)
    if o.get('time'): A("s_memtime s[72:73]")
    if o.get('al', -1) >= 0:
        A(".p2align 6")
        for _ in range(o['al']): A("s_nop 0")
    team_step(A, o, OOL)
    A("L_t_tail:")
    A(f"buffer_store_dwordx4 {vr(KV4,4)}, v{vL16}, {ws}, s{sKM} offen sc1")
    A("s_waitcnt vmcnt(0) lgkmcnt(0)")
    if o.get('time'):
        A("s_memtime s[74:75]")
        A("s_waitcnt lgkmcnt(0)")
        A(f"s_or_b32 s{sT0}, s{sR}, s{sWv}\ns_cbranch_scc1 L_t_end")
        A("s_mov_b64 exec, 1")
        A("s_sub_u32 s70, s70, s68\ns_sub_u32 s72, s72, s68\ns_sub_u32 s74, s74, s68")
        A(f"v_mov_b32 v32, s70\nv_mov_b32 v33, s72\nv_mov_b32 v34, s74\nv_mov_b32 v35, s{sSpin}\nv_mov_b32 v31, 96")
        A("global_store_dwordx4 v31, v[32:35], s[4:5]")
        A("v_mov_b32 v32, s68\nglobal_store_dword v31, v32, s[4:5] offset:16")
        A("L_t_end:")
    A("s_endpgm")
    for t in OOL: A(t)
```

```python
from asmlib import *
from layout import *
import gen_team as GT
import gen_team2 as GT2
import gen_team3 as GT3
from gen_team import (sWS, sW, sXCC, sR, sWv, sT0, sT1, sT2, sT3, sPLo, sPHi, sScale, sL2E, sSpin, srd, retry, wait_cnt, wait_cnt1, f2u)
NAME = 'parallel_sum__memory_aug_recurrent_mem_tr__dense_activation_relu__prompt_kernel'
ws = f"s[{sWS}:{sWS+3}]"
MF = "v_mfma_f32_16x16x32_bf16"
vL16, vG, vC, vL, vA0, vA1, vA2, vA3 = 1, 2, 3, 4, 5, 6, 7, 8

def lanes(A):
    A(f"v_and_b32 v{vL}, 63, v0")
    A(f"v_lshrrev_b32 v{vG}, 4, v{vL}")
    A(f"v_and_b32 v{vC}, 15, v{vL}")
    A(f"v_lshlrev_b32 v{vL16}, 4, v{vL}")

def load_w(A, jobs, voff, width, stage, tmp, NB=7):
    nb = NB + 1
    op = {1: 'buffer_load_dword', 2: 'buffer_load_dwordx2'}[width]
    def issue(b):
        pre, rows, dest = jobs[b]
        if pre: pre()
        last = None
        for i, (sr, cst) in enumerate(rows):
            if last is None or not (0 <= cst - last < 4096):
                A(f"s_add_u32 s{sT0}, s{sr}, {cst}"); last = cst
            off = f" offset:{cst-last}" if cst != last else ""
            A(f"{op} {vr(stage+(b%nb)*8*width+i*width, width)}, v{voff}, s[{sW}:{sW+3}], s{sT0} offen{off}", tag=('w', b))
    for b in range(min(NB, len(jobs))): issue(b)
    for b in range(len(jobs)):
        A.wait_vm(('w', b))
        if b + NB < len(jobs): issue(b + NB)
        base = stage + (b % nb)*8*width
        for t in range(2*width):
            kind, idx = jobs[b][2](t)
            d = idx if kind == 'v' else tmp + 4*(t & 1)
            for q in range(4):
                A(f"v_perm_b32 v{d+q}, v{base+(2*q+1)*width+(t>>1)}, v{base+2*q*width+(t>>1)}, s{sPHi if t&1 else sPLo}")
            if kind == 'a':
                for q in range(4): A(f"v_accvgpr_write_b32 a{idx+q}, v{d+q}")

def load_w_dma(A, jobs, gsh, rsh, stage, tmp, sLb, vD, vRd, NB=16):
    A(f"v_bfe_u32 v{vD}, v{vL}, 2, 2\nv_lshlrev_b32 v{vD}, {gsh}, v{vD}\nv_lshl_add_u32 v{vD}, v{vG}, {rsh}, v{vD}")
    A(f"v_and_b32 v{vRd}, 3, v{vL}\nv_lshl_add_u32 v{vD}, v{vRd}, 4, v{vD}")
    A(f"s_mul_i32 s{sLb}, s{sWv}, {NB*2048}")
    A(f"v_lshlrev_b32 v{vRd}, 2, v{vL}\nv_add_u32 v{vRd}, s{sLb}, v{vRd}")
    def issue(b):
        pre, rows, _ = jobs[b]
        if pre: pre()
        for h in range(2):
            A(f"s_add_u32 m0, s{sLb}, {(b%NB)*2048 + h*1024}")
            A(f"s_add_u32 s{sT0}, s{rows[4*h][0]}, {rows[4*h][1]}")
            A(f"buffer_load_dwordx4 v{vD}, s[{sW}:{sW+3}], s{sT0} offen lds", tag=('w', b))
    def rd(b):
        A.wait_vm(('w', b))
        for j in range(4): A(f"ds_read2st64_b32 {vr(stage+8*(b&1)+2*j,2)}, v{vRd} offset0:{(b%NB)*8+2*j} offset1:{(b%NB)*8+2*j+1}", tag=('r', b))
    A.lds = []
    for b in range(min(NB, len(jobs))): issue(b)
    rd(0)
    for b in range(len(jobs)):
        if b + 1 < len(jobs): rd(b + 1)
        A.wait_lds(('r', b))
        if b + NB < len(jobs): issue(b + NB)
        base = stage + 8*(b & 1)
        for t in range(2):
            kind, idx = jobs[b][2](t)
            d = idx if kind == 'v' else tmp + 4*t
            for q in range(4):
                A(f"v_perm_b32 v{d+q}, v{base+2*q+1}, v{base+2*q}, s{sPHi if t else sPLo}")
            if kind == 'a':
                for q in range(4): A(f"v_accvgpr_write_b32 a{idx+q}, v{d+q}")

def cnt_add(A, off, name, va=30):
    A(f"v_mov_b32 v{va}, 1\nv_mov_b32 v{va+1}, {off}")
    A("s_mov_b64 exec, 1")
    A(f"global_atomic_add v{va+1}, v{va}, s[4:5] sc1")
    A("s_mov_b64 exec, -1")

def red_g(A, op, v, t):
    for sw in ('16', '32'):
        A(f"v_mov_b32 v{t}, v{v}")
        A(f"v_permlane{sw}_swap_b32 v{t}, v{v}")
        A(f"{op} v{v}, v{v}, v{t}")

def rnd(A, d, s=None): A(f"v_cvt_pk_bf16_f32 v{d}, 0, v{d if s is None else s}")

def two_pass(A, body):
    q = list(A.vm)
    for _ in range(4):
        B = Asm(); B.vm = list(q); body(B); q = list(B.vm)
    A.vm = list(q); body(A)
    assert A.vm == q, (A.vm, q)

def stamp(A, o, i):
    if o.get('time'): A(f"s_memtime s[{70+2*i}:{71+2*i}]")

def dump_stamps(A, o, n, extra=()):
    if not o.get('time'): return
    A("s_waitcnt lgkmcnt(0)")
    A(f"s_lshl_b32 s{sT0}, s{sXCC}, 5\ns_add_u32 s{sT0}, s{sT0}, s{sR}\ns_lshl_b32 s{sT0}, s{sT0}, 2\ns_add_u32 s{sT0}, s{sT0}, s{sWv}\ns_lshl_b32 s{sT0}, s{sT0}, 6\ns_add_u32 s{sT0}, s{sT0}, {PROF+0x10000}")
    for i, r in enumerate([70+2*i for i in range(n)] + list(extra)):
        A(f"s_sub_u32 s{r}, s{r}, s68")
        A(f"v_mov_b32 v{16+i}, s{r}")
        A(f"buffer_store_dword v{16+i}, off, {ws}, s{sT0} offset:{4*i}")
    A(f"v_mov_b32 v15, s{sSpin}\nv_mov_b32 v14, s68")
    A(f"buffer_store_dwordx2 v[14:15], off, {ws}, s{sT0} offset:56")

HS = [8, 16, 17, 18, 24, 31]
def emit_head(A, o):
    OOL = []
    sH, sRep, sXo, sQo, sKo, sMo, sFo, sFp, sI, sWb, sOo, sFOo = 20, 21, 22, 23, 24, 25, 26, 27, 28, 29, 30, 31
    XB, AC, OQ, OK_, OV, NEG, ONE, WV = 16, 80, 104, 108, 112, 120, 124, 128
    lanes(A)
    A(f"s_sub_u32 s{sH}, s{sXCC}, 1\ns_lshl_b32 s{sH}, s{sH}, 3\ns_and_b32 s{sT0}, s{sR}, 7\ns_add_u32 s{sH}, s{sH}, s{sT0}")
    A(f"s_lshr_b32 s{sRep}, s{sR}, 3")
    A(f"s_lshl_b32 s{sWb}, s{sH}, 8\ns_lshl_b32 s{sT0}, s{sWv}, 6\ns_add_u32 s{sWb}, s{sWb}, s{sT0}")
    A(f"v_lshlrev_b32 v{vA0}, 16, v{vG}\nv_lshl_add_u32 v{vA0}, v{vC}, 2, v{vA0}")
    jobs = []
    for xi, X_ in enumerate('qkv'):
        for k in range(16):
            pre = (lambda xi=xi: srd(A, sW, 16+8*xi, 4194304)) if k == 0 else None
            dest = (lambda t, xi=xi, k=k: ('a', 128*xi+8*k+4*t) if xi < 2 else ('v', WV+8*k+4*t))
            jobs.append((pre, [(sWb, (32*k+i)*8192) for i in range(8)], dest))
    A(f"s_lshl_b32 s{sXo}, s{sRep}, 15\ns_add_u32 s{sXo}, s{sXo}, {XF}")
    A(f"s_lshl_b32 s{sT0}, s{sRep}, 5\ns_add_u32 s{sT0}, s{sT0}, s{sH}\ns_lshl_b32 s{sT0}, s{sT0}, 2\ns_add_u32 s{sT0}, s{sT0}, s{sWv}")
    A(f"s_lshl_b32 s{sFp}, s{sT0}, 6\ns_add_u32 s{sFp}, s{sFp}, {F_DUM}")
    def hbase():
        A(f"s_mul_i32 s{sT0}, s{sH}, {HSTR}\ns_mul_i32 s{sT1}, s{sRep}, {SLOT}\ns_add_u32 s{sT0}, s{sT0}, s{sT1}\ns_add_u32 s{sT0}, s{sT0}, {HB+SLOT}")
    hbase()
    A(f"s_lshl_b32 s{sQo}, s{sWv}, 11\ns_add_u32 s{sQo}, s{sQo}, s{sT0}\ns_add_u32 s{sQo}, s{sQo}, 20480")
    A(f"s_lshl_b32 s{sKo}, s{sWv}, 12\ns_add_u32 s{sKo}, s{sKo}, s{sT0}")
    A(f"s_lshl_b32 s{sMo}, s{sWv}, 10\ns_add_u32 s{sMo}, s{sMo}, s{sT0}\ns_add_u32 s{sMo}, s{sMo}, 16384")
    A(f"s_lshl_b32 s{sFo}, s{sH}, 6\ns_add_u32 s{sFo}, s{sFo}, s{sRep}\ns_lshl_b32 s{sFo}, s{sFo}, 2\ns_add_u32 s{sFo}, s{sFo}, s{sWv}\ns_add_u32 s{sFo}, s{sFo}, {F_KT}")
    if o.get('pt'):
        for r_ in (sQo, sKo): A(f"buffer_load_dword v126, v{vL16}, {ws}, s{r_} offen")
    if o.get('ht', 1):
        A(f"v_lshrrev_b32 v126, 2, v{vL}\nv_lshlrev_b32 v126, 13, v126\nv_and_b32 v127, 3, v{vL}\nv_lshl_add_u32 v126, v127, 6, v126")
        A(f"s_lshl_b32 s{sT1}, s{sRep}, 2\ns_add_u32 s{sT1}, s{sT1}, s{sWv}\ns_lshl_b32 s{sT1}, s{sT1}, 18\ns_lshl_b32 s{sT2}, s{sH}, 8\ns_add_u32 s{sT1}, s{sT1}, s{sT2}\ns_add_u32 s{sT2}, s{sT1}, {16*8192}")
        for xi in range(3):
            srd(A, sW, 16+8*xi, 4194304)
            for r_ in (sT1, sT2): A(f"buffer_load_dword v127, v126, s[{sW}:{sW+3}], s{r_} offen")
    if o.get('hd2', 1): load_w_dma(A, jobs, 16, 13, XB, AC, sI, 124, 125, o.get('hnb', 16))
    else: load_w(A, jobs, vA0, 1, XB, AC)
    stamp(A, o, 0)
    for q in range(4): A(f"v_mov_b32 v{NEG+q}, -1")
    A(f"v_mov_b32 v{ONE}, 1")
    if o.get('w1', 1): wait_cnt1(A, OOL, "L_h_cx", D_CX, [N_CX], 16, o.get('hdl', 16))
    else: wait_cnt(A, OOL, "L_h_cx", D_CX, N_CX, 126)
    stamp(A, o, 1)
    def xload(B, n):
        B(f"buffer_load_dwordx4 {vr(XB+4*(n%16),4)}, v{vL16}, {ws}, s{sXo} offen offset:{(n%4)*1024}", tag=('x', n % 16))
        if n % 4 == 3: B(f"s_add_u32 s{sXo}, s{sXo}, {4096 + (3*32768 if n % 32 == 31 else 0)}")
    for n in range(16): xload(A, n)
    A(f"s_mov_b32 s{sI}, 16")
    A("s_waitcnt vmcnt(0)")
    stamp(A, o, 6)
    A("L_h_p1:")
    def body(B):
        for n in range(32):
            tau, k = n >> 4, n & 15
            x = vr(XB+4*k, 4)
            B.wait_vm(('x', k))
            if o.get('time') and n in HS: B(f"s_cmp_lg_u32 s{sI}, 16\ns_cbranch_scc1 L_h_tx{n}\ns_memtime s[{54+2*HS.index(n)}:{55+2*HS.index(n)}]\nL_h_tx{n}:")
            for xi in range(3):
                for t in range(2):
                    ac = vr(AC+8*xi+4*t, 4); c = ac if k else '0'
                    if xi < 2: B(f"{MF} {ac}, {vr(128*xi+8*k+4*t,4,'a')}, {x}, {c}")
                    else: B(f"{MF} {ac}, {x}, {vr(WV+8*k+4*t,4)}, {c}")
            xload(B, n + 16)
            if n == 1: B(f"buffer_store_dwordx4 {vr(NEG,4)}, v{vL16}, {ws}, s{sMo} offen sc1\ns_add_u32 s{sMo}, s{sMo}, {4*SLOT}", tag='d')
            if n == 0 and o.get('time'): B(f"s_cmp_lg_u32 s{sI}, 15\ns_cbranch_scc1 L_h_ts0\ns_memtime s[78:79]\nL_h_ts0:")
            if n == 17:
                B.wait_vm('dl')
                if o.get('time'): B(f"s_cmp_lg_u32 s{sI}, 15\ns_cbranch_scc1 L_h_ts1\ns_memtime s[80:81]\nL_h_ts1:")
                B("s_mov_b64 exec, 1")
                B(f"buffer_store_byte v{ONE}, off, {ws}, s{sFp} sc1")
                B("s_mov_b64 exec, -1")
                B(f"s_mov_b32 s{sFp}, s{sFo}\ns_add_u32 s{sFo}, s{sFo}, 16")
            if k == 15:
                for i in range(4): B(f"v_cvt_pk_bf16_f32 v{OQ+i}, v{AC+i}, v{AC+4+i}")
                if not o.get('noq'): B(f"buffer_store_dwordx4 {vr(OQ,4)}, v{vL16}, {ws}, s{sQo} offen offset:{tau*1024}")
                for i in range(4): B(f"v_cvt_pk_bf16_f32 v{OK_+i}, v{AC+8+i}, v{AC+12+i}")
                if not o.get('nok'): B(f"buffer_store_dwordx4 {vr(OK_,4)}, v{vL16}, {ws}, s{sKo} offen offset:{tau*1024} sc1")
                for t in range(2):
                    for j in range(2): B(f"v_cvt_pk_bf16_f32 v{OV+4*t+2*tau+j}, v{AC+16+4*t+2*j}, v{AC+16+4*t+2*j+1}")
                if tau:
                    for t in range(2): B(f"buffer_store_dwordx4 {vr(OV+4*t,4)}, v{vL16}, {ws}, s{sKo} offen offset:{2048+t*1024} sc1", tag='dl')
        B(f"s_add_u32 s{sQo}, s{sQo}, {4*SLOT}\ns_add_u32 s{sKo}, s{sKo}, {4*SLOT}")
        B(f"s_sub_u32 s{sI}, s{sI}, 1\ns_cmp_lg_u32 s{sI}, 0\ns_cbranch_scc1 L_h_p1")
    two_pass(A, body)
    A.wait_vm()
    A("s_mov_b64 exec, 1")
    A(f"buffer_store_byte v{ONE}, off, {ws}, s{sFp} sc1")
    A("s_mov_b64 exec, -1")
    A("s_barrier")
    stamp(A, o, 2)
    Q, KT, VT, S, SM, KM, VM, OWN, P, PM, OA, OU, mx, t1, t2, vNeg = 16, 32, 64, 80, 88, 92, 108, 112, 116, 120, 128, 144, 152, 153, 154, 155
    vKw, vKr, vVw, vVr = vA0, vA1, vA2, vA3
    sTq, sHf, sMk = 32, 33, 84
    A(f"s_and_b32 s{sTq}, s{sWv}, 1\ns_lshr_b32 s{sHf}, s{sWv}, 1")
    hbase()
    A(f"s_lshl_b32 s{sQo}, s{sTq}, 10\ns_add_u32 s{sQo}, s{sQo}, s{sT0}\ns_add_u32 s{sQo}, s{sQo}, 20480")
    A(f"s_mov_b32 s{sKo}, s{sT0}")
    A(f"s_lshl_b32 s{sMo}, s{sWv}, 10\ns_add_u32 s{sMo}, s{sMo}, s{sT0}\ns_add_u32 s{sMo}, s{sMo}, 16384")
    A(f"s_lshl_b32 s{sT0}, s{sRep}, 1\ns_add_u32 s{sT0}, s{sT0}, s{sTq}")
    A(f"s_lshl_b32 s{sT1}, s{sH}, 1\ns_add_u32 s{sT1}, s{sT1}, s{sHf}")
    A(f"s_mul_i32 s{sOo}, s{sT0}, {OFU}\ns_lshl_b32 s{sT2}, s{sT1}, 11\ns_add_u32 s{sOo}, s{sOo}, s{sT2}\ns_add_u32 s{sOo}, s{sOo}, {OF}")
    A(f"s_lshl_b32 s{sFOo}, s{sT0}, 8\ns_lshl_b32 s{sT2}, s{sT1}, 2\ns_add_u32 s{sFOo}, s{sFOo}, s{sT2}\ns_add_u32 s{sFOo}, s{sFOo}, {F_O}")
    A(f"s_mov_b32 s{sScale}, {f2u(128**-0.5)}\ns_mov_b32 s{sL2E}, {f2u(1.4426950408889634)}")
    A(f"v_lshrrev_b32 v{t1}, 2, v{vC}\nv_and_b32 v{t2}, 3, v{vC}")
    A(f"v_lshlrev_b32 v{vKw}, 7, v{t1}\nv_lshl_add_u32 v{vKw}, v{vG}, 5, v{vKw}\nv_lshl_add_u32 v{vKw}, v{t2}, 2, v{vKw}")
    A(f"s_lshl_b32 s{sT0}, s{sWv}, 9\nv_add_u32 v{vKw}, s{sT0}, v{vKw}")
    A(f"v_lshl_add_u32 v{vVw}, v{vL}, 3, s{sT0}")
    A(f"s_lshl_b32 s{sT0}, s{sHf}, 10\nv_lshl_add_u32 v{vVr}, v{vL}, 3, s{sT0}")
    A(f"v_and_b32 v{mx}, 1, v{vC}\nv_lshlrev_b32 v{mx}, 4, v{mx}\nv_lshl_add_u32 v{mx}, v{t1}, 5, v{mx}\nv_lshl_add_u32 v{vKr}, v{vG}, 7, v{mx}")
    A(f"v_lshl_add_u32 v{t2}, v{t1}, 3, v{t2}\ns_lshl_b32 s{sT0}, s{sTq}, 2\nv_add_u32 v{t2}, s{sT0}, v{t2}")
    A(f"v_lshlrev_b32 v{t1}, 3, v{vG}\nv_sub_u32 v{t2}, v{t2}, v{t1}")
    for j in range(8): A(f"v_cmp_le_i32 s[{sMk+2*j}:{sMk+2*j+1}], {j}, v{t2}")
    A(f"v_mov_b32 v{vNeg}, {f2u(-1e9)}")
    A(f"v_mov_b32 v{PM+1}, 0\nv_mov_b32 v{PM+2}, 0")
    A(f"s_mov_b32 s{sI}, 16")
    A("L_h_p2:")
    A.vm = []; A.lds = []
    for w_ in range(4):
        if w_ % 2 == 0: A(f"s_add_u32 s{sT0}, s{sQo}, {w_*2048}")
        A(f"buffer_load_dwordx4 {vr(Q+4*w_,4)}, v{vL16}, {ws}, s{sT0} offen offset:{(w_%2)*2048}", tag=('q', w_))
        A(f"s_add_u32 s{sT1}, s{sKo}, {w_*4096}")
        for tk in range(2):
            A(f"buffer_load_dwordx4 {vr(KT+8*w_+4*tk,4)}, v{vL16}, {ws}, s{sT1} offen offset:{tk*1024}", tag=('q', w_))
    A(f"s_lshl_b32 s{sT0}, s{sHf}, 13\ns_add_u32 s{sT0}, s{sT0}, s{sKo}\ns_add_u32 s{sT1}, s{sT0}, 4096")
    for w_ in range(2):
        for t in range(2):
            A(f"buffer_load_dwordx4 {vr(VT+8*w_+4*t,4)}, v{vL16}, {ws}, s{sT0+w_} offen offset:{2048+t*1024}")
    for w_ in range(4):
        A.wait_vm(('q', w_))
        for tk in range(2):
            A(f"{MF} {vr(S+4*tk,4)}, {vr(KT+8*w_+4*tk,4)}, {vr(Q+4*w_,4)}, {vr(S+4*tk,4) if w_ else 0}")
    for j in range(8): rnd(A, S+j)
    for j in range(8): A(f"v_mul_f32 v{S+j}, s{sScale}, v{S+j}")
    for j in range(8): rnd(A, S+j)
    for j in range(8): A(f"v_cndmask_b32 v{S+j}, v{vNeg}, v{S+j}, s[{sMk+2*j}:{sMk+2*j+1}]")
    A(f"v_max3_f32 v{mx}, v{S}, v{S+1}, v{S+2}\nv_max3_f32 v{mx}, v{mx}, v{S+3}, v{S+4}\nv_max3_f32 v{mx}, v{mx}, v{S+5}, v{S+6}\nv_max_f32 v{mx}, v{mx}, v{S+7}")
    A("L_h_km:")
    A(f"buffer_load_dwordx4 {vr(OWN,4)}, v{vL16}, {ws}, s{sMo} offen sc1")
    A.wait_vm()
    A(f"v_max3_u32 v{t1}, v{OWN}, v{OWN+1}, v{OWN+2}\nv_max_u32 v{t1}, v{t1}, v{OWN+3}")
    A(f"v_cmp_eq_u32 vcc, -1, v{t1}\ns_cbranch_vccnz L_h_km_re")
    OOL.append(retry("L_h_km_re", "L_h_km", "L_h_km_ok").replace(":\n", f":\ns_sleep {o['bk']}\n", 1) if o.get('bk') else retry("L_h_km_re", "L_h_km", "L_h_km_ok"))
    A("L_h_km_ok:")
    A(f"ds_write2_b32 v{vKw}, v{OWN}, v{OWN+1} offset0:0 offset1:4")
    A(f"ds_write_b64 v{vVw}, {vr(OWN+2,2)} offset:2048")
    A.wait_lds()
    A("s_barrier")
    for w_ in range(4): A(f"ds_read_b128 {vr(KM+4*w_,4)}, v{vKr} offset:{w_*512}", tag=('k', w_))
    for w_ in range(2): A(f"ds_read_b64 {vr(VM+2*w_,2)}, v{vVr} offset:{2048+w_*512}", tag='v')
    for v_ in (vKw, vKr, vVw, vVr): A(f"v_xor_b32 v{v_}, 4096, v{v_}")
    for w_ in range(4):
        A.wait_lds(('k', w_))
        A(f"{MF} {vr(SM,4)}, {vr(KM+4*w_,4)}, {vr(Q+4*w_,4)}, {vr(SM,4) if w_ else 0}")
    for j in range(2): rnd(A, SM+j)
    for j in range(2): A(f"v_mul_f32 v{SM+j}, s{sScale}, v{SM+j}")
    for j in range(2): rnd(A, SM+j)
    A(f"v_max3_f32 v{mx}, v{mx}, v{SM}, v{SM+1}")
    red_g(A, 'v_max_f32', mx, t1)
    A(f"v_mul_f32 v{mx}, s{sL2E}, v{mx}")
    for j in range(10): A(f"v_fma_f32 v{S+j}, v{S+j}, s{sL2E}, -v{mx}")
    for j in range(10): A(f"v_exp_f32 v{S+j}, v{S+j}")
    A(f"v_add_f32 v{t2}, v{S}, v{S+1}")
    for j in range(2, 10): A(f"v_add_f32 v{t2}, v{t2}, v{S+j}")
    red_g(A, 'v_add_f32', t2, t1)
    A(f"v_rcp_f32 v{t1}, v{t2}")
    for j in range(10): A(f"v_mul_f32 v{S+j}, v{S+j}, v{t1}")
    for j in range(4): A(f"v_cvt_pk_bf16_f32 v{P+j}, v{S+2*j}, v{S+2*j+1}")
    A(f"v_cvt_pk_bf16_f32 v{PM}, v{SM}, v{SM+1}\nv_cvt_pk_bf16_f32 v{PM+3}, v{SM}, v{SM+1}")
    for n in range(4): A(f"{MF} {vr(OA+4*n,4)}, {vr(VT+4*n,4)}, {vr(P,4)}, 0")
    A.wait_lds()
    for n in range(4):
        A(f"v_mfma_f32_16x16x16_bf16 {vr(OA+4*n,4)}, {vr(VM+2*(n>>1),2)}, {vr(PM+2*(n&1),2)}, {vr(OA+4*n,4)}")
    for w_ in range(2):
        for i in range(4): A(f"v_cvt_pk_bf16_f32 v{OU+4*w_+i}, v{OA+8*w_+i}, v{OA+8*w_+4+i}")
        A(f"buffer_store_dwordx4 {vr(OU+4*w_,4)}, v{vL16}, {ws}, s{sOo} offen offset:{w_*1024} sc1")
    A.wait_vm()
    A("s_mov_b64 exec, 1")
    A(f"buffer_store_dword v{ONE}, off, {ws}, s{sFOo} sc1")
    A("s_mov_b64 exec, -1")
    A(f"s_add_u32 s{sQo}, s{sQo}, {4*SLOT}\ns_add_u32 s{sKo}, s{sKo}, {4*SLOT}\ns_add_u32 s{sMo}, s{sMo}, {4*SLOT}")
    A(f"s_add_u32 s{sOo}, s{sOo}, {8*OFU}\ns_add_u32 s{sFOo}, s{sFOo}, {8*256}")
    A(f"s_sub_u32 s{sI}, s{sI}, 1\ns_cmp_lg_u32 s{sI}, 0\ns_cbranch_scc1 L_h_p2")
    stamp(A, o, 3)
    dump_stamps(A, o, 7, range(54, 66, 2))
    A("s_endpgm")
    for t in OOL: A(t)

def emit_og(A, o):
    OOL = []
    sIdx, sXo, sOo, sI, sWb, sJ, sU, sFOo, sXa, sCs = 20, 22, 23, 28, 29, 24, 25, 26, 27, 30
    sX, sOut = 84, 88
    vTok = vA1
    def xs(i):
        if o.get('time'): A(f"s_memtime s[{54+2*i}:{55+2*i}]")
    for i in range(6): xs(i)
    lanes(A)
    srd(A, sX, 0, 2097152)
    srd(A, sOut, 80, 2097152)
    srd(A, sW, 64, 512*2752)
    A(f"s_sub_u32 s{sIdx}, s{sXCC}, 5\ns_lshl_b32 s{sIdx}, s{sIdx}, 5\ns_add_u32 s{sIdx}, s{sIdx}, s{sR}")
    A(f"v_lshrrev_b32 v{vA0}, 2, v{vC}\nv_and_b32 v{vA2}, 3, v{vC}\nv_lshl_add_u32 v{vA0}, v{vA0}, 3, v{vA2}")
    A(f"v_lshlrev_b32 v{vA0}, 10, v{vA0}\nv_lshl_add_u32 v{vTok}, v{vG}, 4, v{vA0}")
    A(f"s_cmp_ge_u32 s{sIdx}, 64\ns_cbranch_scc1 L_o_arm")
    A(f"s_cmp_ge_u32 s{sWv}, 2\ns_cbranch_scc1 {'L_o_tw' if o.get('ot', 1) else 'L_o_ffn'}")
    RW, F = 32, 96
    A(f"s_lshl_b32 s{sT0}, s{sIdx}, 15\ns_lshl_b32 s{sT1}, s{sWv}, 12\ns_add_u32 s{sT1}, s{sT0}, s{sT1}")
    for k in range(16): A(f"buffer_load_dwordx4 {vr(RW+4*k,4)}, v{vTok}, s[{sX}:{sX+3}], s{sT1} offen offset:{64*k}", tag=k)
    A(f"s_lshl_b32 s{sT1}, s{sWv}, 14\ns_add_u32 s{sXo}, s{sT0}, s{sT1}\ns_add_u32 s{sXo}, s{sXo}, {XF}")
    A(f"s_mov_b32 s{sT2}, 0xffff0000")
    a = [16, 17, 18, 19]; mean, t1, r = 20, 21, 22
    for q in a: A(f"v_mov_b32 v{q}, 0")
    for k in range(64):
        if k % 4 == 0: A.wait_vm(k // 4)
        if k == 0: xs(1)
        A(f"v_lshlrev_b32 v{F+2*k}, 16, v{RW+k}\nv_and_b32 v{F+2*k+1}, s{sT2}, v{RW+k}")
        A(f"v_add_f32 v{a[(2*k)%4]}, v{a[(2*k)%4]}, v{F+2*k}\nv_add_f32 v{a[(2*k+1)%4]}, v{a[(2*k+1)%4]}, v{F+2*k+1}")
    def tot(d):
        A(f"v_add_f32 v{a[0]}, v{a[0]}, v{a[1]}\nv_add_f32 v{a[2]}, v{a[2]}, v{a[3]}\nv_add_f32 v{d}, v{a[0]}, v{a[2]}")
        red_g(A, 'v_add_f32', d, t1)
        A(f"v_mul_f32 v{d}, {f2u(1/512)}, v{d}")
    tot(mean)
    xs(2)
    for q in a: A(f"v_mov_b32 v{q}, 0")
    for k in range(128):
        A(f"v_sub_f32 v{24+k%4}, v{F+k}, v{mean}\nv_fmac_f32 v{a[k%4]}, v{24+k%4}, v{24+k%4}")
    tot(r)
    rnd(A, mean); rnd(A, r)
    A(f"v_add_f32 v{r}, {f2u(1e-5)}, v{r}"); rnd(A, r)
    A(f"v_sqrt_f32 v{r}, v{r}"); rnd(A, r)
    A(f"v_rcp_f32 v{r}, v{r}")
    xs(3)
    for k in range(64):
        for j in range(2):
            f = F+2*k+j
            A(f"v_sub_f32 v{f}, v{f}, v{mean}"); rnd(A, f); A(f"v_mul_f32 v{f}, v{f}, v{r}")
        A(f"v_cvt_pk_bf16_f32 v{RW+k}, v{F+2*k}, v{F+2*k+1}")
        if k % 4 == 3:
            A(f"buffer_store_dwordx4 {vr(RW+k-3,4)}, v{vL16}, {ws}, s{sXo} offen offset:{((k//4)%4)*1024} sc1")
            if k % 16 == 15: A(f"s_add_u32 s{sXo}, s{sXo}, 4096")
    xs(4)
    A.wait_vm()
    cnt_add(A, D_CX, None)
    A("s_branch L_o_ffn")
    if o.get('ot', 1):
        A("L_o_tw:")
        srd(A, 92, 40, 4194304)
        A(f"v_lshlrev_b32 v16, 6, v{vL}")
        A(f"s_lshl_b32 s{sT0}, s{sIdx}, 16\ns_and_b32 s{sT1}, s{sWv}, 1\ns_lshl_b32 s{sT1}, s{sT1}, 15\ns_add_u32 s{sT0}, s{sT0}, s{sT1}")
        for j in range(8):
            A(f"buffer_load_dword v17, v16, s[92:95], s{sT0} offen")
            A(f"s_add_u32 s{sT0}, s{sT0}, 4096")
        A.wait_vm()
        A("s_branch L_o_ffn")
    A("L_o_arm:")
    A(f"s_cmp_ge_u32 s{sIdx}, 80\ns_cbranch_scc1 L_o_ffn")
    A(f"s_cmp_lg_u32 s{sWv}, 0\ns_cbranch_scc1 L_o_ffn")
    for q in range(4): A(f"v_mov_b32 v{32+q}, 0")
    A(f"s_lshl_b32 s{sT0}, s{sIdx}, 10\ns_add_u32 s{sT0}, s{sT0}, {F_KT - 64*1024}")
    A(f"buffer_store_dwordx4 v[32:35], v{vL16}, {ws}, s{sT0} offen sc1")
    A(f"s_lshl_b32 s{sT0}, s{sIdx}, 11\ns_add_u32 s{sT0}, s{sT0}, {(F_O - 64*2048) % (1<<32)}")
    for n in range(2): A(f"buffer_store_dwordx4 v[32:35], v{vL16}, {ws}, s{sT0} offen offset:{n*1024} sc1")
    A.wait_vm()
    cnt_add(A, D_CX, None)
    A("L_o_ffn:")
    A.vm = []
    stamp(A, o, 0)
    XB, AC, OU = 16, 80, 96
    A(f"s_lshl_b32 s{sT0}, s{sIdx}, 2\ns_add_u32 s{sT0}, s{sT0}, s{sWv}")
    A(f"s_mul_i32 s{sT1}, s{sT0}, 2979\ns_lshr_b32 s{sT1}, s{sT1}, 16")
    A(f"s_mul_i32 s{sT2}, s{sT1}, 22\ns_sub_u32 s{sCs}, s{sT0}, s{sT2}")
    A(f"s_cmp_ge_u32 s{sT1}, {0 if o.get('nof1') else 16}\ns_cbranch_scc1 L_o_ffn_done")
    A(f"s_lshl_b32 s{sXo}, s{sT1}, 17\ns_add_u32 s{sXo}, s{sXo}, {XF}")
    A(f"s_mul_i32 s{sOo}, s{sT1}, {8*OFU}\ns_lshl_b32 s{sT2}, s{sCs}, 11\ns_add_u32 s{sOo}, s{sOo}, s{sT2}\ns_add_u32 s{sOo}, s{sOo}, {OF+128*1024}")
    A(f"s_lshl_b32 s{sWb}, s{sCs}, 7")
    if o.get('pt'):
        A(f"s_add_u32 s{sT0}, s{sOo}, {7*OFU}")
        for r_ in (sOo, sT0): A(f"buffer_load_dword v126, v{vL16}, {ws}, s{r_} offen")
    A(f"v_mul_u32_u24 v{vA0}, {8*2752}, v{vG}\nv_lshl_add_u32 v{vA0}, v{vC}, 3, v{vA0}")
    jobs = [(None, [(sWb, (32*k+i)*2752) for i in range(8)], (lambda t, k=k: ('a', 16*k+4*t))) for k in range(16)]
    load_w(A, jobs, vA0, 2, 128, AC)
    xs(5)
    if o.get('w1', 1): wait_cnt1(A, OOL, "L_o_cx", D_CX, [N_CX], 16, o.get('odl', 64))
    else: wait_cnt(A, OOL, "L_o_cx", D_CX, N_CX, 126)
    def xload(B, n):
        B(f"buffer_load_dwordx4 {vr(XB+4*(n%16),4)}, v{vL16}, {ws}, s{sXo} offen offset:{(n%4)*1024}", tag=('x', n % 16))
        if n % 4 == 3: B(f"s_add_u32 s{sXo}, s{sXo}, 4096")
    for n in range(16): xload(A, n)
    A(f"s_mov_b32 s{sI}, 8")
    A("s_waitcnt vmcnt(0)")
    A("L_o_f1:")
    def body(B):
        for k in range(16):
            B.wait_vm(('x', k))
            for t in range(4):
                ac = vr(AC+4*t, 4)
                B(f"{MF} {ac}, {vr(16*k+4*t,4,'a')}, {vr(XB+4*k,4)}, {ac if k else 0}")
            xload(B, k)
        for j in range(16): B(f"v_max_f32 v{AC+j}, 0, v{AC+j}")
        for i in range(4):
            for tp in range(2): B(f"v_cvt_pk_bf16_f32 v{OU+2*i+tp}, v{AC+8*tp+i}, v{AC+8*tp+4+i}")
        for a_ in range(0 if o.get('nof1s') else 2): B(f"buffer_store_dwordx4 {vr(OU+4*a_,4)}, v{vL16}, {ws}, s{sOo} offen offset:{a_*1024} sc1")
        B(f"s_add_u32 s{sOo}, s{sOo}, {OFU}")
        B(f"s_sub_u32 s{sI}, s{sI}, 1\ns_cmp_lg_u32 s{sI}, 0\ns_cbranch_scc1 L_o_f1")
    two_pass(A, body)
    A("L_o_ffn_done:")
    A.wait_vm()
    A("s_barrier")
    A(f"s_cmp_lg_u32 s{sWv}, 0\ns_cbranch_scc1 L_o_w")
    cnt_add(A, D_CH, None)
    A("L_o_w:")
    A.vm = []
    stamp(A, o, 1)
    AA, AB, BUF, XR, W2 = 16, 24, 32, 160, 168
    vLw, vLr, vFl = vA2, vA3, 9
    A(f"s_and_b32 s{sJ}, s{sR}, 15\ns_lshr_b32 s{sU}, s{sIdx}, 4")
    A(f"s_lshl_b32 s{sWb}, s{sWv}, 20\ns_lshl_b32 s{sJ}, s{sJ}, 6\ns_add_u32 s{sWb}, s{sWb}, s{sJ}")
    A(f"v_lshlrev_b32 v{vA0}, 13, v{vG}\nv_lshl_add_u32 v{vA0}, v{vC}, 2, v{vA0}")
    jobs = [((lambda: srd(A, sW, 40, 4194304)) if k == 0 else None, [(sWb, (32*k+i)*1024) for i in range(8)], (lambda t, k=k: ('a', 8*k+4*t))) for k in range(32)]
    load_w(A, jobs, vA0, 1, BUF, AA)
    A(f"v_lshlrev_b32 v{vA0}, 14, v{vG}\nv_lshl_add_u32 v{vA0}, v{vC}, 2, v{vA0}")
    def pre2(n):
        if n == 0: srd(A, sW, 72, 1376*1024)
        A(f"s_mul_i32 s{sT1}, s{sWv}, 11\ns_add_u32 s{sT1}, s{sT1}, {n}\ns_and_b32 s{sT2}, s{sT1}, 1")
        A(f"s_lshl_b32 s{sT1}, s{sT1}, 15\ns_mul_i32 s{sT2}, s{sT2}, {24*1024}\ns_sub_u32 s{sT1}, s{sT1}, s{sT2}\ns_add_u32 s{sWb}, s{sT1}, s{sJ}")
    jobs = [((lambda n=n: pre2(n)), [(sWb, i*1024) for i in range(8)], (lambda t, n=n: ('v', W2+8*n+4*t))) for n in range(11)]
    load_w(A, jobs, vA0, 1, BUF, AA)
    A(f"s_lshl_b32 s{sT0}, s{sWv}, 12\nv_add_u32 v{vLw}, s{sT0}, v{vL16}\nv_mov_b32 v{vLr}, v{vL16}")
    A(f"v_lshlrev_b32 v{vFl}, 2, v{vC}")
    A(f"s_mul_i32 s{sOo}, s{sU}, {OFU}\ns_add_u32 s{sOo}, s{sOo}, {OF}")
    A(f"s_lshl_b32 s{sFOo}, s{sU}, 8\ns_lshl_b32 s{sT0}, s{sWv}, 6\ns_add_u32 s{sFOo}, s{sFOo}, s{sT0}\ns_add_u32 s{sFOo}, s{sFOo}, {F_O}")
    wait_cnt1(A, OOL, "L_o_ch", D_CX, [N_CX, N_CH], 164, o.get('odl', 64))
    stamp(A, o, 2)
    A("L_o_u:")
    A.vm = []; A.lds = []
    A(f"s_lshr_b32 s{sXa}, s{sU}, 1\ns_lshl_b32 s{sXa}, s{sXa}, 15\ns_and_b32 s{sT0}, s{sU}, 1\ns_lshl_b32 s{sT0}, s{sT0}, 12\ns_add_u32 s{sXa}, s{sXa}, s{sT0}\ns_add_u32 s{sXa}, s{sXa}, s{sJ}")
    A(f"s_mul_i32 s{sT0}, s{sWv}, {11*1024}\ns_add_u32 s{sT0}, s{sT0}, s{sOo}\ns_add_u32 s{sT0}, s{sT0}, {128*1024}")
    for n in range(11):
        A(f"buffer_load_dwordx4 {vr(BUF+4*n,4)}, v{vL16}, {ws}, s{sT0} offen offset:{(n%4)*1024}", tag=n)
        if n % 4 == 3: A(f"s_add_u32 s{sT0}, s{sT0}, 4096")
    A(f"buffer_load_dwordx4 {vr(XR,4)}, v{vTok}, s[{sX}:{sX+3}], s{sXa} offen")
    for n in range(11):
        A.wait_vm(n)
        for t in range(2): A(f"{MF} {vr(AB+4*t,4)}, {vr(W2+8*n+4*t,4)}, {vr(BUF+4*n,4)}, {vr(AB+4*t,4) if n else 0}")
    A(f"s_lshl_b32 s{sT0}, s{sWv}, 15\ns_add_u32 s{sT0}, s{sT0}, s{sOo}")
    for t in range(2): A(f"ds_write_b128 v{vLw}, {vr(AB+4*t,4)} offset:{2048+t*1024}")
    A("L_o_fo:")
    A(f"buffer_load_dword v164, v{vFl}, {ws}, s{sFOo} offen sc1")
    A.wait_vm()
    A("v_cmp_eq_u32 vcc, 0, v164\ns_cbranch_vccnz L_o_fo_re")
    OOL.append(retry("L_o_fo_re", "L_o_fo", "L_o_fo_ok").replace(":\n", f":\ns_sleep {o['bk']}\n", 1) if o.get('bk') else retry("L_o_fo_re", "L_o_fo", "L_o_fo_ok"))
    A("L_o_fo_ok:")
    for n in range(32):
        A(f"buffer_load_dwordx4 {vr(BUF+4*n,4)}, v{vL16}, {ws}, s{sT0} offen offset:{(n%4)*1024}", tag=n)
        if n % 4 == 3: A(f"s_add_u32 s{sT0}, s{sT0}, 4096")
    for n in range(32):
        A.wait_vm(n)
        for t in range(2): A(f"{MF} {vr(AA+4*t,4)}, {vr(8*n+4*t,4,'a')}, {vr(BUF+4*n,4)}, {vr(AA+4*t,4) if n else 0}")
    for t in range(2): A(f"ds_write_b128 v{vLw}, {vr(AA+4*t,4)} offset:{t*1024}")
    A.wait_lds()
    A("s_barrier")
    A(f"s_cmp_lg_u32 s{sWv}, 3\ns_cbranch_scc1 L_o_nx")
    for w_ in range(3):
        for n in range(4): A(f"ds_read_b128 {vr(BUF+16*w_+4*n,4)}, v{vLr} offset:{w_*4096+n*1024}", tag=w_)
    A(f"s_mov_b32 s{sT2}, 0xffff0000")
    for i in range(4): A(f"v_lshlrev_b32 v{BUF+48+i}, 16, v{XR+i}\nv_and_b32 v{BUF+52+i}, s{sT2}, v{XR+i}")
    for w_ in range(3):
        A.wait_lds(w_)
        for j in range(16): A(f"v_add_f32 v{AA+j}, v{AA+j}, v{BUF+16*w_+j}")
    for j in range(16): rnd(A, AA+j)
    for j in range(8): A(f"v_add_f32 v{AA+j}, v{AA+j}, v{BUF+48+j}")
    for j in range(8): rnd(A, AA+j)
    for j in range(8): A(f"v_add_f32 v{AA+j}, v{AA+j}, v{AB+j}")
    for i in range(4): A(f"v_cvt_pk_bf16_f32 v{164+i}, v{AA+i}, v{AA+4+i}")
    A(f"buffer_store_dwordx4 v[164:167], v{vTok}, s[{sOut}:{sOut+3}], s{sXa} offen")
    A("s_nop 1")
    A("L_o_nx:")
    A(f"v_xor_b32 v{vLw}, 0x4000, v{vLw}\nv_xor_b32 v{vLr}, 0x4000, v{vLr}")
    A(f"s_add_u32 s{sOo}, s{sOo}, {6*OFU}\ns_add_u32 s{sFOo}, s{sFOo}, {6*256}")
    A(f"s_add_u32 s{sU}, s{sU}, 6\ns_cmp_lt_u32 s{sU}, 128\ns_cbranch_scc1 L_o_u")
    stamp(A, o, 3)
    dump_stamps(A, o, 4, range(54, 66, 2))
    A("s_endpgm")
    for t in OOL: A(t)

def gen(o):
    A = Asm()
    A.L.append("; @launch grid=(256,1,1) block=(256,1,1) lds=163840")
    A('.amdgcn_target "amdgcn-amd-amdhsa--gfx950"')
    header(A, NAME)
    GT.prologue(A, o)
    A(f"s_cmp_gt_u32 s{sR}, 31\ns_cbranch_scc1 L_exit")
    A(f"s_cmp_eq_u32 s{sXCC}, 0\ns_cbranch_scc1 L_team")
    A(f"s_cmp_gt_u32 s{sXCC}, 4\ns_cbranch_scc1 L_og")
    A("s_branch L_head")
    A("L_exit:\ns_endpgm")
    A("L_team:"); A.vm = []; A.lds = []
    (GT2 if o.get('t2') else GT3).emit_team(A, o)
    A("L_head:"); A.vm = []; A.lds = []
    emit_head(A, o)
    A("L_og:"); A.vm = []; A.lds = []
    emit_og(A, o)
    kd(A, NAME, 256, 256)
    t = A.text()
    if o.get('rt'): t = t.replace('s_memtime', 's_memrealtime')
    return t

if __name__ == '__main__':
    import sys
    o = dict(mimic=1, time=0)
    for a in sys.argv[2:]:
        k, v = a.split('='); o[k] = v if ',' in v else int(v)
    assert all((j*2979 >> 16) == j // 22 for j in range(384))
    open(sys.argv[1], 'w').write(gen(o))
```
